```python
import torch

def _softmax(x, axis=-1):
    return torch.softmax(x, dim=axis)
def _gelu(x):
    return torch.nn.functional.gelu(x, approximate="tanh")
def _silu(x):
    return torch.nn.functional.silu(x)
def _sigmoid(x):
    return torch.sigmoid(x)
def _layernorm(x, axis=-1, eps=1e-5):
    m = x.mean(dim=axis, keepdim=True)
    v = x.var(dim=axis, keepdim=True, unbiased=False)
    return (x - m) / torch.sqrt(v + eps)
def _scatter_add(tgt, idx, src, axis=0):
    return tgt.clone().index_add_(axis, idx, src)
def _segment_sum(src, seg, n):
    out = torch.zeros((n,) + src.shape[1:], dtype=src.dtype)
    return out.index_add_(0, seg, src)
def _pad(x, pw):
    flat = tuple(v for pair in reversed(pw) for v in pair)
    return torch.nn.functional.pad(x, flat)

kernel_name = 'gated_mix__linear_attn_block__dense_activation_squared_relu__prompt'

def setup_inputs():

    _w = (lambda a: (lambda t: t.to(torch.bfloat16) if t.is_floating_point() else t)(torch.as_tensor(a)))
    def _A_setup():
        B, S, D = 1, 2048, 640
        return {
            "x": _w((lambda *s: torch.randn(*s, dtype=torch.bfloat16) * 0.05)(B, S, D)),
            "wqkv": _w((lambda *s: torch.randn(*s, dtype=torch.bfloat16) * 0.8)(D, 3 * D)),
            "wo": _w((lambda *s: torch.randn(*s, dtype=torch.bfloat16) * 0.2)(D, D)),
        }
    _A_in = _A_setup()

    def _B_setup():
        B, S, D, F = 1, 2048, 640, 1536
        return {
            "x": _w((lambda *s: torch.randn(*s, dtype=torch.bfloat16) * 0.05)(B, S, D)),
            "w1": _w((lambda *s: torch.randn(*s, dtype=torch.bfloat16) * 0.1)(D, F)),
            "b1": _w((lambda *s: torch.randn(*s, dtype=torch.bfloat16) * 0.05)(F)),
            "w2": _w((lambda *s: torch.randn(*s, dtype=torch.bfloat16) * 0.05)(F, D)),
            "b2": _w((lambda *s: torch.randn(*s, dtype=torch.bfloat16) * 0.05)(D)),
        }
    _B_in = _B_setup()

    return {
        "A_x": _A_in["x"],
        "A_wqkv": _A_in["wqkv"],
        "A_wo": _A_in["wo"],
        "B_x": _B_in["x"],
        "B_w1": _B_in["w1"],
        "B_b1": _B_in["b1"],
        "B_w2": _B_in["w2"],
        "B_b2": _B_in["b2"],
        "gate_w": _w((lambda *s: torch.randn(*s, dtype=torch.bfloat16) * 0.05)(640) * 16.0),
    }

def reference(A_x, A_wqkv, A_wo, B_x, B_w1, B_b1, B_w2, B_b2, gate_w):
    def _A_ref(x, wqkv, wo):
        B, S, D = x.shape
        H = 32; Dh = D // H
        qkv = (lambda x, *d: x.permute(*d))((x @ wqkv).reshape(B, S, 3, H, Dh), 2, 0, 3, 1, 4)
        q, k, v = qkv[0], qkv[1], qkv[2]
        phi = lambda t: torch.where(t > 0, t + 1, torch.exp(t)) + 1e-6
        pq, pk = phi(q), phi(k)
        kv = torch.einsum("bhsd,bhse->bhde", pk, v)
        z = torch.einsum("bhsd->bhd", pk)
        num = torch.einsum("bhqd,bhde->bhqe", pq, kv)
        den = torch.einsum("bhqd,bhd->bhq", pq, z)[..., None] + 1e-6
        o = num / den
        return (lambda x, *d: x.permute(*d))(o, 0, 2, 1, 3).reshape(B, S, D) @ wo

    def _B_ref(x, w1, b1, w2, b2):
        h = torch.einsum("bsd,df->bsf", x, w1) + b1
        zero = torch.zeros_like(h)
        r = torch.where(h > zero, h, zero)
        h = r * r
        out = torch.einsum("bsf,fd->bsd", h, w2) + b2
        return out

    x = A_x
    g = _sigmoid((x * gate_w).sum(-1, keepdims=True))
    a = _A_ref(x, A_wqkv, A_wo)
    b = _B_ref(x, B_w1, B_b1, B_w2, B_b2)
    return g * a + (1 - g) * b
```

```python
import sys

NAME = "gated_mix__linear_attn_block__dense_activation_squared_relu__prompt"

WS_H   = 0x000000
WS_PQF = 0x600000
WS_P   = 0x900000
WS_KVT = 0xA00000
WS_G   = 0xA10000
WS_SIZE = 0xA20000

class Asm:
    def __init__(self):
        self.L = []
    def __call__(self, s):
        for ln in s.strip("\n").split("\n"):
            self.L.append("  " + ln.strip())
    def label(self, l):
        self.L.append(l + ":")
    def raw(self, s):
        self.L.append(s)
    def text(self):
        return "\n".join(self.L) + "\n"

def vr(b, n=4):
    return "v[%d:%d]" % (b, b + n - 1)
def ar(b, n=4):
    return "a[%d:%d]" % (b, b + n - 1)

def srd(a, d, lo, size):
    a("s_mov_b32 s%d, s%d" % (d, lo))
    a("s_and_b32 s%d, s%d, 0xffff" % (d + 1, lo + 1))
    a("s_mov_b32 s%d, 0x%x" % (d + 2, size))
    a("s_mov_b32 s%d, 0x00020000" % (d + 3))

def interleave(a, main, side, start=1, every=1):
    side = list(side)
    for i, m in enumerate(main):
        a(m)
        if i >= start - 1 and (i - (start - 1)) % every == 0 and side:
            a(side.pop(0))
    for s in side:
        a(s)

LOG2E = "0x3fb8aa3b"
EPS = "0x358637bd"

def phi4(a, src, tmp):
    for i in range(4):
        a("v_mul_f32 v%d, %s, v%d" % (tmp + i, LOG2E, src + i))
    for i in range(4):
        a("v_min_f32 v%d, 0, v%d" % (tmp + i, tmp + i))
    for i in range(4):
        a("v_exp_f32 v%d, v%d" % (tmp + i, tmp + i))
    for i in range(4):
        a("v_max_f32 v%d, 0, v%d" % (src + i, src + i))
    for i in range(4):
        a("v_add_f32 v%d, v%d, v%d" % (src + i, src + i, tmp + i))
    for i in range(4):
        a("v_add_f32 v%d, %s, v%d" % (src + i, EPS, src + i))

S1_BUF = 45056
def stage1(a):
    a.raw(".globl s1_kernel\n.p2align 8\n.type s1_kernel,@function")
    a.label("s1_kernel")
    a("""
    s_cmp_ge_u32 s2, 256
    s_cbranch_scc1 L_s1_end
    s_load_dwordx4 s[36:39], s[0:1], 0
    s_load_dwordx4 s[40:43], s[0:1], 32
    s_load_dwordx2 s[44:45], s[0:1], 64
    s_load_dwordx2 s[46:47], s[0:1], 88
    s_and_b32 s48, s2, 7
    s_lshr_b32 s49, s2, 3
    s_and_b32 s50, s48, 1
    s_lshl_b32 s50, s50, 3
    s_and_b32 s51, s49, 7
    s_add_u32 s32, s50, s51          ; rb
    s_lshr_b32 s50, s48, 1
    s_lshl_b32 s50, s50, 2
    s_lshr_b32 s51, s49, 3
    s_add_u32 s65, s50, s51          ; cg
    s_and_b32 s34, s65, 1            ; type
    s_lshr_b32 s33, s65, 1           ; jj
    v_and_b32 v1, 63, v0
    v_lshrrev_b32 v2, 6, v0
    s_nop 0
    v_readfirstlane_b32 s35, v2      ; wave
    s_nop 3
    s_lshr_b32 s52, s35, 1           ; wr
    s_and_b32 s53, s35, 1            ; wc
    s_waitcnt lgkmcnt(0)
    """)
    srd(a, 8, 36, 2621440)
    srd(a, 12, 38, 2457600)
    srd(a, 16, 40, 1966080)
    srd(a, 20, 46, WS_SIZE)
    srd(a, 24, 42, 3072)
    srd(a, 28, 44, 1280)
    a("""
    s_lshl_b32 s60, s32, 7
    s_lshl_b32 s61, s65, 3
    s_add_u32 s60, s60, s61
    v_lshrrev_b32 v2, 5, v0
    v_add_u32 v2, s60, v2
    v_mov_b32 v250, v2
    v_mul_u32_u24 v2, 1280, v2
    v_and_b32 v3, 31, v0
    v_mul_u32_u24 v3, 40, v3
    v_add_u32 v2, v2, v3
    buffer_load_dwordx4 v[128:131], v2, s[8:11], 0 offen
    buffer_load_dwordx4 v[132:135], v2, s[8:11], 0 offen offset:16
    buffer_load_dwordx2 v[136:137], v2, s[8:11], 0 offen offset:32
    buffer_load_dwordx4 v[140:143], v3, s[28:31], 0 offen
    buffer_load_dwordx4 v[144:147], v3, s[28:31], 0 offen offset:16
    buffer_load_dwordx2 v[148:149], v3, s[28:31], 0 offen offset:32
    """)
    a("""
    v_lshrrev_b32 v2, 3, v1          ; l>>3
    v_mul_u32_u24 v2, 1280, v2
    v_and_b32 v3, 7, v1
    v_lshrrev_b32 v4, 4, v1          ; l>>4
    v_xor_b32 v5, v3, v4
    v_lshlrev_b32 v6, 4, v5
    v_add_u32 v96, v2, v6
    v_xor_b32 v5, 4, v5
    v_lshlrev_b32 v6, 4, v5
    v_add_u32 v97, v2, v6
    s_lshl_b32 s60, s32, 7
    s_lshl_b32 s61, s35, 5
    s_add_u32 s60, s60, s61
    s_mul_i32 s54, s60, 1280
    s_lshl_b32 s61, s35, 12
    s_mov_b32 s57, 0
    s_mov_b32 s58, 0
    s_mov_b32 s59, 0
    s_cmp_eq_u32 s34, 1
    s_cbranch_scc1 L_s1_typeB
    """)
    for typ in (0, 1):
        if typ == 1:
            a.label("L_s1_typeB")
        stage1_type(a, typ)
    a.label("L_s1_end")
    a("s_endpgm")

def s1_dma(a, typ):
    L = []
    L.append("s_add_u32 s63, s57, s61")
    for i in range(4):
        L.append("s_add_u32 m0, s63, %d" % (i * 1024))
        L.append("s_add_u32 s64, s54, %d" % (i * 10240))
        L.append("buffer_load_dwordx4 v%d, s[8:11], s64 offen lds" % (96 + (i & 1)))
    L.append("s_add_u32 s63, s57, s62")
    if typ == 0:
        for i in range(7):
            L.append("s_add_u32 m0, s63, %d" % (i * 1024))
            L.append("s_nop 0")
            L.append("buffer_load_dwordx4 v%d, s[12:15], s55 offen lds" % (98 + i))
    else:
        for i in range(6):
            L.append("s_add_u32 m0, s63, %d" % (i * 1024))
            L.append("s_nop 0")
            L.append("buffer_load_dwordx4 v%d, s[16:19], s56 offen lds" % (98 + i))
        L.append("s_add_u32 m0, s57, s66")
        L.append("s_nop 0")
        L.append("buffer_load_dwordx4 v104, s[12:15], s55 offen lds")
    L.append("s_add_u32 s54, s54, 128")
    L.append("s_add_u32 s55, s55, %d" % (64 * 3840))
    L.append("s_add_u32 s56, s56, %d" % (64 * 3072))
    L.append("s_add_u32 s57, s57, %d" % S1_BUF)
    L.append("s_cmp_eq_u32 s57, %d" % (3 * S1_BUF))
    L.append("s_cselect_b32 s57, 0, s57")
    return L

NDMA = 11

def swap23_v(a, d, s, t):
    a("v_and_b32 v%d, 3, v%d" % (d, s))
    a("v_and_b32 v%d, 4, v%d" % (t, s))
    a("v_lshlrev_b32 v%d, 1, v%d" % (t, t))
    a("v_or_b32 v%d, v%d, v%d" % (d, d, t))
    a("v_and_b32 v%d, 8, v%d" % (t, s))
    a("v_lshrrev_b32 v%d, 1, v%d" % (t, t))
    a("v_or_b32 v%d, v%d, v%d" % (d, d, t))

def stage1_type(a, typ):
    T = "AB"[typ]
    if typ == 0:
        C = 28
        a("s_mul_i32 s62, s35, 7168")
        a("s_add_u32 s62, s62, 16384")
        a("s_lshl_b32 s60, s35, 4")
        a("s_mul_i32 s55, s60, 3840")
        a("s_mov_b32 s56, 0")
        a("s_mov_b32 s67, %d" % ((2**32 + C - 1) // C))
        a("s_mul_i32 s68, s33, 160")
        a("s_add_u32 s69, s68, 1280")
        a("s_add_u32 s70, s68, %d" % (2560 - 160))
        a("s_lshl_b32 s71, s33, 7")
        a("s_sub_u32 s71, s71, 320")
        for i in range(7):
            a("v_add_u32 v2, %d, v1" % (64 * i))
            a("v_mul_hi_u32 v3, v2, s67")
            a("v_mul_u32_u24 v4, %d, v3" % C)
            a("v_sub_u32 v4, v2, v4")
            a("v_and_b32 v5, 4, v3")
            a("v_lshrrev_b32 v5, 1, v5")
            a("v_xor_b32 v4, v4, v5")
            swap23_v(a, 5, 3, 6)
            a("v_mul_u32_u24 v5, 3840, v5")
            a("v_mov_b32 v6, s69")
            a("v_mov_b32 v7, s70")
            a("v_cmp_gt_u32 vcc, 10, v4")
            a("s_nop 1")
            a("v_cndmask_b32 v6, v7, v6, vcc")
            a("v_mov_b32 v7, s71")
            a("v_cmp_gt_u32 vcc, 20, v4")
            a("s_nop 1")
            a("v_cndmask_b32 v6, v7, v6, vcc")
            a("v_lshlrev_b32 v4, 4, v4")
            a("v_add3_u32 v%d, v5, v6, v4" % (98 + i))
    else:
        C = 24
        a("s_mul_i32 s62, s35, 6144")
        a("s_add_u32 s62, s62, 16384")
        a("s_lshl_b32 s60, s35, 4")
        a("s_mul_i32 s56, s60, 3072")
        a("s_and_b32 s60, s35, 1")
        a("s_lshl_b32 s66, s60, 10")
        a("s_add_u32 s66, s66, %d" % (16384 + 24576))
        a("s_lshl_b32 s60, s60, 5")
        a("s_mul_i32 s55, s60, 3840")
        a("s_mov_b32 s67, %d" % ((2**32 + C - 1) // C))
        a("s_mul_i32 s68, s33, 384")
        for i in range(6):
            a("v_add_u32 v2, %d, v1" % (64 * i))
            a("v_mul_hi_u32 v3, v2, s67")
            a("v_mul_u32_u24 v4, %d, v3" % C)
            a("v_sub_u32 v4, v2, v4")
            a("v_and_b32 v5, 6, v3")
            a("v_xor_b32 v4, v4, v5")
            swap23_v(a, 5, 3, 6)
            a("v_mul_u32_u24 v5, 3072, v5")
            a("v_lshlrev_b32 v4, 4, v4")
            a("v_add3_u32 v%d, v5, s68, v4" % (98 + i))
        a("v_lshrrev_b32 v2, 1, v1")
        a("v_and_b32 v3, 15, v2")
        swap23_v(a, 5, 3, 6)
        a("v_and_b32 v3, 16, v2")
        a("v_add_u32 v5, v5, v3")
        a("v_mul_u32_u24 v5, 3840, v5")
        a("v_and_b32 v4, 1, v1")
        a("v_lshlrev_b32 v4, 4, v4")
        a("s_lshl_b32 s68, s33, 5")
        a("s_add_u32 s68, s68, 1024")
        a("v_add3_u32 v104, v5, s68, v4")
    for st in range(3):
        for s in s1_dma(a, typ):
            a(s)
    a("""
    v_and_b32 v2, 15, v1             ; m
    v_lshrrev_b32 v3, 4, v1          ; g
    s_lshl_b32 s60, s52, 6
    v_add_u32 v4, s60, v2
    v_lshlrev_b32 v4, 7, v4          ; (64wr+m)*128
    v_lshrrev_b32 v5, 1, v2
    v_xor_b32 v5, v5, v3             ; g ^ (m>>1)
    v_lshlrev_b32 v6, 4, v5
    v_add_u32 v105, v4, v6
    v_xor_b32 v5, 4, v5
    v_lshlrev_b32 v6, 4, v5
    v_add_u32 v106, v4, v6
    v_lshrrev_b32 v4, 2, v1
    v_and_b32 v4, 3, v4              ; r
    v_and_b32 v5, 3, v1              ; c
    v_lshlrev_b32 v5, 3, v5          ; c*8
    v_lshrrev_b32 v6, 1, v3          ; g>>1
    v_lshlrev_b32 v6, 4, v6
    v_and_b32 v7, 1, v3              ; g&1
    v_lshlrev_b32 v2, 2, v7
    v_add3_u32 v6, v6, v2, v4        ; pil
    """)
    if typ == 0:
        a("""
        v_mul_u32_u24 v2, 448, v6
        v_add_u32 v2, v2, v5
        v_add_u32 v2, 16384, v2
        v_lshlrev_b32 v7, 5, v7
        v_add_u32 v107, v2, v7
        v_sub_u32 v108, v2, v7
        """)
        nb = 2
    else:
        a("""
        v_mul_u32_u24 v2, 384, v6
        v_add_u32 v2, v2, v5
        v_add_u32 v2, 16384, v2
        v_lshrrev_b32 v7, 1, v6
        v_and_b32 v7, 3, v7              ; X
        """)
        for j in range(4):
            a("v_xor_b32 v3, %d, v7" % j)
            a("v_subrev_u32 v3, %d, v3" % j)
            a("v_lshlrev_b32 v3, 5, v3")
            a("v_add_u32 v%d, v2, v3" % (107 + j))
        a("v_lshlrev_b32 v2, 5, v6")
        a("v_add_u32 v2, v2, v5")
        a("v_add_u32 v111, %d, v2" % (16384 + 24576))
        nb = 5
    a("s_waitcnt vmcnt(%d)" % (3 * NDMA))
    a("v_mov_b32 v251, 0")
    for i in range(10):
        xr, gr = 128 + i, 140 + i
        a("v_lshlrev_b32 v2, 16, v%d" % xr)
        a("v_and_b32 v3, 0xffff0000, v%d" % xr)
        a("v_lshlrev_b32 v4, 16, v%d" % gr)
        a("v_and_b32 v5, 0xffff0000, v%d" % gr)
        a("v_mul_f32 v2, v2, v4")
        a("v_mul_f32 v3, v3, v5")
        a("v_cvt_pk_bf16_f32 v2, v2, v3")
        a("v_lshlrev_b32 v3, 16, v2")
        a("v_and_b32 v2, 0xffff0000, v2")
        a("v_add_f32 v251, v251, v3")
        a("v_add_f32 v251, v251, v2")
    a("""
    s_nop 1
    v_add_f32_dpp v251, v251, v251 quad_perm:[1,0,3,2] row_mask:0xf bank_mask:0xf
    s_nop 1
    v_add_f32_dpp v251, v251, v251 quad_perm:[2,3,0,1] row_mask:0xf bank_mask:0xf
    s_nop 1
    v_add_f32_dpp v251, v251, v251 row_half_mirror row_mask:0xf bank_mask:0xf
    s_nop 1
    v_add_f32_dpp v251, v251, v251 row_mirror row_mask:0xf bank_mask:0xf
    s_nop 1
    ds_swizzle_b32 v2, v251 offset:0x401F
    s_waitcnt lgkmcnt(0)
    v_add_f32 v251, v251, v2
    v_cvt_pk_bf16_f32 v251, v251, v251
    v_lshlrev_b32 v251, 16, v251
    v_mul_f32 v2, 0xbfb8aa3b, v251
    v_exp_f32 v2, v2
    s_nop 0
    v_add_f32 v2, 1.0, v2
    v_rcp_f32 v2, v2
    s_nop 0
    v_cvt_pk_bf16_f32 v2, v2, v2
    v_lshlrev_b32 v251, 16, v2
    """)
    for r in range(128, 240):
        a("v_mov_b32 v%d, 0" % r)
    a("s_cmp_eq_u32 s53, 1")
    a("s_cbranch_scc1 L_s1_%s1" % T)
    for wc in (0, 1):
        if wc == 1:
            a.label("L_s1_%s1" % T)
        stage1_wave(a, typ, wc, nb)

def s1_tiles(typ, wc):
    if typ == 0:
        return [("k", 0), ("k", 1), ("k", 2), ("v", 0), ("v", 1), ("q", 0), ("q", 1)] if wc == 0 else \
               [("k", 3), ("k", 4), ("v", 2), ("v", 3), ("v", 4), ("q", 2), ("q", 3)]
    else:
        return [("q", 0)] + [("h", i) for i in range(6)] if wc == 0 else [("h", i) for i in range(6, 12)]

def s1_reads(typ, tiles, ks, aset, bset):
    L = []
    for ti, (kind, idx) in enumerate(tiles):
        for hh in range(2):
            dst = bset + 4 * ti + 2 * hh
            if typ == 0:
                slot = {"k": 0, "v": 5, "q": 10}[kind] + idx
                base = 114 + (slot & 1)
                off = (32 * ks + 8 * hh) * 448 + slot * 32
            else:
                if kind == "q":
                    base = 118
                    off = (32 * ks + 8 * hh) * 32
                else:
                    base = 114 + (idx & 3)
                    off = (32 * ks + 8 * hh) * 384 + idx * 32
            L.append("ds_read_b64_tr_b16 v[%d:%d], v%d offset:%d" % (dst, dst + 1, base, off))
        if ti < 4:
            L.append("ds_read_b128 %s, v%d offset:%d" % (vr(aset + 4 * ti), 112 + ks, ti * 2048))
    return L

def s1_mfmas(tiles, aset, bset):
    L = []
    for ti, (kind, idx) in enumerate(tiles):
        for rt in range(4):
            acc = 128 + (ti * 4 + rt) * 4
            x = vr(aset + 4 * rt); w = vr(bset + 4 * ti)
            if kind in ("k", "v"):
                L.append("v_mfma_f32_16x16x32_bf16 %s, %s, %s, %s" % (vr(acc), x, w, vr(acc)))
            else:
                L.append("v_mfma_f32_16x16x32_bf16 %s, %s, %s, %s" % (vr(acc), w, x, vr(acc)))
    return L

def s1_setbase(nb):
    L = ["v_add_u32 v112, s58, v105", "v_add_u32 v113, s58, v106"]
    for j in range(nb):
        L.append("v_add_u32 v%d, s58, v%d" % (114 + j, 107 + j))
    return L

def stage1_wave(a, typ, wc, nb):
    T = "AB"[typ] + str(wc)
    tiles = s1_tiles(typ, wc)
    for s in s1_setbase(nb):
        a(s)
    a("s_waitcnt vmcnt(%d)" % (2 * NDMA))
    a("s_barrier")
    for s in s1_reads(typ, tiles, 0, 64, 8):
        a(s)
    a("s_waitcnt lgkmcnt(0)")
    a.label("L_s1_loop_%s" % T)
    interleave(a, s1_mfmas(tiles, 64, 8), s1_reads(typ, tiles, 1, 80, 36))
    a("s_waitcnt lgkmcnt(0)")
    a("s_cmp_ge_u32 s59, 8")
    a("s_cbranch_scc1 L_s1_w0_%s" % T)
    a("s_waitcnt vmcnt(%d)" % NDMA)
    a("s_branch L_s1_w1_%s" % T)
    a.label("L_s1_w0_%s" % T)
    a("s_waitcnt vmcnt(0)")
    a.label("L_s1_w1_%s" % T)
    a("s_barrier")
    a("s_add_u32 s58, s58, %d" % S1_BUF)
    a("s_cmp_eq_u32 s58, %d" % (3 * S1_BUF))
    a("s_cselect_b32 s58, 0, s58")
    for s in s1_setbase(nb):
        a(s)
    a("s_cmp_ge_u32 s59, 7")
    a("s_cbranch_scc1 L_s1_nodma_%s" % T)
    for s in s1_dma(a, typ):
        a(s)
    a.label("L_s1_nodma_%s" % T)
    interleave(a, s1_mfmas(tiles, 80, 36), s1_reads(typ, tiles, 0, 64, 8))
    a("s_waitcnt lgkmcnt(0)")
    a("s_add_u32 s59, s59, 1")
    a("s_cmp_lt_u32 s59, 10")
    a("s_cbranch_scc1 L_s1_loop_%s" % T)
    a("s_nop 7")
    a("s_nop 7")
    a("v_and_b32 v2, 15, v1")
    a("v_lshrrev_b32 v3, 4, v1")
    a("v_and_b32 v4, 31, v1")
    a("v_lshlrev_b32 v5, 2, v250")
    a("v_add_u32 v5, 0x%x, v5" % WS_G)
    a("v_cmp_eq_u32 vcc, 0, v4")
    a("s_and_saveexec_b64 s[72:73], vcc")
    a("buffer_store_dword v251, v5, s[20:23], 0 offen")
    a("s_mov_b64 exec, s[72:73]")
    a("s_lshl_b32 s60, s32, 7")
    a("s_lshl_b32 s63, s52, 6")
    a("s_add_u32 s60, s60, s63")
    for ti, (kind, idx) in enumerate(tiles):
        if kind == "h":
            a("s_mul_i32 s63, s33, 384")
            a("s_add_u32 s63, s63, %d" % (idx * 32))
            a("v_lshlrev_b32 v4, 3, v3")
            a("buffer_load_dwordx2 v[8:9], v4, s[24:27], s63 offen")
            a("v_add_u32 v5, s60, v2")
            a("v_mul_u32_u24 v5, 3072, v5")
            a("v_add_u32 v5, v5, v4")
            a("s_waitcnt vmcnt(0)")
            a("v_lshlrev_b32 v10, 16, v8")
            a("v_and_b32 v11, 0xffff0000, v8")
            a("v_lshlrev_b32 v12, 16, v9")
            a("v_and_b32 v13, 0xffff0000, v9")
            for rt in range(4):
                acc = 128 + (ti * 4 + rt) * 4
                for i in range(4):
                    a("v_add_f32 v%d, v%d, v%d" % (acc + i, acc + i, 10 + i))
                for i in range(4):
                    a("v_max_f32 v%d, 0, v%d" % (acc + i, acc + i))
                for i in range(4):
                    a("v_mul_f32 v%d, v%d, v%d" % (acc + i, acc + i, acc + i))
                a("v_cvt_pk_bf16_f32 v%d, v%d, v%d" % (acc, acc, acc + 1))
                a("v_cvt_pk_bf16_f32 v%d, v%d, v%d" % (acc + 1, acc + 2, acc + 3))
                a("s_add_u32 s64, s63, %d" % (rt * 16 * 3072))
                a("buffer_store_dwordx2 v[%d:%d], v5, s[20:23], s64 offen" % (acc, acc + 1))
        elif kind == "q":
            if typ == 0:
                a("s_lshl_b32 s63, s33, 4")
                a("s_add_u32 s63, s63, %d" % (4 * idx))
            else:
                a("s_lshl_b32 s63, s33, 2")
                a("s_add_u32 s63, s63, 128")
            a("v_add_u32 v4, s63, v3")
            a("v_mul_u32_u24 v5, 205, v4")
            a("v_lshrrev_b32 v5, 10, v5")
            a("v_mul_u32_u24 v6, 5, v5")
            a("v_sub_u32 v6, v4, v6")
            a("v_mul_u32_u24 v5, 768, v5")
            a("v_lshrrev_b32 v7, 1, v6")
            a("v_lshlrev_b32 v7, 8, v7")
            a("v_add_u32 v5, v5, v7")
            a("v_and_b32 v7, 1, v6")
            a("v_lshlrev_b32 v7, 3, v7")
            a("v_add_u32 v5, v5, v7")
            a("v_lshlrev_b32 v7, 4, v2")
            a("v_add_u32 v5, v5, v7")
            a("v_cmp_eq_u32 s[74:75], 4, v6")
            a("v_mov_b32 v10, 0")
            a("v_mov_b32 v11, 0")
            a("s_lshr_b32 s63, s60, 4")
            a("s_mul_i32 s63, s63, %d" % (32 * 768))
            a("s_add_u32 s63, s63, 0x%x" % WS_PQF)
            for rt in range(4):
                acc = 128 + (ti * 4 + rt) * 4
                phi4(a, acc, 12)
                a("v_cvt_pk_bf16_f32 v%d, v%d, v%d" % (acc, acc, acc + 1))
                a("v_cvt_pk_bf16_f32 v%d, v%d, v%d" % (acc + 1, acc + 2, acc + 3))
                a("s_add_u32 s64, s63, %d" % (rt * 32 * 768))
                a("buffer_store_dwordx2 v[%d:%d], v5, s[20:23], s64 offen" % (acc, acc + 1))
                a("s_and_saveexec_b64 s[72:73], s[74:75]")
                a("buffer_store_dwordx2 v[10:11], v5, s[20:23], s64 offen offset:8")
                a("s_mov_b64 exec, s[72:73]")
        else:
            tc0 = 16 * idx + (80 if kind == "v" else 0)
            a("v_mul_u32_u24 v5, 272, v2")
            a("v_lshlrev_b32 v6, 3, v3")
            a("v_add_u32 v5, v5, v6")
            a("s_lshl_b32 s63, s52, 7")
            a("v_add_u32 v5, s63, v5")
            for rt in range(4):
                acc = 128 + (ti * 4 + rt) * 4
                if kind == "k":
                    phi4(a, acc, 12)
                a("v_cvt_pk_bf16_f32 v%d, v%d, v%d" % (acc, acc, acc + 1))
                a("v_cvt_pk_bf16_f32 v%d, v%d, v%d" % (acc + 1, acc + 2, acc + 3))
                a("ds_write_b64 v5, v[%d:%d] offset:%d" % (acc, acc + 1, tc0 * 272 + rt * 32))
    if typ == 0:
        a("s_waitcnt lgkmcnt(0)")
        a("s_barrier")
        a("s_mul_i32 s63, s35, %d" % (20 * 272))
        a("v_mul_u32_u24 v5, 272, v2")
        a("v_lshlrev_b32 v6, 4, v3")
        a("v_add3_u32 v5, v5, v6, s63")
        for ks in range(4):
            b = 8 + 16 * ks
            a("ds_read_b128 %s, v5 offset:%d" % (vr(b), ks * 64))
            a("ds_read_b128 %s, v5 offset:%d" % (vr(b + 4), ks * 64 + 16 * 272))
            a("ds_read_b128 %s, v5 offset:%d" % (vr(b + 8), ks * 64 + 80 * 272))
            a("ds_read_b128 %s, v5 offset:%d" % (vr(b + 12), ks * 64 + 96 * 272))
        a("v_cmp_eq_u32 vcc, 4, v2")
        a("v_mov_b32 v6, 0x3f803f80")
        a("s_waitcnt lgkmcnt(0)")
        for ks in range(4):
            b = 8 + 16 * ks
            for i in range(4):
                a("v_cndmask_b32 v%d, v%d, v6, vcc" % (b + 12 + i, b + 12 + i))
        a("s_nop 1")
        for ks in range(4):
            b = 8 + 16 * ks
            c = lambda r: ("0" if ks == 0 else vr(r))
            a("v_mfma_f32_16x16x32_bf16 v[80:83], %s, %s, %s" % (vr(b), vr(b + 8), c(80)))
            a("v_mfma_f32_16x16x32_bf16 v[84:87], %s, %s, %s" % (vr(b), vr(b + 12), c(84)))
            a("v_mfma_f32_16x16x32_bf16 v[88:91], %s, %s, %s" % (vr(b + 4), vr(b + 8), c(88)))
            a("v_mfma_f32_16x16x32_bf16 v[92:95], %s, %s, %s" % (vr(b + 4), vr(b + 12), c(92)))
        a("s_lshl_b32 s63, s32, 5")
        a("s_lshl_b32 s64, s33, 2")
        a("s_add_u32 s63, s63, s64")
        a("s_add_u32 s63, s63, s35")
        a("s_mul_i32 s63, s63, 1680")
        a("s_add_u32 s63, s63, 0x%x" % WS_P)
        a("v_mul_u32_u24 v5, 80, v2")
        a("v_lshlrev_b32 v6, 4, v3")
        a("v_add_u32 v5, v5, v6")
        a("v_cmp_eq_u32 s[74:75], 0, v3")
        a("v_cmp_gt_u32 s[76:77], 5, v2")
        a("s_nop 7")
        a("buffer_store_dwordx4 v[80:83], v5, s[20:23], s63 offen")
        a("s_and_saveexec_b64 s[72:73], s[74:75]")
        a("buffer_store_dwordx4 v[88:91], v5, s[20:23], s63 offen offset:64")
        a("s_mov_b64 exec, s[76:77]")
        a("buffer_store_dwordx4 v[84:87], v5, s[20:23], s63 offen offset:1280")
        a("s_and_b64 exec, exec, s[74:75]")
        a("buffer_store_dwordx4 v[92:95], v5, s[20:23], s63 offen offset:1344")
        a("s_mov_b64 exec, s[72:73]")
    a("s_endpgm")

def reduce_k(a):
    a.raw(".globl red_kernel\n.p2align 8\n.type red_kernel,@function")
    a.label("red_kernel")
    a("""
    s_cmp_ge_u32 s2, 32
    s_cbranch_scc1 L_red_end
    s_load_dwordx2 s[4:5], s[0:1], 88
    s_waitcnt lgkmcnt(0)
    """)
    srd(a, 8, 4, WS_SIZE)
    a("""
    v_cmp_gt_u32 vcc, 96, v0
    s_and_saveexec_b64 s[20:21], vcc
    s_cbranch_execz L_red_end
    v_cmp_le_u32 vcc, 48, v0
    s_nop 1
    v_cndmask_b32 v1, 0, 1, vcc           ; f
    v_mul_u32_u24 v2, 48, v1
    v_sub_u32 v2, v0, v2                  ; lane'
    v_and_b32 v3, 15, v2                  ; m
    v_lshrrev_b32 v4, 4, v2               ; g'
    s_and_b32 s12, s2, 3                  ; jj
    s_lshl_b32 s13, s12, 2
    s_add_u32 s13, s13, 4
    s_and_b32 s13, s13, 15                ; zrow
    ; e for F1
    v_mov_b32 v5, 0x100000                ; invalid -> huge e
    v_lshrrev_b32 v6, 2, v3
    v_and_b32 v7, 3, v3
    v_add_u32 v7, 16, v7
    v_cmp_eq_u32 vcc, s12, v6
    s_nop 1
    v_cndmask_b32 v5, v5, v7, vcc
    v_mov_b32 v7, 20
    v_cmp_eq_u32 vcc, s13, v3
    s_nop 1
    v_cndmask_b32 v5, v5, v7, vcc
    v_cmp_eq_u32 vcc, 0, v1
    s_nop 1
    v_cndmask_b32 v5, v5, v3, vcc         ; e
    v_mul_u32_u24 v6, 80, v5
    v_lshlrev_b32 v7, 5, v4
    v_add_u32 v6, v6, v7                  ; e*80 + g'*32
    v_add_u32 v7, 16, v6
    v_mov_b32 v8, 0x7000000
    v_cmp_eq_u32 vcc, 2, v4
    s_nop 1
    v_cndmask_b32 v7, v7, v8, vcc         ; second half offset (invalid for g'==2)
    s_mul_i32 s14, s2, 1680
    s_add_u32 s14, s14, 0x%x
    """ % WS_P)
    for rb in range(16):
        a("buffer_load_dwordx4 %s, v6, s[8:11], s14 offen" % vr(16 + 8 * rb))
        a("buffer_load_dwordx4 %s, v7, s[8:11], s14 offen" % vr(20 + 8 * rb))
        if rb < 15:
            a("s_add_u32 s14, s14, %d" % (32 * 1680))
    a("s_waitcnt vmcnt(0)")
    for rb in range(1, 16):
        for i in range(8):
            a("v_add_f32 v%d, v%d, v%d" % (16 + i, 16 + i, 16 + 8 * rb + i))
    for i in range(4):
        a("v_cvt_pk_bf16_f32 v%d, v%d, v%d" % (8 + i, 16 + 2 * i, 17 + 2 * i))
    a("""
    s_mul_i32 s14, s2, 1536
    s_add_u32 s14, s14, 0x%x
    v_lshlrev_b32 v6, 4, v0
    buffer_store_dwordx4 v[8:11], v6, s[8:11], s14 offen
    """ % WS_KVT)
    a.label("L_red_end")
    a("s_endpgm")

def stage2(a):
    a.raw(".globl s2_kernel\n.p2align 8\n.type s2_kernel,@function")
    a.label("s2_kernel")
    a("""
    s_cmp_ge_u32 s2, 220
    s_cbranch_scc1 L_s2_end
    s_load_dwordx2 s[36:37], s[0:1], 16      ; wo
    s_load_dwordx4 s[40:43], s[0:1], 48      ; w2, b2
    s_load_dwordx2 s[44:45], s[0:1], 72      ; out
    s_load_dwordx2 s[46:47], s[0:1], 88      ; ws
    s_and_b32 s48, s2, 7
    s_lshr_b32 s49, s2, 3
    s_lshr_b32 s50, s48, 1                   ; rg
    s_mul_i32 s51, s50, 28
    s_cmp_eq_u32 s50, 3
    s_cselect_b32 s50, 1, 0
    s_sub_u32 s51, s51, s50
    s_add_u32 s51, s51, s49                  ; n
    s_mul_i32 s50, s51, 205
    s_lshr_b32 s50, s50, 10                  ; rb2 = n/5
    s_mul_i32 s52, s50, 5
    s_sub_u32 s52, s51, s52                  ; n%5
    s_and_b32 s53, s48, 1
    s_mul_i32 s53, s53, 5
    s_add_u32 s33, s52, s53                  ; cb
    s_mul_i32 s32, s50, 96
    s_min_u32 s32, s32, 1952                 ; row0
    v_and_b32 v1, 63, v0
    v_lshrrev_b32 v2, 6, v0
    s_nop 0
    v_readfirstlane_b32 s35, v2
    s_waitcnt lgkmcnt(0)
    """)
    srd(a, 8, 46, WS_SIZE)
    srd(a, 12, 40, 1966080)
    srd(a, 16, 36, 819200)
    srd(a, 20, 42, 1280)
    srd(a, 24, 44, 2621440)
    a("""
    s_mul_i32 s54, s35, 40960                ; LDS region
    ; A soffset: row0*3072 + 768*w
    s_mul_i32 s55, s32, 3072
    s_mul_i32 s60, s35, 768
    s_add_u32 s55, s55, s60
    ; B soffset: 384w*1280 + cb*128
    s_mul_i32 s56, s35, %d
    s_lshl_b32 s60, s33, 7
    s_add_u32 s56, s56, s60
    ; voffA
    v_lshrrev_b32 v2, 3, v1                  ; lr
    v_mul_u32_u24 v3, 3072, v2
    v_and_b32 v4, 7, v1
    v_lshrrev_b32 v5, 4, v1
    v_xor_b32 v6, v4, v5
    v_lshlrev_b32 v7, 4, v6
    v_add_u32 v240, v3, v7
    v_xor_b32 v6, 4, v6
    v_lshlrev_b32 v7, 4, v6
    v_add_u32 v241, v3, v7
    ; colpart = ((t' ^ ((l>>4)&3))*2 + (c'&1))*16 = (c' ^ ((l>>4)<<1))*16
    v_lshlrev_b32 v5, 1, v5
    v_xor_b32 v6, v4, v5
    v_lshlrev_b32 v6, 4, v6                  ; colpart
    v_and_b32 v3, 3, v2
    v_lshrrev_b32 v4, 2, v2                  ; lr>>2
    v_lshlrev_b32 v5, 3, v4
    v_add_u32 v5, v5, v3
    v_mul_u32_u24 v5, 1280, v5
    v_add_u32 v242, v5, v6                   ; voffB (w2)
    v_mul_u32_u24 v5, 1280, v2
    v_add_u32 v243, v5, v6                   ; voffWO1
    v_mul_u32_u24 v5, 20, v4
    v_add_u32 v5, v5, v3
    v_mul_u32_u24 v5, 1280, v5
    v_add_u32 v244, v5, v6                   ; voffWO2
    """ % (384 * 1280))
    def dma_b(slot):
        L = ["s_add_u32 s63, s54, %d" % (slot * 20480)]
        for i in range(12):
            L.append("s_add_u32 m0, s63, %d" % (i * 1024))
            L.append("s_add_u32 s64, s55, %d" % (i * 8 * 3072))
            L.append("buffer_load_dwordx4 v%d, s[8:11], s64 offen lds" % (240 + (i & 1)))
        for i in range(8):
            L.append("s_add_u32 m0, s63, %d" % (12288 + i * 1024))
            L.append("s_add_u32 s64, s56, %d" % ((16 * (i >> 1) + 4 * (i & 1)) * 1280))
            L.append("buffer_load_dwordx4 v242, s[12:15], s64 offen lds")
        L.append("s_add_u32 s55, s55, 128")
        L.append("s_add_u32 s56, s56, %d" % (64 * 1280))
        return L
    def dma_wo(slot):
        L = ["s_add_u32 s63, s54, %d" % (slot * 20480)]
        for i in range(20):
            step = i >> 2
            L.append("s_add_u32 m0, s63, %d" % (i * 1024))
            if step < 4:
                row = 20 * (2 * step + (i & 1)) + 8 * ((i >> 1) & 1)
                L.append("s_add_u32 s64, s57, %d" % (row * 1280))
                L.append("buffer_load_dwordx4 v243, s[16:19], s64 offen lds")
            else:
                row = 20 * (4 * (i & 1) + 2 * ((i >> 1) & 1)) + 16
                L.append("s_add_u32 s64, s57, %d" % (row * 1280))
                L.append("buffer_load_dwordx4 v244, s[16:19], s64 offen lds")
        return L
    for s in dma_b(0): a(s)
    for s in dma_b(1): a(s)
    a("""
    s_mul_i32 s57, s35, %d
    s_lshl_b32 s60, s33, 7
    s_add_u32 s57, s57, s60
    ; frag read bases
    v_and_b32 v2, 15, v1             ; m
    v_lshrrev_b32 v3, 4, v1          ; g
    v_lshlrev_b32 v4, 7, v2
    v_add_u32 v4, s54, v4
    v_lshrrev_b32 v5, 1, v2
    v_xor_b32 v5, v5, v3
    v_lshlrev_b32 v6, 4, v5
    v_add_u32 v245, v4, v6
    v_xor_b32 v5, 4, v5
    v_lshlrev_b32 v6, 4, v5
    v_add_u32 v246, v4, v6
    v_lshrrev_b32 v4, 2, v1
    v_and_b32 v4, 3, v4              ; r
    v_and_b32 v5, 3, v1
    v_lshlrev_b32 v5, 3, v5          ; c*8
    v_lshrrev_b32 v6, 1, v3
    v_lshlrev_b32 v6, 4, v6
    v_and_b32 v7, 1, v3
    v_lshlrev_b32 v7, 2, v7
    v_add3_u32 v6, v6, v7, v4        ; pil
    v_lshrrev_b32 v7, 1, v6
    v_and_b32 v7, 3, v7              ; X
    v_lshlrev_b32 v6, 7, v6
    v_add3_u32 v6, v6, v5, s54
    """ % (160 * 1280))
    for t in range(4):
        a("v_xor_b32 v4, %d, v7" % t)
        a("v_lshlrev_b32 v4, 5, v4")
        a("v_add_u32 v%d, v6, v4" % (247 + t))
    for r in range(192):
        a("v_accvgpr_write_b32 a%d, 0" % r)
    def reads(slot, ks, aset, bset):
        L = []
        for t in range(4):
            for hh in range(2):
                L.append("ds_read_b64_tr_b16 v[%d:%d], v%d offset:%d" % (bset + 4 * t + 2 * hh, bset + 4 * t + 2 * hh + 1, 247 + t,
                         slot * 20480 + 12288 + (32 * ks + 8 * hh) * 128))
        for rt in range(6):
            L.append("ds_read_b128 %s, v%d offset:%d" % (vr(aset + 4 * rt), 245 + ks, slot * 20480 + rt * 2048))
        order = [0, 1, 8, 9, 10, 11, 12, 13, 2, 3, 4, 5, 6, 7]
        return [L[i] for i in order]
    def mfmas(accb, aset, bset):
        L = []
        for t in range(4):
            for rt in range(6):
                acc = accb + (t * 6 + rt) * 4
                L.append("v_mfma_f32_16x16x32_bf16 %s, %s, %s, %s" % (ar(acc), vr(bset + 4 * t), vr(aset + 4 * rt), ar(acc)))
        return L
    a("s_waitcnt vmcnt(20)")
    for s in reads(0, 0, 8, 32): a(s)
    a("s_waitcnt lgkmcnt(0)")
    a("s_mov_b32 s59, 0")
    a.label("L_s2_loop")
    for half in range(2):
        slot = half
        interleave(a, mfmas(0, 8, 32), reads(slot, 1, 48, 72))
        a("s_waitcnt lgkmcnt(0)")
        a("s_cmp_eq_u32 s59, 2")
        a("s_cbranch_scc1 L_s2_alt%d" % half)
        for s in dma_b(slot): a(s)
        a("s_branch L_s2_join%d" % half)
        a.label("L_s2_alt%d" % half)
        if half == 0:
            for s in dma_wo(slot): a(s)
        a.label("L_s2_join%d" % half)
        m = mfmas(0, 48, 72)
        for s in m[:8]: a(s)
        if half == 0:
            a("s_waitcnt vmcnt(20)")
        else:
            a("s_waitcnt vmcnt(20)")
        interleave(a, m[8:], reads(slot ^ 1, 0, 8, 32))
        a("s_waitcnt lgkmcnt(0)")
    a("s_add_u32 s59, s59, 1")
    a("s_cmp_lt_u32 s59, 3")
    a("s_cbranch_scc1 L_s2_loop")
    a("v_and_b32 v2, 15, v1")
    a("v_lshrrev_b32 v3, 4, v1")
    for jj in range(4):
        a("v_cmp_eq_u32 s[%d:%d], %d, v2" % (66 + 2 * jj, 67 + 2 * jj, (4 * jj + 4) & 15))
        a("v_cmp_eq_u32 s[%d:%d], %d, v3" % (74 + 2 * jj, 75 + 2 * jj, jj))
    for r in list(range(8, 44)) + list(range(116, 176)):
        a("v_mov_b32 v%d, 0" % r)
    a("v_lshlrev_b32 v4, 4, v1")
    a("v_cmp_gt_u32 s[82:83], 48, v1")
    a("s_lshr_b32 s60, s32, 4")
    a("s_lshl_b32 s60, s60, 5")
    a("s_lshl_b32 s61, s35, 3")
    a("s_add_u32 s60, s60, s61")
    a("s_mul_i32 s60, s60, 768")
    a("s_add_u32 s60, s60, 0x%x" % WS_PQF)
    a("s_mul_i32 s61, s61, 1536")
    a("s_add_u32 s61, s61, 0x%x" % WS_KVT)
    for j in range(8):
        jj = j & 3
        a("s_mov_b64 s[84:85], exec")
        a("s_mov_b64 exec, s[82:83]")
        a("s_add_u32 s62, s61, %d" % (j * 1536))
        a("buffer_load_dwordx4 v[32:35], v4, s[8:11], s62 offen")
        a("buffer_load_dwordx4 v[36:39], v4, s[8:11], s62 offen offset:768")
        for rt in range(6):
            a("s_add_u32 s62, s60, %d" % (j * 768 + rt * 32 * 768))
            a("buffer_load_dwordx4 %s, v4, s[8:11], s62 offen" % vr(8 + 4 * rt))
        a("s_mov_b64 exec, s[84:85]")
        a("s_waitcnt vmcnt(0)")
        for i in range(4):
            a("v_mov_b32_dpp v%d, v%d row_newbcast:%d row_mask:0xf bank_mask:0xf" % (40 + i, 36 + i, (4 * jj + 4) & 15))
        a("s_nop 1")
        for i in range(4):
            a("v_cndmask_b32 v%d, v%d, 0, s[%d:%d]" % (36 + i, 36 + i, 66 + 2 * jj, 67 + 2 * jj))
        a("s_nop 1")
        for rt in range(6):
            t0 = 68 + 8 * rt
            t1 = 116 + ((j >> 2) * 6 + rt) * 4
            pq = vr(8 + 4 * rt)
            a("v_mfma_f32_16x16x32_bf16 %s, v[40:43], %s, 0" % (vr(t0 + 4), pq))
            a("v_mfma_f32_16x16x32_bf16 %s, v[32:35], %s, 0" % (vr(t0), pq))
            a("v_mfma_f32_16x16x32_bf16 %s, v[36:39], %s, %s" % (vr(t1), pq, vr(t1)))
        a("s_nop 7")
        for rt in range(6):
            t0 = 68 + 8 * rt
            a("v_add_f32 v%d, %s, v%d" % (t0 + 4, EPS, t0 + 4))
        for rt in range(6):
            t0 = 68 + 8 * rt
            a("v_rcp_f32 v%d, v%d" % (t0 + 4, t0 + 4))
        a("s_nop 0")
        for rt in range(6):
            t0 = 68 + 8 * rt
            for i in range(4):
                a("v_mul_f32 v%d, v%d, v%d" % (t0 + i, t0 + i, t0 + 4))
            oa = 44 + 4 * rt + 2 * (j & 1)
            a("v_cvt_pk_bf16_f32 v%d, v%d, v%d" % (oa, t0, t0 + 1))
            a("v_cvt_pk_bf16_f32 v%d, v%d, v%d" % (oa + 1, t0 + 2, t0 + 3))
            ds = 164 + (j >> 2) * 6 + rt
            a("v_cndmask_b32 v%d, v%d, v%d, s[%d:%d]" % (ds, ds, t0 + 4, 74 + 2 * jj, 75 + 2 * jj))
        if j & 1:
            step = j >> 1
            for t in range(4):
                for hh in range(2):
                    a("ds_read_b64_tr_b16 v[%d:%d], v%d offset:%d" % (176 + 4 * t + 2 * hh, 177 + 4 * t + 2 * hh, 247 + t, (32 * step + 8 * hh) * 128))
            a("s_waitcnt lgkmcnt(0)")
            for s in mfmas(96, 44, 176): a(s)
    a("s_nop 7")
    for rt in range(6):
        for q in range(2):
            t1 = 116 + (q * 6 + rt) * 4
            ds = 164 + q * 6 + rt
            for i in range(4):
                a("v_mul_f32 v%d, v%d, v%d" % (t1 + i, t1 + i, ds))
            oa = 44 + 4 * rt + 2 * q
            a("v_cvt_pk_bf16_f32 v%d, v%d, v%d" % (oa, t1, t1 + 1))
            a("v_cvt_pk_bf16_f32 v%d, v%d, v%d" % (oa + 1, t1 + 2, t1 + 3))
    for t in range(4):
        for hh in range(2):
            a("ds_read_b64_tr_b16 v[%d:%d], v%d offset:%d" % (176 + 4 * t + 2 * hh, 177 + 4 * t + 2 * hh, 247 + t, (32 * 4 + 8 * hh) * 128))
    a("s_waitcnt lgkmcnt(0)")
    for s in mfmas(96, 44, 176): a(s)
    a("v_add_u32 v4, s32, v2")
    a("v_lshlrev_b32 v4, 2, v4")
    a("v_add_u32 v4, 0x%x, v4" % WS_G)
    for rt in range(6):
        a("buffer_load_dword v%d, v4, s[8:11], 0 offen offset:%d" % (8 + rt, rt * 64))
    a("v_mul_u32_u24 v5, 272, v2")
    a("v_lshlrev_b32 v6, 4, v3")
    a("v_add3_u32 v5, v5, v6, s54")
    a("s_waitcnt vmcnt(0)")
    for rt in range(6):
        a("v_sub_f32 v%d, 1.0, v%d" % (16 + rt, 8 + rt))
        a("v_cvt_pk_bf16_f32 v%d, v%d, v%d" % (16 + rt, 16 + rt, 16 + rt))
        a("v_lshlrev_b32 v%d, 16, v%d" % (16 + rt, 16 + rt))
    a("s_nop 7")
    for t in range(4):
        for rt in range(6):
            accb = (t * 6 + rt) * 4
            acca = 96 + accb
            d = 24 + ((t * 6 + rt) & 3) * 8
            for i in range(4):
                a("v_accvgpr_read_b32 v%d, a%d" % (d + i, accb + i))
                a("v_accvgpr_read_b32 v%d, a%d" % (d + 4 + i, acca + i))
            for i in range(4):
                a("v_mul_f32 v%d, v%d, v%d" % (d + i, d + i, 16 + rt))
            for i in range(4):
                a("v_fmac_f32 v%d, v%d, v%d" % (d + i, d + 4 + i, 8 + rt))
            a("ds_write_b128 v5, %s offset:%d" % (vr(d), rt * 16 * 272 + t * 64))
    a("s_waitcnt lgkmcnt(0)")
    a("s_barrier")
    a("v_lshrrev_b32 v4, 3, v1")
    a("s_mul_i32 s60, s35, 24")
    a("v_add_u32 v4, s60, v4")
    a("v_and_b32 v5, 7, v1")
    a("v_mul_u32_u24 v6, 272, v4")
    a("v_lshlrev_b32 v7, 5, v5")
    a("v_add_u32 v6, v6, v7")
    a("v_add_u32 v4, s32, v4")
    a("v_lshlrev_b32 v7, 2, v4")
    a("v_add_u32 v7, 0x%x, v7" % WS_G)
    for p in range(3):
        a("buffer_load_dword v%d, v7, s[8:11], 0 offen offset:%d" % (8 + p, p * 32))
    a("v_lshlrev_b32 v5, 4, v5")
    a("s_lshl_b32 s60, s33, 7")
    a("buffer_load_dwordx4 v[12:15], v5, s[20:23], s60 offen")
    a("v_mul_u32_u24 v4, 1280, v4")
    a("v_add_u32 v4, v4, v5")
    for p in range(3):
        for w in range(4):
            b = 32 + (p * 4 + w) * 8
            off = w * 40960 + p * 8 * 272
            if off + 16 < 65536:
                a("ds_read_b128 %s, v6 offset:%d" % (vr(b), off))
                a("ds_read_b128 %s, v6 offset:%d" % (vr(b + 4), off + 16))
            else:
                a("v_add_u32 v2, %d, v6" % (w * 40960))
                a("ds_read_b128 %s, v2 offset:%d" % (vr(b), p * 8 * 272))
                a("ds_read_b128 %s, v2 offset:%d" % (vr(b + 4), p * 8 * 272 + 16))
    a("s_waitcnt vmcnt(0) lgkmcnt(0)")
    for i in range(4):
        a("v_lshlrev_b32 v%d, 16, v%d" % (16 + 2 * i, 12 + i))
        a("v_and_b32 v%d, 0xffff0000, v%d" % (17 + 2 * i, 12 + i))
    for p in range(3):
        a("v_sub_f32 v%d, 1.0, v%d" % (8 + p, 8 + p))
        a("v_cvt_pk_bf16_f32 v%d, v%d, v%d" % (8 + p, 8 + p, 8 + p))
        a("v_lshlrev_b32 v%d, 16, v%d" % (8 + p, 8 + p))
        b0 = 32 + p * 32
        for i in range(8):
            a("v_add_f32 v%d, v%d, v%d" % (b0 + i, b0 + i, b0 + 8 + i))
            a("v_add_f32 v%d, v%d, v%d" % (b0 + 16 + i, b0 + 16 + i, b0 + 24 + i))
        for i in range(8):
            a("v_add_f32 v%d, v%d, v%d" % (b0 + i, b0 + i, b0 + 16 + i))
        for i in range(8):
            a("v_fmac_f32 v%d, v%d, v%d" % (b0 + i, 16 + i, 8 + p))
        for i in range(4):
            a("v_cvt_pk_bf16_f32 v%d, v%d, v%d" % (b0 + i, b0 + 2 * i, b0 + 2 * i + 1))
        a("s_add_u32 s61, s60, %d" % (p * 8 * 1280))
        a("buffer_store_dwordx4 %s, v4, s[24:27], s61 offen" % vr(b0))
    a.label("L_s2_end")
    a("s_endpgm")

def kd(name, vgpr, accum, sgpr=96):
    return """.amdhsa_kernel %s
  .amdhsa_next_free_vgpr %d
  .amdhsa_next_free_sgpr %d
  .amdhsa_accum_offset %d
  .amdhsa_group_segment_fixed_size 0
  .amdhsa_kernarg_size 96
  .amdhsa_user_sgpr_count 2
  .amdhsa_user_sgpr_kernarg_segment_ptr 1
  .amdhsa_system_sgpr_workgroup_id_x 1
.end_amdhsa_kernel
""" % (name, vgpr, sgpr, accum)

def main():
    a = Asm()
    hdr = open("cdna_kernels/%s.s.ref" % NAME).read().split("; Override launch")[0]
    out = hdr
    out += "; @launch kernel=s1_kernel grid=(256,1,1) block=(256,1,1) lds=%d\n" % (3 * S1_BUF)
    out += "; @launch kernel=red_kernel grid=(32,1,1) block=(128,1,1) lds=0\n"
    out += "; @launch kernel=s2_kernel grid=(220,1,1) block=(256,1,1) lds=163840\n"
    out += '.amdgcn_target "amdgcn-amd-amdhsa--gfx950"\n.text\n'
    stage1(a)
    reduce_k(a)
    stage2(a)
    out += a.text()
    out += '.section .rodata,"a"\n.p2align 6\n'
    out += kd("s1_kernel", 256, 256)
    out += ".p2align 6\n" + kd("red_kernel", 160, 160)
    out += ".p2align 6\n" + kd("s2_kernel", 448, 256)
    dst = sys.argv[1] if len(sys.argv) > 1 else "cdna_kernels/%s.s" % NAME
    open(dst, "w").write(out)

main()
```

```python
import sys, os

NAME = "gated_mix__linear_attn_block__dense_activation_squared_relu__prompt"

WS_H   = 0x000000
WS_PQF = 0x600000
WS_P   = 0x900000
WS_KVT = 0xA00000
WS_G   = 0xA10000
WS_W2F = 0xC00000
WS_WOF = 0xE00000
WS_SIZE = 0x1000000
STAMP = int(os.environ.get("STAMP", "0"))
WS_STAMP = 0xB00000

class Asm:
    def __init__(self):
        self.L = []
    def __call__(self, s):
        for ln in s.strip("\n").split("\n"):
            if ln.strip():
                self.L.append("  " + ln.strip())
    def label(self, l):
        self.L.append(l + ":")
    def raw(self, s):
        self.L.append(s)
    def text(self):
        return "\n".join(self.L) + "\n"

def vr(b, n=4):
    return "v[%d:%d]" % (b, b + n - 1)

def srd(a, d, lo, size):
    a("s_mov_b32 s%d, s%d" % (d, lo))
    a("s_and_b32 s%d, s%d, 0xffff" % (d + 1, lo + 1))
    a("s_mov_b32 s%d, 0x%x" % (d + 2, size))
    a("s_mov_b32 s%d, 0x00020000" % (d + 3))

def interleave(a, main, side, start=1, every=1):
    side = list(side)
    for i, m in enumerate(main):
        a(m)
        if i >= start - 1 and (i - (start - 1)) % every == 0 and side:
            a(side.pop(0))
    for s in side:
        a(s)

def stamp_start(a):
    if STAMP:
        a("s_memrealtime s[86:87]")
        a("s_waitcnt lgkmcnt(0)")
        a("s_mov_b32 s94, s86")
        stamp(a, 0)
def stamp(a, idx):
    if STAMP:
        a("s_memtime s[86:87]")
        a("s_waitcnt lgkmcnt(0)")
        a("s_mov_b32 s%d, s86" % (88 + idx))
def stamp_flush(a, kern, srdreg, wavereg):
    if STAMP:
        a("s_waitcnt vmcnt(0)")
        stamp(a, 5)
        a("s_memrealtime s[86:87]")
        a("s_waitcnt lgkmcnt(0)")
        a("s_mov_b32 s95, s86")
        a("s_lshl_b32 s86, s2, 3")
        a("s_add_u32 s86, s86, s%d" % wavereg)
        a("s_lshl_b32 s86, s86, 5")
        a("s_add_u32 s86, s86, 0x%x" % (WS_STAMP + kern * 0x10000))
        a("s_mov_b64 exec, 1")
        for i in range(8):
            a("v_mov_b32 v2, s%d" % (88 + i))
            a("v_mov_b32 v3, %d" % (4 * i))
            a("buffer_store_dword v2, v3, s[%d:%d], s86 offen" % (srdreg, srdreg + 3))
        a("s_waitcnt vmcnt(0)")

LOG2E = "0x3fb8aa3b"
EPS = "0x358637bd"

def phi4(a, src, tmp, sl, se):
    for i in (0, 2):
        a("v_pk_mul_f32 v[%d:%d], v[%d:%d], s[%d:%d]" % (tmp + i, tmp + i + 1, src + i, src + i + 1, sl, sl + 1))
    for i in range(4):
        a("v_min_f32 v%d, 0, v%d" % (tmp + i, tmp + i))
    for i in range(4):
        a("v_exp_f32 v%d, v%d" % (tmp + i, tmp + i))
    for i in range(4):
        a("v_max_f32 v%d, 0, v%d" % (src + i, src + i))
    for i in (0, 2):
        a("v_pk_add_f32 v[%d:%d], v[%d:%d], v[%d:%d]" % (src + i, src + i + 1, src + i, src + i + 1, tmp + i, tmp + i + 1))
    for i in (0, 2):
        a("v_pk_add_f32 v[%d:%d], v[%d:%d], s[%d:%d]" % (src + i, src + i + 1, src + i, src + i + 1, se, se + 1))

def swap23_v(a, d, s, t):
    a("v_and_b32 v%d, 3, v%d" % (d, s))
    a("v_and_b32 v%d, 4, v%d" % (t, s))
    a("v_lshlrev_b32 v%d, 1, v%d" % (t, t))
    a("v_or_b32 v%d, v%d, v%d" % (d, d, t))
    a("v_and_b32 v%d, 8, v%d" % (t, s))
    a("v_lshrrev_b32 v%d, 1, v%d" % (t, t))
    a("v_or_b32 v%d, v%d, v%d" % (d, d, t))

S1_BUF = 45056
def stage1(a):
    a.raw(".globl s1_kernel\n.p2align 8\n.type s1_kernel,@function")
    a.label("s1_kernel")
    a("""
    s_cmp_ge_u32 s2, 256
    s_cbranch_scc1 L_s1_end
    """)
    stamp_start(a)
    a("""
    s_load_dwordx4 s[36:39], s[0:1], 0
    s_load_dwordx4 s[40:43], s[0:1], 32
    s_load_dwordx2 s[44:45], s[0:1], 64
    s_load_dwordx2 s[46:47], s[0:1], 88
    s_load_dwordx2 s[66:67], s[0:1], 16
    s_load_dwordx2 s[68:69], s[0:1], 48
    s_load_dwordx2 s[70:71], s[0:1], 80
    s_and_b32 s48, s2, 7
    s_lshr_b32 s49, s2, 3
    s_and_b32 s50, s48, 1
    s_lshl_b32 s50, s50, 3
    s_and_b32 s51, s49, 7
    s_add_u32 s32, s50, s51          ; rb
    s_lshr_b32 s50, s48, 1
    s_lshl_b32 s50, s50, 2
    s_lshr_b32 s51, s49, 3
    s_add_u32 s65, s50, s51          ; cg
    s_and_b32 s34, s65, 1            ; type
    s_lshr_b32 s33, s65, 1           ; jj
    v_and_b32 v1, 63, v0
    v_lshrrev_b32 v2, 6, v0
    s_nop 0
    v_readfirstlane_b32 s35, v2      ; wave
    s_nop 3
    s_lshr_b32 s52, s35, 1           ; wr
    s_and_b32 s53, s35, 1            ; wc
    s_mov_b32 s57, 0
    s_mov_b32 s58, 0
    s_mov_b32 s59, 0
    s_waitcnt lgkmcnt(0)
    """)
    srd(a, 8, 36, 2621440)
    srd(a, 12, 38, 2457600)
    srd(a, 16, 40, 1966080)
    srd(a, 20, 46, WS_SIZE)
    srd(a, 24, 42, 3072)
    srd(a, 28, 44, 1280)
    srd(a, 4, 70, 256)
    a("s_cmp_eq_u32 s35, 4")
    a("s_cbranch_scc1 L_s1_loader")
    a("s_cmp_eq_u32 s35, 5")
    a("s_cbranch_scc1 L_s1_aux")
    a("""
    s_mov_b32 s78, %s
    s_mov_b32 s79, %s
    s_mov_b32 s80, %s
    s_mov_b32 s81, %s
    """ % (LOG2E, LOG2E, EPS, EPS))
    a("""
    v_and_b32 v2, 15, v1             ; m
    v_lshrrev_b32 v3, 4, v1          ; g
    s_lshl_b32 s60, s52, 6
    v_add_u32 v4, s60, v2
    v_lshlrev_b32 v4, 7, v4
    v_lshrrev_b32 v5, 1, v2
    v_xor_b32 v5, v5, v3
    v_lshlrev_b32 v6, 4, v5
    v_add_u32 v105, v4, v6
    v_xor_b32 v5, 4, v5
    v_lshlrev_b32 v6, 4, v5
    v_add_u32 v106, v4, v6
    v_lshrrev_b32 v4, 2, v1
    v_and_b32 v4, 3, v4              ; r
    v_and_b32 v5, 3, v1
    v_lshlrev_b32 v5, 3, v5          ; c*8
    v_lshrrev_b32 v6, 1, v3
    v_lshlrev_b32 v6, 4, v6
    v_and_b32 v7, 1, v3              ; g&1
    v_lshlrev_b32 v2, 2, v7
    v_add3_u32 v6, v6, v2, v4        ; pil
    s_cmp_eq_u32 s34, 1
    s_cbranch_scc1 L_s1_typeB
    """)
    for typ in (0, 1):
        if typ == 1:
            a.label("L_s1_typeB")
        stage1_type(a, typ)
    a.label("L_s1_loader")
    a("s_cmp_eq_u32 s34, 1")
    a("s_cbranch_scc1 L_s1_loaderB")
    stage1_loader(a, 0)
    a.label("L_s1_loaderB")
    stage1_loader(a, 1)
    a.label("L_s1_aux")
    stage1_aux(a)
    a.label("L_s1_end")
    a("s_endpgm")

def stage1_transposer_old(a):
    a("""
    s_lshl_b32 s60, s2, 2
    s_add_u32 s60, s60, s35
    s_cmp_ge_u32 s60, 720
    s_cbranch_scc1 L_s1_tr_done
    s_lshl_b32 s61, s35, 12
    s_add_u32 s61, s61, %d                   ; scratch base
    v_lshrrev_b32 v2, 3, v1                  ; lr
    v_and_b32 v4, 7, v1
    v_lshrrev_b32 v5, 4, v1
    v_lshlrev_b32 v5, 1, v5
    v_xor_b32 v6, v4, v5
    v_lshlrev_b32 v6, 4, v6                  ; colpart
    v_and_b32 v3, 3, v2
    v_lshrrev_b32 v4, 2, v2                  ; lr>>2
    s_cmp_ge_u32 s60, 480
    s_cbranch_scc1 L_s1_tr_wo
    """ % (3 * S1_BUF))
    srd(a, 72, 68, 1966080)
    a("""
    s_mul_i32 s62, s60, 6554
    s_lshr_b32 s62, s62, 16                  ; ks = u/10
    s_mul_i32 s63, s62, 10
    s_sub_u32 s63, s60, s63                  ; cb
    s_mul_i32 s70, s62, %d
    s_lshl_b32 s71, s63, 7
    s_add_u32 s70, s70, s71                  ; src soffset
    s_mul_i32 s71, s62, 40
    s_lshl_b32 s63, s63, 2
    s_add_u32 s71, s71, s63
    s_lshl_b32 s71, s71, 10
    s_add_u32 s71, s71, 0x%x                 ; dst offset
    v_lshlrev_b32 v5, 3, v4
    v_add_u32 v5, v5, v3
    v_mul_u32_u24 v5, 1280, v5
    v_add_u32 v7, v5, v6
    """ % (32 * 1280, WS_W2F))
    for i in range(4):
        a("s_add_u32 m0, s61, %d" % (i * 1024))
        a("s_add_u32 s64, s70, %d" % ((16 * (i >> 1) + 4 * (i & 1)) * 1280))
        a("buffer_load_dwordx4 v7, s[72:75], s64 offen lds")
    a("s_branch L_s1_tr_go")
    a.label("L_s1_tr_wo")
    srd(a, 72, 66, 819200)
    a("""
    s_sub_u32 s60, s60, 480
    s_mul_i32 s62, s60, 6554
    s_lshr_b32 s62, s62, 16                  ; st = u/10 (0..23)
    s_mul_i32 s63, s62, 10
    s_sub_u32 s63, s60, s63                  ; cb
    s_mul_i32 s71, s62, 40
    s_lshl_b32 s64, s63, 2
    s_add_u32 s71, s71, s64
    s_lshl_b32 s71, s71, 10
    s_add_u32 s71, s71, 0x%x                 ; dst offset
    s_mul_i32 s64, s62, 21846
    s_lshr_b32 s64, s64, 16                  ; wg8 = st/3
    s_mul_i32 s70, s64, 3
    s_sub_u32 s62, s62, s70                  ; step = st%%3
    s_mul_i32 s70, s64, %d                   ; 80*wg8 rows
    s_lshl_b32 s63, s63, 7
    s_add_u32 s70, s70, s63
    s_cmp_eq_u32 s62, 2
    s_cbranch_scc1 L_s1_tr_wo2
    s_mul_i32 s62, s62, %d                   ; 40 rows per pair step
    s_add_u32 s70, s70, s62
    v_mul_u32_u24 v5, 1280, v2
    v_add_u32 v7, v5, v6
    """ % (WS_WOF, 80 * 1280, 40 * 1280))
    for i in range(4):
        row = 20 * (i & 1) + 8 * ((i >> 1) & 1)
        a("s_add_u32 m0, s61, %d" % (i * 1024))
        a("s_add_u32 s64, s70, %d" % (row * 1280))
        a("buffer_load_dwordx4 v7, s[72:75], s64 offen lds")
    a("s_branch L_s1_tr_go")
    a.label("L_s1_tr_wo2")
    a("""
    v_mul_u32_u24 v5, 20, v4
    v_add_u32 v5, v5, v3
    v_mul_u32_u24 v5, 1280, v5
    v_add_u32 v7, v5, v6
    """)
    for i in range(4):
        row = 20 * (2 * ((i >> 1) & 1)) + 16
        a("s_add_u32 m0, s61, %d" % (i * 1024))
        a("s_add_u32 s64, s70, %d" % (row * 1280))
        a("buffer_load_dwordx4 v7, s[72:75], s64 offen lds")
    a.label("L_s1_tr_go")
    a("""
    v_lshrrev_b32 v3, 4, v1
    v_lshrrev_b32 v4, 2, v1
    v_and_b32 v4, 3, v4
    v_and_b32 v5, 3, v1
    v_lshlrev_b32 v5, 3, v5
    v_lshrrev_b32 v6, 1, v3
    v_lshlrev_b32 v6, 4, v6
    v_and_b32 v7, 1, v3
    v_lshlrev_b32 v7, 2, v7
    v_add3_u32 v6, v6, v7, v4
    v_lshrrev_b32 v7, 1, v6
    v_and_b32 v7, 3, v7
    v_lshlrev_b32 v6, 7, v6
    v_add3_u32 v6, v6, v5, s61
    v_lshlrev_b32 v2, 4, v1
    s_waitcnt vmcnt(0)
    """)
    for t in range(4):
        a("v_xor_b32 v4, %d, v7" % t)
        a("v_lshl_add_u32 v4, v4, 5, v6")
        a("ds_read_b64_tr_b16 v[%d:%d], v4" % (8 + 4 * t, 9 + 4 * t))
        a("ds_read_b64_tr_b16 v[%d:%d], v4 offset:1024" % (10 + 4 * t, 11 + 4 * t))
    a("s_waitcnt lgkmcnt(0)")
    for t in range(4):
        a("buffer_store_dwordx4 %s, v2, s[20:23], s71 offen offset:%d" % (vr(8 + 4 * t), t * 1024))
    a("s_nop 1")
    a.label("L_s1_tr_done")


def stage1_aux(a):
    SCR = 3 * S1_BUF
    a("""
    s_lshr_b32 s60, s2, 6                    ; cg_local
    s_lshl_b32 s60, s60, 5
    s_lshl_b32 s61, s32, 7
    s_add_u32 s60, s60, s61
    v_add_u32 v2, s60, v1
    v_mul_u32_u24 v252, 1280, v2
    v_mov_b32 v3, 0x7f000000
    v_cmp_gt_u32 vcc, 32, v1
    s_and_b32 s60, s49, 7                    ; rb_local
    s_lshl_b32 s60, s60, 3
    v_cndmask_b32 v252, v3, v252, vcc
    v_and_b32 v4, 7, v1
    v_add_u32 v4, s60, v4
    v_lshrrev_b32 v5, 3, v1
    s_cmp_eq_u32 s34, 1
    s_cbranch_scc1 L_s1_pfsB
    v_mul_u32_u24 v4, 3840, v4
    s_mul_i32 s61, s33, 160
    s_and_b32 s61, s61, 0xffffff80
    s_add_u32 s61, s61, 1280
    v_and_b32 v6, 1, v5
    v_lshlrev_b32 v6, 7, v6
    v_lshrrev_b32 v7, 1, v5
    v_mul_u32_u24 v7, 1280, v7
    v_add3_u32 v6, v6, v7, s61               ; lines 0..3: k,k+128,v,v+128
    s_lshl_b32 s62, s33, 7
    v_mov_b32 v7, s62
    v_cmp_eq_u32 vcc, 4, v5
    s_nop 1
    v_cndmask_b32 v6, v6, v7, vcc
    v_add_u32 v253, v4, v6
    v_cmp_gt_u32 vcc, 5, v5
    s_nop 1
    v_cndmask_b32 v253, v3, v253, vcc
    v_mov_b32 v254, v3
    s_branch L_s1_pfs_done
    """)
    a.label("L_s1_pfsB")
    a("""
    v_mul_u32_u24 v6, 3072, v4
    s_mul_i32 s61, s33, 384
    v_lshlrev_b32 v7, 7, v5
    v_add3_u32 v254, v6, v7, s61
    v_cmp_gt_u32 vcc, 3, v5
    v_mul_u32_u24 v6, 3840, v4
    s_lshl_b32 s61, s33, 5
    s_add_u32 s61, s61, 1024
    v_cndmask_b32 v254, v3, v254, vcc
    v_add_u32 v253, s61, v6
    v_cmp_gt_u32 vcc, 1, v5
    s_nop 1
    v_cndmask_b32 v253, v3, v253, vcc
    """)
    a.label("L_s1_pfs_done")
    def pf(st):
        if st > 9: return
        a("s_mov_b32 s64, %d" % (st * 128))
        a("buffer_load_dword v100, v252, s[8:11], s64 offen")
        a("s_mov_b32 s64, %d" % (st * 64 * 3840))
        a("buffer_load_dword v100, v253, s[12:15], s64 offen")
        a("s_mov_b32 s64, %d" % (st * 64 * 3072))
        a("buffer_load_dword v100, v254, s[16:19], s64 offen")
    a.pf = pf
    pf(3); pf(4); pf(5)
    srd(a, 72, 68, 1966080)
    srd(a, 76, 66, 819200)
    a("""
    v_lshrrev_b32 v2, 3, v1                  ; lr
    v_and_b32 v4, 7, v1
    v_lshrrev_b32 v5, 4, v1
    v_lshlrev_b32 v5, 1, v5
    v_xor_b32 v6, v4, v5
    v_lshlrev_b32 v6, 4, v6                  ; colpart
    v_and_b32 v3, 3, v2
    v_lshrrev_b32 v4, 2, v2                  ; lr>>2
    v_lshlrev_b32 v5, 3, v4
    v_add_u32 v5, v5, v3
    v_mul_u32_u24 v5, 1280, v5
    v_add_u32 v7, v5, v6                     ; voff w2
    v_mul_u32_u24 v5, 1280, v2
    v_add_u32 v8, v5, v6
    v_mul_u32_u24 v5, 20, v4
    v_add_u32 v5, v5, v3
    v_mul_u32_u24 v5, 1280, v5
    v_add_u32 v9, v5, v6
    """)
    for n in range(3):
        D = 82 + n
        a("s_mul_i32 s60, s2, 3")
        a("s_add_u32 s60, s60, %d" % n)
        a("s_mov_b32 s%d, -1" % D)
        a("s_cmp_ge_u32 s60, 680")
        a("s_cbranch_scc1 L_s1_tr_done%d" % n)
        a("s_cmp_ge_u32 s60, 480")
        a("s_cbranch_scc1 L_s1_tr_wo%d" % n)
        a("""
        s_mul_i32 s62, s60, 6554
        s_lshr_b32 s62, s62, 16
        s_mul_i32 s63, s62, 10
        s_sub_u32 s63, s60, s63
        s_mul_i32 s70, s62, %d
        s_lshl_b32 s71, s63, 7
        s_add_u32 s70, s70, s71
        s_mul_i32 s71, s62, 40
        s_lshl_b32 s63, s63, 2
        s_add_u32 s71, s71, s63
        s_lshl_b32 s71, s71, 10
        s_add_u32 s%d, s71, 0x%x
        """ % (32 * 1280, D, WS_W2F))
        for i in range(4):
            a("s_mov_b32 m0, %d" % (SCR + n * 4096 + i * 1024))
            a("s_add_u32 s64, s70, %d" % ((16 * (i >> 1) + 4 * (i & 1)) * 1280))
            a("buffer_load_dwordx4 v7, s[72:75], s64 offen lds")
        a("s_branch L_s1_tr_done%d" % n)
        a.label("L_s1_tr_wo%d" % n)
        a("""
        s_sub_u32 s60, s60, 480
        s_mul_i32 s62, s60, 6554
        s_lshr_b32 s62, s62, 16
        s_mul_i32 s63, s62, 10
        s_sub_u32 s63, s60, s63
        s_mul_i32 s71, s62, 40
        s_lshl_b32 s64, s63, 2
        s_add_u32 s71, s71, s64
        s_lshl_b32 s71, s71, 10
        s_add_u32 s%d, s71, 0x%x
        s_mul_i32 s64, s62, 13108
        s_lshr_b32 s64, s64, 16
        s_mul_i32 s70, s64, 5
        s_sub_u32 s62, s62, s70
        s_mul_i32 s70, s64, %d
        s_lshl_b32 s63, s63, 7
        s_add_u32 s70, s70, s63
        s_cmp_eq_u32 s62, 4
        s_cbranch_scc1 L_s1_tr_wl%d
        s_mul_i32 s62, s62, %d
        s_add_u32 s70, s70, s62
        """ % (D, WS_WOF, 160 * 1280, n, 40 * 1280))
        for i in range(4):
            row = 20 * (i & 1) + 8 * ((i >> 1) & 1)
            a("s_mov_b32 m0, %d" % (SCR + n * 4096 + i * 1024))
            a("s_add_u32 s64, s70, %d" % (row * 1280))
            a("buffer_load_dwordx4 v8, s[76:79], s64 offen lds")
        a("s_branch L_s1_tr_done%d" % n)
        a.label("L_s1_tr_wl%d" % n)
        for i in range(4):
            row = 20 * (4 * (i & 1) + 2 * ((i >> 1) & 1)) + 16
            a("s_mov_b32 m0, %d" % (SCR + n * 4096 + i * 1024))
            a("s_add_u32 s64, s70, %d" % (row * 1280))
            a("buffer_load_dwordx4 v9, s[76:79], s64 offen lds")
        a.label("L_s1_tr_done%d" % n)
    a("""
    s_lshl_b32 s60, s32, 7
    s_lshl_b32 s61, s65, 3
    s_add_u32 s60, s60, s61
    v_lshrrev_b32 v2, 5, v1
    v_add_u32 v2, s60, v2
    v_mov_b32 v250, v2
    v_mul_u32_u24 v2, 1280, v2
    v_and_b32 v3, 31, v1
    v_mul_u32_u24 v3, 40, v3
    v_add_u32 v2, v2, v3
    buffer_load_dwordx4 v[20:23], v3, s[28:31], 0 offen
    buffer_load_dwordx4 v[24:27], v3, s[28:31], 0 offen offset:16
    buffer_load_dwordx2 v[28:29], v3, s[28:31], 0 offen offset:32
    """)
    for p in range(4):
        b = 32 + 12 * p
        a("s_mov_b32 s64, %d" % (p * 2560))
        a("buffer_load_dwordx4 %s, v2, s[8:11], s64 offen" % vr(b))
        a("buffer_load_dwordx4 %s, v2, s[8:11], s64 offen offset:16" % vr(b + 4))
        a("buffer_load_dwordx2 v[%d:%d], v2, s[8:11], s64 offen offset:32" % (b + 8, b + 9))
    a("s_barrier")
    a.pf(6)
    a("s_barrier")
    a.pf(7)
    a("s_barrier")
    a.pf(8)
    a("s_waitcnt vmcnt(9)")
    a("""
    v_lshrrev_b32 v3, 4, v1
    v_lshrrev_b32 v4, 2, v1
    v_and_b32 v4, 3, v4
    v_and_b32 v5, 3, v1
    v_lshlrev_b32 v5, 3, v5
    v_lshrrev_b32 v6, 1, v3
    v_lshlrev_b32 v6, 4, v6
    v_and_b32 v7, 1, v3
    v_lshlrev_b32 v7, 2, v7
    v_add3_u32 v6, v6, v7, v4
    v_lshrrev_b32 v7, 1, v6
    v_and_b32 v7, 3, v7
    v_lshlrev_b32 v6, 7, v6
    v_add_u32 v6, v6, v5
    v_add_u32 v6, %d, v6
    v_lshlrev_b32 v2, 4, v1
    """ % SCR)
    for t in range(4):
        a("v_xor_b32 v4, %d, v7" % t)
        a("v_lshl_add_u32 v%d, v4, 5, v6" % (10 + t))
    for n in range(3):
        for t in range(4):
            b = 104 + 16 * n + 4 * t
            a("ds_read_b64_tr_b16 v[%d:%d], v%d offset:%d" % (b, b + 1, 10 + t, n * 4096))
            a("ds_read_b64_tr_b16 v[%d:%d], v%d offset:%d" % (b + 2, b + 3, 10 + t, n * 4096 + 1024))
    a("s_waitcnt lgkmcnt(0)")
    for n in range(3):
        a("s_cmp_eq_u32 s%d, -1" % (82 + n))
        a("s_cbranch_scc1 L_s1_tr_skip%d" % n)
        for t in range(4):
            a("buffer_store_dwordx4 %s, v2, s[20:23], s%d offen offset:%d" % (vr(104 + 16 * n + 4 * t), 82 + n, t * 1024))
        a.label("L_s1_tr_skip%d" % n)
    a("s_barrier")
    a.pf(9)
    for i in range(10):
        a("v_lshlrev_b32 v%d, 16, v%d" % (160 + 2 * i, 20 + i))
        a("v_and_b32 v%d, 0xffff0000, v%d" % (161 + 2 * i, 20 + i))
    for p in range(4):
        b = 32 + 12 * p
        acc = 240 + p
        a("v_mov_b32 v%d, 0" % acc)
        for i in range(10):
            a("v_lshlrev_b32 v2, 16, v%d" % (b + i))
            a("v_and_b32 v3, 0xffff0000, v%d" % (b + i))
            a("v_pk_mul_f32 v[2:3], v[2:3], v[%d:%d]" % (160 + 2 * i, 161 + 2 * i))
            a("v_cvt_pk_bf16_f32 v2, v2, v3")
            a("v_lshlrev_b32 v3, 16, v2")
            a("v_and_b32 v2, 0xffff0000, v2")
            a("v_add_f32 v%d, v%d, v3" % (acc, acc))
            a("v_add_f32 v%d, v%d, v2" % (acc, acc))
        if p < 3:
            a("s_barrier")
    for mode in ("quad_perm:[1,0,3,2]", "quad_perm:[2,3,0,1]", "row_half_mirror", "row_mirror"):
        for p in range(4):
            a("v_add_f32_dpp v%d, v%d, v%d %s row_mask:0xf bank_mask:0xf" % (240 + p, 240 + p, 240 + p, mode))
        a("s_nop 0")
    for p in range(4):
        a("ds_swizzle_b32 v%d, v%d offset:0x401F" % (244 + p, 240 + p))
    a("s_waitcnt lgkmcnt(0)")
    for p in range(4):
        r = 240 + p
        a("v_add_f32 v%d, v%d, v%d" % (r, r, 244 + p))
        a("v_cvt_pk_bf16_f32 v%d, v%d, v%d" % (r, r, r))
        a("v_lshlrev_b32 v%d, 16, v%d" % (r, r))
        a("v_mul_f32 v%d, 0xbfb8aa3b, v%d" % (r, r))
        a("v_exp_f32 v%d, v%d" % (r, r))
        a("s_nop 0")
        a("v_add_f32 v%d, 1.0, v%d" % (r, r))
        a("v_rcp_f32 v%d, v%d" % (r, r))
        a("s_nop 0")
        a("v_cvt_pk_bf16_f32 v%d, v%d, v%d" % (r, r, r))
        a("v_lshlrev_b32 v%d, 16, v%d" % (r, r))
    a("""
    v_and_b32 v4, 31, v1
    v_lshlrev_b32 v5, 2, v250
    v_add_u32 v5, 0x%x, v5
    v_cmp_eq_u32 vcc, 0, v4
    s_and_saveexec_b64 s[60:61], vcc
    """ % WS_G)
    for p in range(4):
        a("buffer_store_dword v%d, v5, s[20:23], 0 offen offset:%d" % (240 + p, p * 8))
    a("s_mov_b64 exec, s[60:61]")
    for i in range(4):
        a("s_barrier")
    a("s_endpgm")


def stage1_lastarriver(a, T):
    a("""
    s_waitcnt vmcnt(0)
    s_barrier
    s_cmp_lg_u32 s35, 0
    s_cbranch_scc1 L_s1_la_wait_%s
    v_mov_b32 v4, 1
    s_lshl_b32 s63, s33, 2
    v_mov_b32 v5, s63
    s_mov_b64 s[72:73], exec
    s_mov_b64 exec, 1
    buffer_atomic_add v4, v5, s[4:7], 0 offen sc0 sc1
    s_waitcnt vmcnt(0)
    v_mov_b32 v5, 0x%x
    ds_write_b32 v5, v4
    s_waitcnt lgkmcnt(0)
    s_mov_b64 exec, s[72:73]
    """ % (T, 3 * S1_BUF + 12288))
    a.label("L_s1_la_wait_%s" % T)
    a("""
    s_barrier
    v_mov_b32 v5, 0x%x
    ds_read_b32 v4, v5
    s_waitcnt lgkmcnt(0)
    v_readfirstlane_b32 s63, v4
    s_nop 3
    s_cmp_lg_u32 s63, 15
    s_cbranch_scc1 L_s1_la_done_%s
    ; ---- reduce head h = 4jj + w : lane t<63: e=t/3, g'=t%%3
    v_mul_u32_u24 v4, 171, v1
    v_lshrrev_b32 v4, 9, v4                  ; e
    v_mul_u32_u24 v5, 3, v4
    v_sub_u32 v5, v1, v5                     ; g'
    v_mul_u32_u24 v6, 80, v4
    v_lshl_add_u32 v6, v5, 5, v6
    v_add_u32 v7, 16, v6
    v_mov_b32 v8, 0x7000000
    v_cmp_eq_u32 vcc, 2, v5
    s_lshl_b32 s64, s33, 2
    s_add_u32 s64, s64, s35                  ; head
    s_mul_i32 s66, s64, 1680
    s_add_u32 s66, s66, 0x%x
    v_cndmask_b32 v7, v7, v8, vcc
    v_cmp_gt_u32 vcc, 63, v1
    s_and_saveexec_b64 s[72:73], vcc
    """ % (3 * S1_BUF + 12288, T, WS_P))
    for rb in range(16):
        a("buffer_load_dwordx4 %s, v6, s[20:23], s66 offen sc1" % vr(16 + 8 * rb))
        a("buffer_load_dwordx4 %s, v7, s[20:23], s66 offen sc1" % vr(20 + 8 * rb))
        if rb < 15:
            a("s_add_u32 s66, s66, %d" % (32 * 1680))
    a("""
    s_lshl_b32 s67, s35, 2
    s_sub_u32 s68, s67, 16
    v_add_u32 v8, s68, v4                    ; 4w + e - 16
    v_and_b32 v8, 15, v8
    v_add_u32 v8, 48, v8                     ; +768/16
    v_cmp_gt_u32 vcc, 16, v4
    s_mul_i32 s66, s64, 1536
    s_add_u32 s66, s66, 0x%x
    v_cndmask_b32 v8, v8, v4, vcc
    v_lshlrev_b32 v8, 4, v8
    v_lshl_add_u32 v8, v5, 8, v8
    """ % WS_KVT)
    for rb in range(1, 16):
        a("s_waitcnt vmcnt(%d)" % (30 - 2 * rb))
        for i in range(0, 8, 2):
            a("v_pk_add_f32 v[%d:%d], v[%d:%d], v[%d:%d]" % (16 + i, 17 + i, 16 + i, 17 + i, 16 + 8 * rb + i, 17 + 8 * rb + i))
    for i in range(4):
        a("v_cvt_pk_bf16_f32 v%d, v%d, v%d" % (12 + i, 16 + 2 * i, 17 + 2 * i))
    a("buffer_store_dwordx4 v[12:15], v8, s[20:23], s66 offen")
    a("s_mov_b64 exec, s[72:73]")
    a.label("L_s1_la_done_%s" % T)

def s1_dma(typ):
    L = []
    for i in range(16):
        L.append("s_add_u32 m0, s57, %d" % (i * 1024))
        L.append("s_add_u32 s64, s54, %d" % (i * 10240))
        L.append("buffer_load_dwordx4 v%d, s[8:11], s64 offen lds" % (96 + (i & 1)))
    if typ == 0:
        for i in range(28):
            L.append("s_add_u32 m0, s57, %d" % (16384 + i * 1024))
            L.append("s_add_u32 s64, s55, %d" % ((i // 7) * 16 * 3840))
            L.append("buffer_load_dwordx4 v%d, s[12:15], s64 offen lds" % (98 + i % 7))
    else:
        for i in range(24):
            L.append("s_add_u32 m0, s57, %d" % (16384 + i * 1024))
            L.append("s_add_u32 s64, s56, %d" % ((i // 6) * 16 * 3072))
            L.append("buffer_load_dwordx4 v%d, s[16:19], s64 offen lds" % (98 + i % 6))
        for i in range(2):
            L.append("s_add_u32 m0, s57, %d" % (16384 + 24576 + i * 1024))
            L.append("s_add_u32 s64, s55, %d" % (i * 32 * 3840))
            L.append("buffer_load_dwordx4 v104, s[12:15], s64 offen lds")
    L.append("s_add_u32 s54, s54, 128")
    L.append("s_add_u32 s55, s55, %d" % (64 * 3840))
    L.append("s_add_u32 s56, s56, %d" % (64 * 3072))
    L.append("s_add_u32 s57, s57, %d" % S1_BUF)
    L.append("s_cmp_eq_u32 s57, %d" % (3 * S1_BUF))
    L.append("s_cselect_b32 s57, 0, s57")
    L.append("s_add_u32 s74, s74, 1")
    L.append("s_cmp_eq_u32 s74, 10")
    L.append("s_cselect_b32 s75, 1280, 0")
    L.append("s_cselect_b32 s55, 0, s55")
    L.append("s_cselect_b32 s56, 0, s56")
    L.append("s_sub_u32 s54, s54, s75")
    return L

def stage1_loader(a, typ):
    T = "AB"[typ]
    N = 44 if typ == 0 else 42
    a("""
    v_lshrrev_b32 v2, 3, v1
    v_mul_u32_u24 v2, 1280, v2
    v_and_b32 v3, 7, v1
    v_lshrrev_b32 v4, 4, v1
    v_xor_b32 v5, v3, v4
    v_lshlrev_b32 v6, 4, v5
    v_add_u32 v96, v2, v6
    v_xor_b32 v5, 4, v5
    v_lshlrev_b32 v6, 4, v5
    v_add_u32 v97, v2, v6
    s_lshl_b32 s60, s32, 7
    s_mul_i32 s54, s60, 1280
    s_and_b32 s60, s49, 7                    ; rb_local
    s_lshr_b32 s61, s2, 6                    ; cg_local
    s_mul_i32 s61, s61, 3
    s_add_u32 s60, s60, s61                  ; 0..16
    s_cmp_ge_u32 s60, 10
    s_cselect_b32 s61, 10, 0
    s_mov_b32 s74, 0                         ; start stage (stagger disabled)
    s_lshl_b32 s60, s74, 7
    s_add_u32 s54, s54, s60
    s_mul_i32 s55, s74, %d
    s_mul_i32 s56, s74, %d
    """ % (64 * 3840, 64 * 3072))
    if typ == 0:
        C = 28
        a("s_mov_b32 s67, %d" % ((2**32 + C - 1) // C))
        a("s_mul_i32 s68, s33, 160")
        a("s_add_u32 s69, s68, 1280")
        a("s_add_u32 s70, s68, %d" % (2560 - 160))
        a("s_lshl_b32 s71, s33, 7")
        a("s_sub_u32 s71, s71, 320")
        a("v_mov_b32 v8, s69")
        a("v_mov_b32 v9, s70")
        a("v_mov_b32 v10, s71")
        for i in range(7):
            a("v_add_u32 v2, %d, v1" % (64 * i))
            a("v_mul_hi_u32 v3, v2, s67")
            a("v_mul_u32_u24 v4, %d, v3" % C)
            a("v_sub_u32 v4, v2, v4")
            a("v_and_b32 v5, 4, v3")
            a("v_lshrrev_b32 v5, 1, v5")
            a("v_xor_b32 v4, v4, v5")
            a("v_cmp_gt_u32 vcc, 10, v4")
            a("v_cmp_gt_u32 s[72:73], 20, v4")
            swap23_v(a, 5, 3, 6)
            a("v_mul_u32_u24 v5, 3840, v5")
            a("v_cndmask_b32 v6, v9, v8, vcc")
            a("v_cndmask_b32 v6, v10, v6, s[72:73]")
            a("v_lshlrev_b32 v4, 4, v4")
            a("v_add3_u32 v%d, v5, v6, v4" % (98 + i))
    else:
        C = 24
        a("s_mov_b32 s67, %d" % ((2**32 + C - 1) // C))
        a("s_mul_i32 s68, s33, 384")
        for i in range(6):
            a("v_add_u32 v2, %d, v1" % (64 * i))
            a("v_mul_hi_u32 v3, v2, s67")
            a("v_mul_u32_u24 v4, %d, v3" % C)
            a("v_sub_u32 v4, v2, v4")
            a("v_and_b32 v5, 6, v3")
            a("v_xor_b32 v4, v4, v5")
            swap23_v(a, 5, 3, 6)
            a("v_mul_u32_u24 v5, 3072, v5")
            a("v_lshlrev_b32 v4, 4, v4")
            a("v_add3_u32 v%d, v5, s68, v4" % (98 + i))
        a("v_lshrrev_b32 v2, 1, v1")
        a("v_and_b32 v3, 15, v2")
        swap23_v(a, 5, 3, 6)
        a("v_and_b32 v3, 16, v2")
        a("v_add_u32 v5, v5, v3")
        a("v_mul_u32_u24 v5, 3840, v5")
        a("v_and_b32 v4, 1, v1")
        a("v_lshlrev_b32 v4, 4, v4")
        a("s_lshl_b32 s68, s33, 5")
        a("s_add_u32 s68, s68, 1024")
        a("v_add3_u32 v104, v5, s68, v4")
    stamp(a, 1)
    a.label("L_s1_ld_%s" % T)
    for s in s1_dma(typ):
        a(s)
    a("s_add_u32 s59, s59, 1")
    a("s_cmp_eq_u32 s59, 1")
    a("s_cbranch_scc1 L_s1_ld_%s" % T)
    a("s_waitcnt vmcnt(%d)" % N)
    a("s_barrier")
    a("s_cmp_lt_u32 s59, 10")
    a("s_cbranch_scc1 L_s1_ld_%s" % T)
    a("s_waitcnt vmcnt(0)")
    a("s_barrier")
    a("s_barrier")
    stamp(a, 2); stamp(a, 3); stamp(a, 4)
    stamp_flush(a, 0, 20, 35)
    a("s_endpgm")

def stage1_type(a, typ):
    T = "AB"[typ]
    if typ == 0:
        a("""
        v_mul_u32_u24 v2, 448, v6
        v_add_u32 v2, v2, v5
        v_add_u32 v2, 16384, v2
        v_lshlrev_b32 v7, 5, v7
        v_add_u32 v107, v2, v7
        v_sub_u32 v108, v2, v7
        """)
        nb = 2
    else:
        a("""
        v_mul_u32_u24 v2, 384, v6
        v_add_u32 v2, v2, v5
        v_add_u32 v2, 16384, v2
        v_lshrrev_b32 v7, 1, v6
        v_and_b32 v7, 3, v7
        """)
        for j in range(4):
            a("v_xor_b32 v3, %d, v7" % j)
            a("v_subrev_u32 v3, %d, v3" % j)
            a("v_lshlrev_b32 v3, 5, v3")
            a("v_add_u32 v%d, v2, v3" % (107 + j))
        a("v_lshlrev_b32 v2, 5, v6")
        a("v_add_u32 v2, v2, v5")
        a("v_add_u32 v111, %d, v2" % (16384 + 24576))
        nb = 5
        a("s_mul_i32 s63, s33, 384")
        a("s_mul_i32 s64, s53, 192")
        a("s_add_u32 s63, s63, s64")
        a("v_lshrrev_b32 v3, 4, v1")
        a("v_lshlrev_b32 v4, 3, v3")
        for i in range(6):
            a("buffer_load_dwordx2 v[%d:%d], v4, s[24:27], s63 offen offset:%d" % (32 + 2 * i, 33 + 2 * i, 32 * i))
    a("s_cmp_eq_u32 s53, 1")
    a("s_cbranch_scc1 L_s1_%s1" % T)
    for wc in (0, 1):
        if wc == 1:
            a.label("L_s1_%s1" % T)
        stage1_wave(a, typ, wc, nb)

def s1_tiles(typ, wc):
    if typ == 0:
        return [("k", 0), ("k", 1), ("k", 2), ("v", 0), ("v", 1), ("q", 0), ("q", 1)] if wc == 0 else \
               [("k", 3), ("k", 4), ("v", 2), ("v", 3), ("v", 4), ("q", 2), ("q", 3)]
    else:
        return [("h", i) for i in range(6)] + [("q", 0)] if wc == 0 else [("h", i) for i in range(6, 12)]

def s1_reads(typ, tiles, ks, aset, bset):
    L = []
    for ti, (kind, idx) in enumerate(tiles):
        for hh in range(2):
            dst = bset + 4 * ti + 2 * hh
            if typ == 0:
                slot = {"k": 0, "v": 5, "q": 10}[kind] + idx
                base = 114 + (slot & 1)
                off = (32 * ks + 8 * hh) * 448 + slot * 32
            else:
                if kind == "q":
                    base = 118
                    off = (32 * ks + 8 * hh) * 32
                else:
                    base = 114 + (idx & 3)
                    off = (32 * ks + 8 * hh) * 384 + idx * 32
            L.append("ds_read_b64_tr_b16 v[%d:%d], v%d offset:%d" % (dst, dst + 1, base, off))
        if ti == 0:
            for rt in range(4):
                L.append("ds_read_b128 %s, v%d offset:%d" % (vr(aset + 4 * rt), 112 + ks, rt * 2048))
    return L

def s1_mfmas(tiles, aset, bset):
    L = []
    for ti, (kind, idx) in enumerate(tiles):
        for rt in range(4):
            acc = 128 + (ti * 4 + rt) * 4
            x = vr(aset + 4 * rt); w = vr(bset + 4 * ti)
            if kind in ("k", "v"):
                L.append("v_mfma_f32_16x16x32_bf16 %s, %s, %s, %s" % (vr(acc), x, w, vr(acc)))
            else:
                L.append("v_mfma_f32_16x16x32_bf16 %s, %s, %s, %s" % (vr(acc), w, x, vr(acc)))
    return L

def s1_setbase(nb):
    L = ["v_add_u32 v112, s58, v105", "v_add_u32 v113, s58, v106"]
    for j in range(nb):
        L.append("v_add_u32 v%d, s58, v%d" % (114 + j, 107 + j))
    return L

def stage1_wave(a, typ, wc, nb):
    T = "AB"[typ] + str(wc)
    tiles = s1_tiles(typ, wc)
    if typ == 1:
        a("s_waitcnt vmcnt(0)")
    for ti, (kind, idx) in enumerate(tiles):
        acc = 128 + (ti * 4) * 4
        if kind == "h":
            b = 32 + 2 * (idx % 6)
            a("v_lshlrev_b32 v%d, 16, v%d" % (acc, b))
            a("v_and_b32 v%d, 0xffff0000, v%d" % (acc + 1, b))
            a("v_lshlrev_b32 v%d, 16, v%d" % (acc + 2, b + 1))
            a("v_and_b32 v%d, 0xffff0000, v%d" % (acc + 3, b + 1))
            for rt in range(1, 4):
                for i in (0, 2):
                    a("v_pk_mov_b32 v[%d:%d], v[%d:%d], v[%d:%d] op_sel:[0,1]" % (acc + 4 * rt + i, acc + 4 * rt + i + 1, acc + i, acc + i + 1, acc + i, acc + i + 1))
        else:
            for r in range(0, 16, 2):
                a("v_pk_mov_b32 v[%d:%d], 0, 0" % (acc + r, acc + r + 1))
    for s in s1_setbase(nb):
        a(s)
    stamp(a, 1)
    a("s_barrier")
    for s in s1_reads(typ, tiles, 0, 64, 8):
        a(s)
    a("s_waitcnt lgkmcnt(0)")
    stamp(a, 2)
    a.label("L_s1_loop_%s" % T)
    interleave(a, s1_mfmas(tiles, 64, 8), s1_reads(typ, tiles, 1, 80, 36))
    a("s_add_u32 s58, s58, %d" % S1_BUF)
    a("s_cmp_eq_u32 s58, %d" % (3 * S1_BUF))
    a("s_cselect_b32 s58, 0, s58")
    a("s_waitcnt lgkmcnt(0)")
    a("s_barrier")
    m = s1_mfmas(tiles, 80, 36)
    interleave(a, m, s1_setbase(nb) + s1_reads(typ, tiles, 0, 64, 8))
    a("s_add_u32 s59, s59, 1")
    a("s_cmp_lt_u32 s59, 10")
    a("s_waitcnt lgkmcnt(0)")
    a("s_cbranch_scc1 L_s1_loop_%s" % T)
    stamp(a, 3)
    a("v_and_b32 v2, 15, v1")
    a("v_lshrrev_b32 v3, 4, v1")
    a("s_lshl_b32 s60, s32, 7")
    a("s_lshl_b32 s63, s52, 6")
    a("s_add_u32 s60, s60, s63")
    first_h = True; first_kv = True
    for ti, (kind, idx) in enumerate(tiles):
        if kind == "h":
            if first_h:
                a("v_and_b32 v4, 1, v3")
                a("v_mul_u32_u24 v4, 192, v4")
                a("v_lshrrev_b32 v5, 1, v3")
                a("v_add_u32 v4, v4, v5")
                a("v_lshlrev_b32 v4, 8, v4")
                a("v_lshl_add_u32 v5, v2, 4, v4")
                a("s_lshr_b32 s63, s60, 4")
                a("s_mul_i32 s63, s63, 192")
                a("s_mul_i32 s64, s33, 24")
                a("s_add_u32 s63, s63, s64")
                a("s_add_u32 s63, s63, %d" % (12 * wc))
                a("s_lshl_b32 s63, s63, 8")
                a("s_add_u32 s66, s63, %d" % (2 * 192 * 256))
                first_h = False
            for p in range(2):
                accA = 128 + (ti * 4 + 2 * p) * 4
                accB = accA + 4
                for i in range(8):
                    a("v_max_f32 v%d, 0, v%d" % (accA + i, accA + i))
                for i in range(0, 8, 2):
                    a("v_pk_mul_f32 v[%d:%d], v[%d:%d], v[%d:%d]" % (accA + i, accA + i + 1, accA + i, accA + i + 1, accA + i, accA + i + 1))
                a("v_cvt_pk_bf16_f32 v%d, v%d, v%d" % (accA, accA, accA + 1))
                a("v_cvt_pk_bf16_f32 v%d, v%d, v%d" % (accA + 1, accA + 2, accA + 3))
                a("v_cvt_pk_bf16_f32 v%d, v%d, v%d" % (accA + 2, accB, accB + 1))
                a("v_cvt_pk_bf16_f32 v%d, v%d, v%d" % (accA + 3, accB + 2, accB + 3))
                a("s_nop 1")
                a("v_permlane16_swap_b32 v%d, v%d" % (accA, accA + 2))
                a("v_permlane16_swap_b32 v%d, v%d" % (accA + 1, accA + 3))
                a("buffer_store_dwordx4 %s, v5, s[20:23], s%d offen offset:%d" % (vr(accA), [63, 66][p], (idx % 6) * 512))
        elif kind == "q":
            if typ == 0:
                a("s_lshl_b32 s63, s33, 4")
                a("s_add_u32 s63, s63, %d" % (4 * idx))
            else:
                a("s_lshl_b32 s63, s33, 2")
                a("s_add_u32 s63, s63, 128")
            a("s_lshr_b32 s64, s60, 4")
            a("s_mul_i32 s64, s64, 160")
            a("s_add_u32 s63, s63, s64")
            a("s_lshl_b32 s63, s63, 7")
            a("s_add_u32 s63, s63, 0x%x" % WS_PQF)
            a("v_lshlrev_b32 v7, 3, v1")
            for rt in range(4):
                acc = 128 + (ti * 4 + rt) * 4
                phi4(a, acc, 12, 78, 80)
                a("v_cvt_pk_bf16_f32 v%d, v%d, v%d" % (acc, acc, acc + 1))
                a("v_cvt_pk_bf16_f32 v%d, v%d, v%d" % (acc + 1, acc + 2, acc + 3))
                a("s_add_u32 s64, s63, %d" % (rt * 160 * 128))
                a("buffer_store_dwordx2 v[%d:%d], v7, s[20:23], s64 offen" % (acc, acc + 1))
        else:
            tc0 = 16 * idx + (80 if kind == "v" else 0)
            if first_kv:
                a("v_mul_u32_u24 v5, 272, v2")
                a("v_lshlrev_b32 v6, 3, v3")
                a("s_lshl_b32 s63, s52, 7")
                a("v_add3_u32 v5, v5, v6, s63")
                first_kv = False
            for rt in range(4):
                acc = 128 + (ti * 4 + rt) * 4
                if kind == "k":
                    phi4(a, acc, 12, 78, 80)
                a("v_cvt_pk_bf16_f32 v%d, v%d, v%d" % (acc, acc, acc + 1))
                a("v_cvt_pk_bf16_f32 v%d, v%d, v%d" % (acc + 1, acc + 2, acc + 3))
                a("ds_write_b64 v5, v[%d:%d] offset:%d" % (acc, acc + 1, tc0 * 272 + rt * 32))
            if ti == 4:
                a("s_waitcnt lgkmcnt(0)")
                a("s_barrier")
                a("s_mul_i32 s63, s35, %d" % (20 * 272))
                a("v_mul_u32_u24 v5, 272, v2")
                a("v_lshlrev_b32 v6, 4, v3")
                a("v_add3_u32 v5, v5, v6, s63")
                for ks in range(4):
                    b = 16 + 16 * ks
                    a("ds_read_b128 %s, v5 offset:%d" % (vr(b), ks * 64))
                    a("ds_read_b128 %s, v5 offset:%d" % (vr(b + 4), ks * 64 + 16 * 272))
                    a("ds_read_b128 %s, v5 offset:%d" % (vr(b + 8), ks * 64 + 80 * 272))
                    a("ds_read_b128 %s, v5 offset:%d" % (vr(b + 12), ks * 64 + 96 * 272))
                a("v_cmp_eq_u32 vcc, 4, v2")
                a("v_mov_b32 v6, 0x3f803f80")
                a("s_waitcnt lgkmcnt(0)")
                for ks in range(4):
                    b = 16 + 16 * ks
                    for i in range(4):
                        a("v_cndmask_b32 v%d, v%d, v6, vcc" % (b + 12 + i, b + 12 + i))
                a("s_nop 1")
                for ks in range(4):
                    b = 16 + 16 * ks
                    c = lambda r: ("0" if ks == 0 else vr(r))
                    a("v_mfma_f32_16x16x32_bf16 v[80:83], %s, %s, %s" % (vr(b), vr(b + 8), c(80)))
                    a("v_mfma_f32_16x16x32_bf16 v[84:87], %s, %s, %s" % (vr(b), vr(b + 12), c(84)))
                    a("v_mfma_f32_16x16x32_bf16 v[88:91], %s, %s, %s" % (vr(b + 4), vr(b + 8), c(88)))
                    a("v_mfma_f32_16x16x32_bf16 v[92:95], %s, %s, %s" % (vr(b + 4), vr(b + 12), c(92)))
                a("s_lshl_b32 s63, s32, 5")
                a("s_lshl_b32 s64, s33, 2")
                a("s_add_u32 s63, s63, s64")
                a("s_add_u32 s63, s63, s35")
                a("s_mul_i32 s63, s63, 1680")
                a("s_add_u32 s63, s63, 0x%x" % WS_P)
                a("v_mul_u32_u24 v5, 80, v2")
                a("v_lshlrev_b32 v6, 4, v3")
                a("v_add_u32 v5, v5, v6")
                a("v_cmp_eq_u32 s[74:75], 0, v3")
                a("v_cmp_gt_u32 s[76:77], 5, v2")
                a("s_nop 7")
                a("buffer_store_dwordx4 v[80:83], v5, s[20:23], s63 offen")
                a("s_and_saveexec_b64 s[72:73], s[74:75]")
                a("buffer_store_dwordx4 v[88:91], v5, s[20:23], s63 offen offset:64")
                a("s_mov_b64 exec, s[76:77]")
                a("buffer_store_dwordx4 v[84:87], v5, s[20:23], s63 offen offset:1280")
                a("s_and_b64 exec, exec, s[74:75]")
                a("buffer_store_dwordx4 v[92:95], v5, s[20:23], s63 offen offset:1344")
                a("s_mov_b64 exec, s[72:73]")

    stamp(a, 4)
    stamp_flush(a, 0, 20, 35)
    a("s_endpgm")

def stage2(a):
    a.raw(".globl s2_kernel\n.p2align 8\n.type s2_kernel,@function")
    a.label("s2_kernel")
    a("""
    s_cmp_ge_u32 s2, 252
    s_cbranch_scc1 L_s2_end
    s_mov_b32 s3, s2
    s_sub_u32 s2, s2, 32
    """)
    stamp_start(a)
    a("""
    s_load_dwordx2 s[42:43], s[0:1], 56      ; b2
    s_load_dwordx4 s[44:47], s[0:1], 72
    s_load_dwordx2 s[38:39], s[0:1], 88      ; ws
    s_and_b32 s48, s2, 7
    s_lshr_b32 s49, s2, 3
    s_lshr_b32 s50, s48, 1
    s_mul_i32 s51, s50, 28
    s_cmp_eq_u32 s50, 3
    s_cselect_b32 s50, 1, 0
    s_sub_u32 s51, s51, s50
    s_add_u32 s51, s51, s49
    s_mul_i32 s50, s51, 205
    s_lshr_b32 s50, s50, 10
    s_mul_i32 s52, s50, 5
    s_sub_u32 s52, s51, s52
    s_and_b32 s53, s48, 1
    s_mul_i32 s53, s53, 5
    s_add_u32 s33, s52, s53                  ; cb
    s_mul_i32 s32, s50, 96
    s_min_u32 s32, s32, 1952                 ; row0
    v_and_b32 v1, 63, v0
    v_lshrrev_b32 v2, 6, v0
    v_lshlrev_b32 v4, 4, v1                  ; lane*16
    v_readfirstlane_b32 s35, v2
    s_waitcnt lgkmcnt(0)
    """)
    srd(a, 8, 38, WS_SIZE)
    srd(a, 20, 42, 1280)
    srd(a, 24, 44, 2621440)
    srd(a, 28, 46, 256)
    ACC = 128
    def mfmas(aset, bset):
        L = []
        for t in range(4):
            for rt in range(6):
                acc = ACC + (t * 6 + rt) * 4
                L.append("v_mfma_f32_16x16x32_bf16 %s, %s, %s, %s" % (vr(acc), vr(bset + 4 * t), vr(aset + 4 * rt), vr(acc)))
        return L
    a("""
    s_cmp_lt_u32 s3, 32
    s_cbranch_scc1 L_s2_red
    s_lshr_b32 s34, s32, 4                   ; rt0
    v_and_b32 v2, 15, v1
    v_lshrrev_b32 v3, 4, v1
    v_add_u32 v5, s32, v2
    v_lshlrev_b32 v5, 2, v5
    v_add_u32 v5, 0x%x, v5
    s_cmp_ge_u32 s35, 4
    s_cbranch_scc1 L_s2_awave
    """ % WS_G)
    a("""
    s_mul_i32 s55, s34, 192
    s_mul_i32 s60, s35, 48
    s_add_u32 s55, s55, s60
    s_lshl_b32 s55, s55, 8                   ; A soffset = (rt0*192 + 48w)*256
    s_mul_i32 s56, s35, 480
    s_lshl_b32 s60, s33, 2
    s_add_u32 s56, s56, s60
    s_lshl_b32 s56, s56, 10
    s_add_u32 s56, s56, 0x%x                 ; B soffset = W2F + (12w*40 + 4cb)*1024
    """ % WS_W2F)
    for rt in range(6):
        a("v_add_u32 v%d, %d, v4" % (224 + rt, rt * 49152))
    SETS = [(8, 32), (48, 72), (88, 112)]
    def loads(st):
        A, B = SETS[st]
        L = []
        L.append("buffer_load_dwordx4 %s, v4, s[8:11], s56 offen" % vr(B))
        for rt in range(6):
            L.append("buffer_load_dwordx4 %s, v%d, s[8:11], s55 offen" % (vr(A + 4 * rt), 224 + rt))
        for t in range(1, 4):
            L.append("buffer_load_dwordx4 %s, v4, s[8:11], s56 offen offset:%d" % (vr(B + 4 * t), t * 1024))
        L.append("s_add_u32 s55, s55, 1024")
        L.append("s_add_u32 s56, s56, %d" % (40 * 1024))
        return L
    GR = [232, 233, 234, 235, 236, 237]
    for rt in range(6):
        a("buffer_load_dword v%d, v5, s[8:11], 0 offen offset:%d" % (GR[rt], rt * 64))
    for s in loads(0): a(s)
    for s in loads(1): a(s)
    stamp(a, 1)
    for r in range(0, 96, 2):
        a("v_pk_mov_b32 v[%d:%d], 0, 0" % (ACC + r, ACC + r + 1))
    a("s_mov_b32 s59, 0")
    stamp(a, 2)
    a.label("L_s2_bloop")
    for st in range(3):
        a("s_waitcnt vmcnt(10)")
        A, B = SETS[st]
        interleave(a, mfmas(A, B), loads((st + 2) % 3), start=1, every=2)
    a("s_add_u32 s59, s59, 1")
    a("s_cmp_lt_u32 s59, 3")
    a("s_cbranch_scc1 L_s2_bloop")
    a("s_mul_i32 s57, s35, 200")
    a("s_lshl_b32 s60, s33, 2")
    a("s_add_u32 s57, s57, s60")
    a("s_lshl_b32 s57, s57, 10")
    a("s_add_u32 s57, s57, 0x%x" % WS_WOF)
    def wl(step):
        L = []
        for t in range(4):
            L.append("buffer_load_dwordx4 %s, v4, s[8:11], s57 offen offset:%d" % (vr(8 + 16 * step + 4 * t), t * 1024))
        L.append("s_add_u32 s57, s57, %d" % (40 * 1024))
        return L
    a("s_waitcnt vmcnt(10)")
    interleave(a, mfmas(*SETS[0]), loads(2), start=1, every=2)
    a("s_waitcnt vmcnt(10)")
    interleave(a, mfmas(*SETS[1]), wl(0) + wl(1), start=1, every=2)
    a("s_waitcnt vmcnt(8)")
    interleave(a, mfmas(*SETS[2]), wl(2) + wl(3) + wl(4), start=1, every=1)
    stamp(a, 3)
    for rt in range(6):
        a("v_sub_f32 v%d, 1.0, v%d" % (112 + 2 * rt, GR[rt]))
        a("v_cvt_pk_bf16_f32 v%d, v%d, v%d" % (112 + 2 * rt, 112 + 2 * rt, 112 + 2 * rt))
        a("v_lshlrev_b32 v%d, 16, v%d" % (112 + 2 * rt, 112 + 2 * rt))
    a("s_mul_i32 s60, s35, 30720")
    a("v_add_u32 v5, s60, v4")
    a("s_barrier")
    AB = [88, 224]
    def oreads(step):
        return ["ds_read_b128 %s, v5 offset:%d" % (vr(AB[step & 1] + 4 * rt), rt * 5120 + step * 1024) for rt in range(6)]
    for s in oreads(0): a(s)
    for t in range(4):
        for rt in range(6):
            acc = ACC + (t * 6 + rt) * 4
            for i in (0, 2):
                a("v_pk_mul_f32 v[%d:%d], v[%d:%d], v[%d:%d] op_sel_hi:[1,0]" % (acc + i, acc + i + 1, acc + i, acc + i + 1, 112 + 2 * rt, 113 + 2 * rt))
    for step in range(5):
        a("s_waitcnt vmcnt(%d) lgkmcnt(0)" % (16 - 4 * step))
        interleave(a, mfmas(AB[step & 1], 8 + 16 * step), oreads(step + 1) if step < 4 else [], start=2, every=2)
    stamp(a, 4)
    a("v_and_b32 v2, 15, v1")
    a("v_lshrrev_b32 v3, 4, v1")
    a("s_lshl_b32 s60, s33, 7")
    a("s_lshl_b32 s61, s35, 5")
    a("s_add_u32 s60, s60, s61")
    a("v_lshlrev_b32 v6, 3, v3")
    a("buffer_load_dwordx2 v[8:9], v6, s[20:23], s60 offen")
    a("s_barrier")
    for w in range(4):
        a("s_cmp_lg_u32 s35, %d" % w)
        a("s_cbranch_scc1 L_s2_fw%d" % w)
        for t in range(4):
            if t == w: continue
            si = w if w < t else w - 1
            for rt in range(6):
                off = (t * 3 + si) * 6144 + rt * 1024
                if off < 65536:
                    a("ds_write_b128 v4, %s offset:%d" % (vr(ACC + (t * 6 + rt) * 4), off))
                else:
                    if rt == 0 or (t * 3 + si) * 6144 + (rt - 1) * 1024 < 65536:
                        a("v_add_u32 v7, 0x10000, v4")
                    a("ds_write_b128 v7, %s offset:%d" % (vr(ACC + (t * 6 + rt) * 4), off - 65536))
        for rt in range(6):
            for i in (0, 2):
                src = ACC + (w * 6 + rt) * 4 + i
                a("v_pk_mov_b32 v[%d:%d], v[%d:%d], v[%d:%d] op_sel:[0,1]" % (16 + 4 * rt + i, 17 + 4 * rt + i, src, src + 1, src, src + 1))
        a.label("L_s2_fw%d" % w)
    a("s_mul_i32 s61, s35, %d" % (3 * 6144))
    a("v_add_u32 v7, s61, v4")
    a("s_waitcnt lgkmcnt(0)")
    a("s_barrier")
    for si in range(3):
        for rt in range(6):
            a("ds_read_b128 %s, v7 offset:%d" % (vr(40 + (si * 6 + rt) * 4), si * 6144 + rt * 1024))
    a("v_and_b32 v6, 1, v3")
    a("v_lshl_add_u32 v6, v6, 4, v2")
    a("v_add_u32 v6, s32, v6")
    a("v_mul_u32_u24 v6, 1280, v6")
    a("v_lshrrev_b32 v5, 1, v3")
    a("v_lshl_add_u32 v6, v5, 4, v6")
    a("s_waitcnt vmcnt(0)")
    a("v_lshlrev_b32 v10, 16, v8")
    a("v_and_b32 v11, 0xffff0000, v8")
    a("v_lshlrev_b32 v12, 16, v9")
    a("v_and_b32 v13, 0xffff0000, v9")
    for rt in range(6):
        o = 16 + 4 * rt
        for i in (0, 2):
            a("v_pk_fma_f32 v[%d:%d], v[%d:%d], v[%d:%d], v[%d:%d] op_sel_hi:[1,0,1]" % (o + i, o + i + 1, 10 + i, 11 + i, 112 + 2 * rt, 113 + 2 * rt, o + i, o + i + 1))
    for si in range(3):
        a("s_waitcnt lgkmcnt(%d)" % (12 - 6 * si))
        for rt in range(6):
            o = 16 + 4 * rt; q = 40 + (si * 6 + rt) * 4
            for i in (0, 2):
                a("v_pk_add_f32 v[%d:%d], v[%d:%d], v[%d:%d]" % (o + i, o + i + 1, o + i, o + i + 1, q + i, q + i + 1))
    for p in range(3):
        A_, B_ = 16 + 8 * p, 20 + 8 * p
        a("v_cvt_pk_bf16_f32 v%d, v%d, v%d" % (A_, A_, A_ + 1))
        a("v_cvt_pk_bf16_f32 v%d, v%d, v%d" % (A_ + 1, A_ + 2, A_ + 3))
        a("v_cvt_pk_bf16_f32 v%d, v%d, v%d" % (A_ + 2, B_, B_ + 1))
        a("v_cvt_pk_bf16_f32 v%d, v%d, v%d" % (A_ + 3, B_ + 2, B_ + 3))
        a("s_add_u32 s62, s60, %d" % (p * 32 * 1280))
        a("s_nop 0")
        a("v_permlane16_swap_b32 v%d, v%d" % (A_, A_ + 2))
        a("v_permlane16_swap_b32 v%d, v%d" % (A_ + 1, A_ + 3))
        a("buffer_store_dwordx4 %s, v6, s[24:27], s62 offen" % vr(A_))
    stamp_flush(a, 2, 8, 35)
    a("s_endpgm")
    a.label("L_s2_awave")
    a("s_setprio 2")
    F, PQB, Z, OA, RY, T1 = 8, [40, 64], 88, 112, 136, 184
    G = [92, 93, 94, 95, 96, 97]
    DS = 98
    a("""
    s_sub_u32 s58, s35, 4                    ; aw
    s_mul_i32 s54, s58, 30720
    s_mul_i32 s60, s34, 160
    s_mul_i32 s61, s58, 40
    s_add_u32 s60, s60, s61
    s_lshl_b32 s60, s60, 7
    s_add_u32 s60, s60, 0x%x
    """ % WS_PQF)
    a("v_cmp_gt_u32 s[82:83], 48, v1")
    a("v_cmp_gt_u32 s[84:85], 32, v1")
    a("s_lshl_b32 s61, s58, 3")
    a("s_mul_i32 s61, s61, 1536")
    a("s_add_u32 s61, s61, 0x%x" % WS_KVT)
    for r in range(8, 40, 2):
        a("v_pk_mov_b32 v[%d:%d], 0, 0" % (r, r + 1))
    def pqreads(j):
        P = PQB[j & 1]
        a("s_mov_b64 exec, s[82:83]")
        for rt in range(6):
            a("ds_read_b64 v[%d:%d], v6 offset:%d" % (P + 4 * rt, P + 4 * rt + 1, rt * 5120 + j * 640))
        a("s_mov_b64 exec, s[84:85]")
        for rt in range(6):
            a("ds_read_b64 v[%d:%d], v6 offset:%d" % (P + 4 * rt + 2, P + 4 * rt + 3, rt * 5120 + j * 640 + 128))
        a("s_mov_b64 exec, -1")
    def fload(j):
        a("s_mov_b64 exec, s[82:83]")
        a("buffer_load_dwordx4 %s, v4, s[8:11], s61 offen sc1" % vr(F + 8 * (j & 3)))
        a("buffer_load_dwordx4 %s, v4, s[8:11], s61 offen offset:768 sc1" % vr(F + 8 * (j & 3) + 4))
        a("s_mov_b64 exec, -1")
        a("s_add_u32 s61, s61, 1536")
    for rt in range(6):
        a("buffer_load_dword v%d, v5, s[8:11], 0 offen offset:%d" % (G[rt], rt * 64))
    for i in range(5):
        for rt in range(6):
            a("s_add_u32 m0, s54, %d" % (rt * 5120 + i * 1024))
            a("s_add_u32 s64, s60, %d" % (rt * 160 * 128 + i * 1024))
            a("buffer_load_dwordx4 v4, s[8:11], s64 offen lds")
    stamp(a, 1)
    a("v_lshrrev_b32 v0, 2, v2")
    for jj in range(4):
        a("v_cmp_ne_u32 s[%d:%d], %d, v0" % (66 + 2 * jj, 67 + 2 * jj, jj))
        a("v_cmp_eq_u32 s[%d:%d], %d, v3" % (74 + 2 * jj, 75 + 2 * jj, jj))
    a("v_lshlrev_b32 v6, 8, v3")
    a("v_lshl_add_u32 v6, v2, 3, v6")
    a("v_add_u32 v6, s54, v6")
    a("v_add_u32 v7, s54, v4")
    for r in list(range(40, 88, 2)) + list(range(98, 110, 2)) + list(range(T1, T1 + 48, 2)):
        a("v_pk_mov_b32 v[%d:%d], 0, 0" % (r, r + 1))
    for i in range(4):
        a("v_mov_b32 v%d, %s" % (232 + i, EPS))
    a("s_lshl_b32 s62, s58, 6")
    a("v_mov_b32 v1, s62")
    a("s_mov_b32 s63, 0")
    a.label("L_s2_poll")
    a("buffer_load_dword v0, v1, s[28:31], 0 offen sc1")
    a("s_waitcnt vmcnt(0)")
    a("v_readfirstlane_b32 s62, v0")
    a("s_add_u32 s63, s63, 1")
    a("s_cmp_ge_u32 s62, 8")
    a("s_cbranch_scc1 L_s2_ready")
    a("s_cmp_ge_u32 s63, 100000")
    a("s_cbranch_scc1 L_s2_ready")
    a("s_sleep 8")
    a("s_branch L_s2_poll")
    a.label("L_s2_ready")
    stamp(a, 2)
    for j in range(4):
        fload(j)
    pqreads(0)
    for j in range(8):
        jj = j & 3
        f0, f1 = F + 8 * jj, F + 8 * jj + 4
        P = PQB[j & 1]
        a("s_waitcnt vmcnt(%d)" % [6, 6, 6, 6, 6, 4, 2, 0][j])
        for i in range(4):
            a("v_mov_b32_dpp v%d, v%d row_newbcast:%d row_mask:0xf bank_mask:0xf" % (Z + i, f1 + i, (4 * jj + 4) & 15))
        a("s_nop 0")
        for i in range(4):
            a("v_cndmask_b32 v%d, v%d, 0, s[%d:%d]" % (f1 + i, f1 + i, 66 + 2 * jj, 67 + 2 * jj))
        a("s_waitcnt lgkmcnt(0)")
        if j < 7:
            pqreads(j + 1)
        else:
            a("s_nop 0")
        for rt in range(6):
            a("v_mfma_f32_16x16x32_bf16 %s, %s, %s, v[232:235]" % (vr(RY + 8 * rt + 4), vr(Z), vr(P + 4 * rt)))
        for rt in range(6):
            a("v_mfma_f32_16x16x32_bf16 %s, %s, %s, 0" % (vr(RY + 8 * rt), vr(f0), vr(P + 4 * rt)))
        for rt in range(6):
            t1 = T1 + ((j >> 2) * 6 + rt) * 4
            a("v_mfma_f32_16x16x32_bf16 %s, %s, %s, %s" % (vr(t1), vr(f1), vr(P + 4 * rt), vr(t1)))
            a("v_rcp_f32 v%d, v%d" % (RY + 8 * rt + 4, RY + 8 * rt + 4))
        if j < 4:
            fload(j + 4)
        else:
            a("s_nop 0")
        for rt in range(6):
            a("v_mul_f32 v%d, v%d, v%d" % (RY + 8 * rt + 4, RY + 8 * rt + 4, G[rt]))
        for rt in range(6):
            t0 = RY + 8 * rt
            for i in (0, 2):
                a("v_pk_mul_f32 v[%d:%d], v[%d:%d], v[%d:%d] op_sel_hi:[1,0]" % (t0 + i, t0 + i + 1, t0 + i, t0 + i + 1, t0 + 4, t0 + 5))
            oa = OA + 4 * rt + 2 * (j & 1)
            a("v_cvt_pk_bf16_f32 v%d, v%d, v%d" % (oa, t0, t0 + 1))
            a("v_cvt_pk_bf16_f32 v%d, v%d, v%d" % (oa + 1, t0 + 2, t0 + 3))
            ds = DS + (j >> 2) * 6 + rt
            a("v_cndmask_b32 v%d, v%d, v%d, s[%d:%d]" % (ds, ds, t0 + 4, 74 + 2 * jj, 75 + 2 * jj))
        if j & 1:
            a("s_waitcnt lgkmcnt(0)")
            for rt in range(6):
                a("ds_write_b128 v7, %s offset:%d" % (vr(OA + 4 * rt), rt * 5120 + (j >> 1) * 1024))
    for rt in range(6):
        for q in range(2):
            t1 = T1 + (q * 6 + rt) * 4
            ds = DS + q * 6 + rt
            for i in range(4):
                a("v_mul_f32 v%d, v%d, v%d" % (t1 + i, t1 + i, ds))
            oa = RY + 4 * rt + 2 * q
            a("v_cvt_pk_bf16_f32 v%d, v%d, v%d" % (oa, t1, t1 + 1))
            a("v_cvt_pk_bf16_f32 v%d, v%d, v%d" % (oa + 1, t1 + 2, t1 + 3))
        a("ds_write_b128 v7, %s offset:%d" % (vr(RY + 4 * rt), rt * 5120 + 4096))
    stamp(a, 3)
    stamp(a, 4)
    a("s_waitcnt lgkmcnt(0)")
    a("s_barrier")
    stamp_flush(a, 2, 8, 35)
    a("s_endpgm")
    a.label("L_s2_red")
    a("""
    s_cmp_lg_u32 s35, 0
    s_cbranch_scc1 L_s2_end
    v_mul_u32_u24 v4, 171, v1
    v_lshrrev_b32 v4, 9, v4                  ; e
    v_mul_u32_u24 v5, 3, v4
    v_sub_u32 v5, v1, v5                     ; g'
    v_mul_u32_u24 v6, 80, v4
    v_lshl_add_u32 v6, v5, 5, v6
    v_add_u32 v7, 16, v6
    v_mov_b32 v8, 0x7000000
    v_cmp_eq_u32 vcc, 2, v5
    s_mul_i32 s66, s3, 1680
    s_add_u32 s66, s66, 0x%x
    s_nop 0
    v_cndmask_b32 v7, v7, v8, vcc
    v_cmp_gt_u32 vcc, 63, v1
    s_and_saveexec_b64 s[72:73], vcc
    """ % WS_P)
    for rb in range(16):
        a("buffer_load_dwordx4 %s, v6, s[8:11], s66 offen" % vr(16 + 8 * rb))
        a("buffer_load_dwordx4 %s, v7, s[8:11], s66 offen" % vr(20 + 8 * rb))
        if rb < 15:
            a("s_add_u32 s66, s66, %d" % (32 * 1680))
    a("""
    s_and_b32 s67, s3, 3
    s_lshl_b32 s67, s67, 2
    s_sub_u32 s68, s67, 16
    v_add_u32 v8, s68, v4
    v_and_b32 v8, 15, v8
    v_add_u32 v8, 48, v8
    v_cmp_gt_u32 vcc, 16, v4
    s_mul_i32 s66, s3, 1536
    s_add_u32 s66, s66, 0x%x
    v_cndmask_b32 v8, v8, v4, vcc
    v_lshlrev_b32 v8, 4, v8
    v_lshl_add_u32 v8, v5, 8, v8
    """ % WS_KVT)
    for rb in range(1, 16):
        a("s_waitcnt vmcnt(%d)" % (30 - 2 * rb))
        for i in range(0, 8, 2):
            a("v_pk_add_f32 v[%d:%d], v[%d:%d], v[%d:%d]" % (16 + i, 17 + i, 16 + i, 17 + i, 16 + 8 * rb + i, 17 + 8 * rb + i))
    for i in range(4):
        a("v_cvt_pk_bf16_f32 v%d, v%d, v%d" % (12 + i, 16 + 2 * i, 17 + 2 * i))
    a("""
    buffer_store_dwordx4 v[12:15], v8, s[8:11], s66 offen sc1
    s_waitcnt vmcnt(0)
    v_mov_b32 v2, 1
    s_lshr_b32 s66, s3, 3
    s_lshl_b32 s66, s66, 6
    v_mov_b32 v3, s66
    s_mov_b64 exec, 1
    buffer_atomic_add v2, v3, s[28:31], 0 offen sc1
    s_waitcnt vmcnt(0)
    """)
    a.label("L_s2_end")
    a("s_endpgm")

def kd(name, vgpr, accum, sgpr=100):
    return """.amdhsa_kernel %s
  .amdhsa_next_free_vgpr %d
  .amdhsa_next_free_sgpr %d
  .amdhsa_accum_offset %d
  .amdhsa_group_segment_fixed_size 0
  .amdhsa_kernarg_size 96
  .amdhsa_user_sgpr_count 2
  .amdhsa_user_sgpr_kernarg_segment_ptr 1
  .amdhsa_system_sgpr_workgroup_id_x 1
.end_amdhsa_kernel
""" % (name, vgpr, sgpr, accum)

def main():
    a = Asm()
    hdr = open("cdna_kernels/%s.s.ref" % NAME).read().split("; Override launch")[0]
    out = hdr
    out += "; @launch kernel=s1_kernel grid=(256,1,1) block=(384,1,1) lds=%d\n" % (3 * S1_BUF + 16384)
    out += "; @launch kernel=s2_kernel grid=(252,1,1) block=(512,1,1) lds=163840\n"
    out += '.amdgcn_target "amdgcn-amd-amdhsa--gfx950"\n.text\n'
    stage1(a)
    stage2(a)
    out += a.text()
    out += '.section .rodata,"a"\n.p2align 6\n'
    out += kd("s1_kernel", 256, 256)
    out += ".p2align 6\n" + kd("s2_kernel", 256, 256)
    dst = sys.argv[1] if len(sys.argv) > 1 else "cdna_kernels/%s.s" % NAME
    open(dst, "w").write(out)

main()
```

```python
import sys, os

NAME = "gated_mix__linear_attn_block__dense_activation_squared_relu__prompt"

WS_H   = 0x000000
WS_PQF = 0x600000
WS_P   = 0x900000
WS_KVT = 0xA00000
WS_G   = 0xA10000
WS_W2F = 0xC00000
WS_WOF = 0xE00000
WS_SIZE = 0x1000000
STAMP = int(os.environ.get("STAMP", "0"))
WS_STAMP = 0xB00000

class Asm:
    def __init__(self):
        self.L = []
    def __call__(self, s):
        for ln in s.strip("\n").split("\n"):
            if ln.strip():
                self.L.append("  " + ln.strip())
    def label(self, l):
        self.L.append(l + ":")
    def raw(self, s):
        self.L.append(s)
    def text(self):
        return "\n".join(self.L) + "\n"

def vr(b, n=4):
    return "v[%d:%d]" % (b, b + n - 1)

def srd(a, d, lo, size):
    a("s_mov_b32 s%d, s%d" % (d, lo))
    a("s_and_b32 s%d, s%d, 0xffff" % (d + 1, lo + 1))
    a("s_mov_b32 s%d, 0x%x" % (d + 2, size))
    a("s_mov_b32 s%d, 0x00020000" % (d + 3))

def interleave(a, main, side, start=1, every=1):
    side = list(side)
    for i, m in enumerate(main):
        a(m)
        if i >= start - 1 and (i - (start - 1)) % every == 0 and side:
            a(side.pop(0))
    for s in side:
        a(s)

def stamp_start(a):
    if STAMP:
        a("s_memrealtime s[86:87]")
        a("s_waitcnt lgkmcnt(0)")
        a("s_mov_b32 s94, s86")
        stamp(a, 0)
def stamp(a, idx):
    if STAMP:
        a("s_memtime s[86:87]")
        a("s_waitcnt lgkmcnt(0)")
        a("s_mov_b32 s%d, s86" % (88 + idx))
def stamp_flush(a, kern, srdreg, wavereg):
    if STAMP:
        a("s_waitcnt vmcnt(0)")
        stamp(a, 5)
        a("s_memrealtime s[86:87]")
        a("s_waitcnt lgkmcnt(0)")
        a("s_mov_b32 s95, s86")
        a("s_lshl_b32 s86, s2, 3")
        a("s_add_u32 s86, s86, s%d" % wavereg)
        a("s_lshl_b32 s86, s86, 5")
        a("s_add_u32 s86, s86, 0x%x" % (WS_STAMP + kern * 0x10000))
        a("s_mov_b64 exec, 1")
        for i in range(8):
            a("v_mov_b32 v2, s%d" % (88 + i))
            a("v_mov_b32 v3, %d" % (4 * i))
            a("buffer_store_dword v2, v3, s[%d:%d], s86 offen" % (srdreg, srdreg + 3))
        a("s_waitcnt vmcnt(0)")

LOG2E = "0x3fb8aa3b"
EPS = "0x358637bd"

def phi4(a, src, tmp, sl, se):
    for i in (0, 2):
        a("v_pk_mul_f32 v[%d:%d], v[%d:%d], s[%d:%d]" % (tmp + i, tmp + i + 1, src + i, src + i + 1, sl, sl + 1))
    for i in range(4):
        a("v_min_f32 v%d, 0, v%d" % (tmp + i, tmp + i))
    for i in range(4):
        a("v_exp_f32 v%d, v%d" % (tmp + i, tmp + i))
    for i in range(4):
        a("v_max_f32 v%d, 0, v%d" % (src + i, src + i))
    for i in (0, 2):
        a("v_pk_add_f32 v[%d:%d], v[%d:%d], v[%d:%d]" % (src + i, src + i + 1, src + i, src + i + 1, tmp + i, tmp + i + 1))
    for i in (0, 2):
        a("v_pk_add_f32 v[%d:%d], v[%d:%d], s[%d:%d]" % (src + i, src + i + 1, src + i, src + i + 1, se, se + 1))

def swap23_v(a, d, s, t):
    a("v_and_b32 v%d, 3, v%d" % (d, s))
    a("v_and_b32 v%d, 4, v%d" % (t, s))
    a("v_lshlrev_b32 v%d, 1, v%d" % (t, t))
    a("v_or_b32 v%d, v%d, v%d" % (d, d, t))
    a("v_and_b32 v%d, 8, v%d" % (t, s))
    a("v_lshrrev_b32 v%d, 1, v%d" % (t, t))
    a("v_or_b32 v%d, v%d, v%d" % (d, d, t))

S1_BUF = 45056
def stage1(a):
    a.raw(".globl s1_kernel\n.p2align 8\n.type s1_kernel,@function")
    a.label("s1_kernel")
    a("""
    s_cmp_ge_u32 s2, 256
    s_cbranch_scc1 L_s1_end
    """)
    stamp_start(a)
    a("""
    s_load_dwordx4 s[36:39], s[0:1], 0
    s_load_dwordx4 s[40:43], s[0:1], 32
    s_load_dwordx2 s[44:45], s[0:1], 64
    s_load_dwordx2 s[46:47], s[0:1], 88
    s_load_dwordx2 s[66:67], s[0:1], 16
    s_load_dwordx2 s[68:69], s[0:1], 48
    s_load_dwordx2 s[70:71], s[0:1], 80
    s_and_b32 s48, s2, 7
    s_lshr_b32 s49, s2, 3
    s_and_b32 s50, s48, 1
    s_lshl_b32 s50, s50, 3
    s_and_b32 s51, s49, 7
    s_add_u32 s32, s50, s51          ; rb
    s_lshr_b32 s50, s48, 1
    s_lshl_b32 s50, s50, 2
    s_lshr_b32 s51, s49, 3
    s_add_u32 s65, s50, s51          ; cg
    s_and_b32 s34, s65, 1            ; type
    s_lshr_b32 s33, s65, 1           ; jj
    v_and_b32 v1, 63, v0
    v_lshrrev_b32 v2, 6, v0
    s_nop 0
    v_readfirstlane_b32 s35, v2      ; wave
    s_nop 3
    s_lshr_b32 s52, s35, 1           ; wr
    s_and_b32 s53, s35, 1            ; wc
    s_mov_b32 s57, 0
    s_mov_b32 s58, 0
    s_mov_b32 s59, 0
    s_waitcnt lgkmcnt(0)
    """)
    srd(a, 8, 36, 2621440)
    srd(a, 12, 38, 2457600)
    srd(a, 16, 40, 1966080)
    srd(a, 20, 46, WS_SIZE)
    srd(a, 24, 42, 3072)
    srd(a, 28, 44, 1280)
    srd(a, 4, 70, 256)
    a("s_cmp_eq_u32 s35, 4")
    a("s_cbranch_scc1 L_s1_loader")
    a("s_cmp_eq_u32 s35, 5")
    a("s_cbranch_scc1 L_s1_loaderX")
    a("s_cmp_eq_u32 s35, 6")
    a("s_cbranch_scc1 L_s1_aux")
    a("""
    s_mov_b32 s78, %s
    s_mov_b32 s79, %s
    s_mov_b32 s80, %s
    s_mov_b32 s81, %s
    """ % (LOG2E, LOG2E, EPS, EPS))
    a("""
    v_and_b32 v2, 15, v1             ; m
    v_lshrrev_b32 v3, 4, v1          ; g
    s_lshl_b32 s60, s52, 6
    v_add_u32 v4, s60, v2
    v_lshlrev_b32 v4, 7, v4
    v_lshrrev_b32 v5, 1, v2
    v_xor_b32 v5, v5, v3
    v_lshlrev_b32 v6, 4, v5
    v_add_u32 v105, v4, v6
    v_xor_b32 v5, 4, v5
    v_lshlrev_b32 v6, 4, v5
    v_add_u32 v106, v4, v6
    v_lshrrev_b32 v4, 2, v1
    v_and_b32 v4, 3, v4              ; r
    v_and_b32 v5, 3, v1
    v_lshlrev_b32 v5, 3, v5          ; c*8
    v_lshrrev_b32 v6, 1, v3
    v_lshlrev_b32 v6, 4, v6
    v_and_b32 v7, 1, v3              ; g&1
    v_lshlrev_b32 v2, 2, v7
    v_add3_u32 v6, v6, v2, v4        ; pil
    s_cmp_eq_u32 s34, 1
    s_cbranch_scc1 L_s1_typeB
    """)
    for typ in (0, 1):
        if typ == 1:
            a.label("L_s1_typeB")
        stage1_type(a, typ)
    a.label("L_s1_loader")
    a("s_cmp_eq_u32 s34, 1")
    a("s_cbranch_scc1 L_s1_loaderB")
    stage1_loader(a, 0)
    a.label("L_s1_loaderB")
    stage1_loader(a, 1)
    a.label("L_s1_loaderX")
    stage1_loader(a, 2)
    a.label("L_s1_aux")
    stage1_aux(a)
    a.label("L_s1_end")
    a("s_endpgm")

def stage1_transposer_old(a):
    a("""
    s_lshl_b32 s60, s2, 2
    s_add_u32 s60, s60, s35
    s_cmp_ge_u32 s60, 720
    s_cbranch_scc1 L_s1_tr_done
    s_lshl_b32 s61, s35, 12
    s_add_u32 s61, s61, %d                   ; scratch base
    v_lshrrev_b32 v2, 3, v1                  ; lr
    v_and_b32 v4, 7, v1
    v_lshrrev_b32 v5, 4, v1
    v_lshlrev_b32 v5, 1, v5
    v_xor_b32 v6, v4, v5
    v_lshlrev_b32 v6, 4, v6                  ; colpart
    v_and_b32 v3, 3, v2
    v_lshrrev_b32 v4, 2, v2                  ; lr>>2
    s_cmp_ge_u32 s60, 480
    s_cbranch_scc1 L_s1_tr_wo
    """ % (3 * S1_BUF))
    srd(a, 72, 68, 1966080)
    a("""
    s_mul_i32 s62, s60, 6554
    s_lshr_b32 s62, s62, 16                  ; ks = u/10
    s_mul_i32 s63, s62, 10
    s_sub_u32 s63, s60, s63                  ; cb
    s_mul_i32 s70, s62, %d
    s_lshl_b32 s71, s63, 7
    s_add_u32 s70, s70, s71                  ; src soffset
    s_mul_i32 s71, s62, 40
    s_lshl_b32 s63, s63, 2
    s_add_u32 s71, s71, s63
    s_lshl_b32 s71, s71, 10
    s_add_u32 s71, s71, 0x%x                 ; dst offset
    v_lshlrev_b32 v5, 3, v4
    v_add_u32 v5, v5, v3
    v_mul_u32_u24 v5, 1280, v5
    v_add_u32 v7, v5, v6
    """ % (32 * 1280, WS_W2F))
    for i in range(4):
        a("s_add_u32 m0, s61, %d" % (i * 1024))
        a("s_add_u32 s64, s70, %d" % ((16 * (i >> 1) + 4 * (i & 1)) * 1280))
        a("buffer_load_dwordx4 v7, s[72:75], s64 offen lds")
    a("s_branch L_s1_tr_go")
    a.label("L_s1_tr_wo")
    srd(a, 72, 66, 819200)
    a("""
    s_sub_u32 s60, s60, 480
    s_mul_i32 s62, s60, 6554
    s_lshr_b32 s62, s62, 16                  ; st = u/10 (0..23)
    s_mul_i32 s63, s62, 10
    s_sub_u32 s63, s60, s63                  ; cb
    s_mul_i32 s71, s62, 40
    s_lshl_b32 s64, s63, 2
    s_add_u32 s71, s71, s64
    s_lshl_b32 s71, s71, 10
    s_add_u32 s71, s71, 0x%x                 ; dst offset
    s_mul_i32 s64, s62, 21846
    s_lshr_b32 s64, s64, 16                  ; wg8 = st/3
    s_mul_i32 s70, s64, 3
    s_sub_u32 s62, s62, s70                  ; step = st%%3
    s_mul_i32 s70, s64, %d                   ; 80*wg8 rows
    s_lshl_b32 s63, s63, 7
    s_add_u32 s70, s70, s63
    s_cmp_eq_u32 s62, 2
    s_cbranch_scc1 L_s1_tr_wo2
    s_mul_i32 s62, s62, %d                   ; 40 rows per pair step
    s_add_u32 s70, s70, s62
    v_mul_u32_u24 v5, 1280, v2
    v_add_u32 v7, v5, v6
    """ % (WS_WOF, 80 * 1280, 40 * 1280))
    for i in range(4):
        row = 20 * (i & 1) + 8 * ((i >> 1) & 1)
        a("s_add_u32 m0, s61, %d" % (i * 1024))
        a("s_add_u32 s64, s70, %d" % (row * 1280))
        a("buffer_load_dwordx4 v7, s[72:75], s64 offen lds")
    a("s_branch L_s1_tr_go")
    a.label("L_s1_tr_wo2")
    a("""
    v_mul_u32_u24 v5, 20, v4
    v_add_u32 v5, v5, v3
    v_mul_u32_u24 v5, 1280, v5
    v_add_u32 v7, v5, v6
    """)
    for i in range(4):
        row = 20 * (2 * ((i >> 1) & 1)) + 16
        a("s_add_u32 m0, s61, %d" % (i * 1024))
        a("s_add_u32 s64, s70, %d" % (row * 1280))
        a("buffer_load_dwordx4 v7, s[72:75], s64 offen lds")
    a.label("L_s1_tr_go")
    a("""
    v_lshrrev_b32 v3, 4, v1
    v_lshrrev_b32 v4, 2, v1
    v_and_b32 v4, 3, v4
    v_and_b32 v5, 3, v1
    v_lshlrev_b32 v5, 3, v5
    v_lshrrev_b32 v6, 1, v3
    v_lshlrev_b32 v6, 4, v6
    v_and_b32 v7, 1, v3
    v_lshlrev_b32 v7, 2, v7
    v_add3_u32 v6, v6, v7, v4
    v_lshrrev_b32 v7, 1, v6
    v_and_b32 v7, 3, v7
    v_lshlrev_b32 v6, 7, v6
    v_add3_u32 v6, v6, v5, s61
    v_lshlrev_b32 v2, 4, v1
    s_waitcnt vmcnt(0)
    """)
    for t in range(4):
        a("v_xor_b32 v4, %d, v7" % t)
        a("v_lshl_add_u32 v4, v4, 5, v6")
        a("ds_read_b64_tr_b16 v[%d:%d], v4" % (8 + 4 * t, 9 + 4 * t))
        a("ds_read_b64_tr_b16 v[%d:%d], v4 offset:1024" % (10 + 4 * t, 11 + 4 * t))
    a("s_waitcnt lgkmcnt(0)")
    for t in range(4):
        a("buffer_store_dwordx4 %s, v2, s[20:23], s71 offen offset:%d" % (vr(8 + 4 * t), t * 1024))
    a("s_nop 1")
    a.label("L_s1_tr_done")


def stage1_aux(a):
    SCR = 3 * S1_BUF
    a("v_lshlrev_b32 v2, 4, v1")
    a("s_mov_b32 m0, %d" % (SCR + 12288))
    a("s_nop 0")
    a("buffer_load_dwordx4 v2, s[28:31], 0 offen lds")
    a("buffer_load_dwordx4 v2, s[28:31], 0 offen offset:1024 lds")
    a("s_waitcnt vmcnt(0)")
    a("s_barrier")
    srd(a, 72, 68, 1966080)
    srd(a, 76, 66, 819200)
    a("""
    v_lshrrev_b32 v2, 3, v1                  ; lr
    v_and_b32 v4, 7, v1
    v_lshrrev_b32 v5, 4, v1
    v_lshlrev_b32 v5, 1, v5
    v_xor_b32 v6, v4, v5
    v_lshlrev_b32 v6, 4, v6                  ; colpart
    v_and_b32 v3, 3, v2
    v_lshrrev_b32 v4, 2, v2                  ; lr>>2
    v_lshlrev_b32 v5, 3, v4
    v_add_u32 v5, v5, v3
    v_mul_u32_u24 v5, 1280, v5
    v_add_u32 v7, v5, v6                     ; voff w2
    v_mul_u32_u24 v5, 1280, v2
    v_add_u32 v8, v5, v6
    v_mul_u32_u24 v5, 20, v4
    v_add_u32 v5, v5, v3
    v_mul_u32_u24 v5, 1280, v5
    v_add_u32 v9, v5, v6
    """)
    for n in range(3):
        D = 82 + n
        a("s_mul_i32 s60, s2, 3")
        a("s_add_u32 s60, s60, %d" % n)
        a("s_mov_b32 s%d, -1" % D)
        a("s_cmp_ge_u32 s60, 680")
        a("s_cbranch_scc1 L_s1_tr_done%d" % n)
        a("s_cmp_ge_u32 s60, 480")
        a("s_cbranch_scc1 L_s1_tr_wo%d" % n)
        a("""
        s_mul_i32 s62, s60, 6554
        s_lshr_b32 s62, s62, 16
        s_mul_i32 s63, s62, 10
        s_sub_u32 s63, s60, s63
        s_mul_i32 s70, s62, %d
        s_lshl_b32 s71, s63, 7
        s_add_u32 s70, s70, s71
        s_mul_i32 s71, s62, 40
        s_lshl_b32 s63, s63, 2
        s_add_u32 s71, s71, s63
        s_lshl_b32 s71, s71, 10
        s_add_u32 s%d, s71, 0x%x
        """ % (32 * 1280, D, WS_W2F))
        for i in range(4):
            a("s_mov_b32 m0, %d" % (SCR + n * 4096 + i * 1024))
            a("s_add_u32 s64, s70, %d" % ((16 * (i >> 1) + 4 * (i & 1)) * 1280))
            a("buffer_load_dwordx4 v7, s[72:75], s64 offen lds")
        a("s_branch L_s1_tr_done%d" % n)
        a.label("L_s1_tr_wo%d" % n)
        a("""
        s_sub_u32 s60, s60, 480
        s_mul_i32 s62, s60, 6554
        s_lshr_b32 s62, s62, 16
        s_mul_i32 s63, s62, 10
        s_sub_u32 s63, s60, s63
        s_mul_i32 s71, s62, 40
        s_lshl_b32 s64, s63, 2
        s_add_u32 s71, s71, s64
        s_lshl_b32 s71, s71, 10
        s_add_u32 s%d, s71, 0x%x
        s_mul_i32 s64, s62, 13108
        s_lshr_b32 s64, s64, 16
        s_mul_i32 s70, s64, 5
        s_sub_u32 s62, s62, s70
        s_mul_i32 s70, s64, %d
        s_lshl_b32 s63, s63, 7
        s_add_u32 s70, s70, s63
        s_cmp_eq_u32 s62, 4
        s_cbranch_scc1 L_s1_tr_wl%d
        s_mul_i32 s62, s62, %d
        s_add_u32 s70, s70, s62
        """ % (D, WS_WOF, 160 * 1280, n, 40 * 1280))
        for i in range(4):
            row = 20 * (i & 1) + 8 * ((i >> 1) & 1)
            a("s_mov_b32 m0, %d" % (SCR + n * 4096 + i * 1024))
            a("s_add_u32 s64, s70, %d" % (row * 1280))
            a("buffer_load_dwordx4 v8, s[76:79], s64 offen lds")
        a("s_branch L_s1_tr_done%d" % n)
        a.label("L_s1_tr_wl%d" % n)
        for i in range(4):
            row = 20 * (4 * (i & 1) + 2 * ((i >> 1) & 1)) + 16
            a("s_mov_b32 m0, %d" % (SCR + n * 4096 + i * 1024))
            a("s_add_u32 s64, s70, %d" % (row * 1280))
            a("buffer_load_dwordx4 v9, s[76:79], s64 offen lds")
        a.label("L_s1_tr_done%d" % n)
    a("s_barrier")
    a("s_barrier")
    a("s_barrier")
    a("s_waitcnt vmcnt(0)")
    a("""
    v_lshrrev_b32 v3, 4, v1
    v_lshrrev_b32 v4, 2, v1
    v_and_b32 v4, 3, v4
    v_and_b32 v5, 3, v1
    v_lshlrev_b32 v5, 3, v5
    v_lshrrev_b32 v6, 1, v3
    v_lshlrev_b32 v6, 4, v6
    v_and_b32 v7, 1, v3
    v_lshlrev_b32 v7, 2, v7
    v_add3_u32 v6, v6, v7, v4
    v_lshrrev_b32 v7, 1, v6
    v_and_b32 v7, 3, v7
    v_lshlrev_b32 v6, 7, v6
    v_add_u32 v6, v6, v5
    v_add_u32 v6, %d, v6
    v_lshlrev_b32 v2, 4, v1
    """ % SCR)
    for t in range(4):
        a("v_xor_b32 v4, %d, v7" % t)
        a("v_lshl_add_u32 v%d, v4, 5, v6" % (10 + t))
    for n in range(3):
        for t in range(4):
            b = 104 + 16 * n + 4 * t
            a("ds_read_b64_tr_b16 v[%d:%d], v%d offset:%d" % (b, b + 1, 10 + t, n * 4096))
            a("ds_read_b64_tr_b16 v[%d:%d], v%d offset:%d" % (b + 2, b + 3, 10 + t, n * 4096 + 1024))
    a("s_waitcnt lgkmcnt(0)")
    for n in range(3):
        a("s_cmp_eq_u32 s%d, -1" % (82 + n))
        a("s_cbranch_scc1 L_s1_tr_skip%d" % n)
        for t in range(4):
            a("buffer_store_dwordx4 %s, v2, s[20:23], s%d offen offset:%d" % (vr(104 + 16 * n + 4 * t), 82 + n, t * 1024))
        a.label("L_s1_tr_skip%d" % n)
    for i in range(7):
        a("s_barrier")
    a("s_endpgm")


def stage1_lastarriver(a, T):
    a("""
    s_waitcnt vmcnt(0)
    s_barrier
    s_cmp_lg_u32 s35, 0
    s_cbranch_scc1 L_s1_la_wait_%s
    v_mov_b32 v4, 1
    s_lshl_b32 s63, s33, 2
    v_mov_b32 v5, s63
    s_mov_b64 s[72:73], exec
    s_mov_b64 exec, 1
    buffer_atomic_add v4, v5, s[4:7], 0 offen sc0 sc1
    s_waitcnt vmcnt(0)
    v_mov_b32 v5, 0x%x
    ds_write_b32 v5, v4
    s_waitcnt lgkmcnt(0)
    s_mov_b64 exec, s[72:73]
    """ % (T, 3 * S1_BUF + 12288))
    a.label("L_s1_la_wait_%s" % T)
    a("""
    s_barrier
    v_mov_b32 v5, 0x%x
    ds_read_b32 v4, v5
    s_waitcnt lgkmcnt(0)
    v_readfirstlane_b32 s63, v4
    s_nop 3
    s_cmp_lg_u32 s63, 15
    s_cbranch_scc1 L_s1_la_done_%s
    ; ---- reduce head h = 4jj + w : lane t<63: e=t/3, g'=t%%3
    v_mul_u32_u24 v4, 171, v1
    v_lshrrev_b32 v4, 9, v4                  ; e
    v_mul_u32_u24 v5, 3, v4
    v_sub_u32 v5, v1, v5                     ; g'
    v_mul_u32_u24 v6, 80, v4
    v_lshl_add_u32 v6, v5, 5, v6
    v_add_u32 v7, 16, v6
    v_mov_b32 v8, 0x7000000
    v_cmp_eq_u32 vcc, 2, v5
    s_lshl_b32 s64, s33, 2
    s_add_u32 s64, s64, s35                  ; head
    s_mul_i32 s66, s64, 1680
    s_add_u32 s66, s66, 0x%x
    v_cndmask_b32 v7, v7, v8, vcc
    v_cmp_gt_u32 vcc, 63, v1
    s_and_saveexec_b64 s[72:73], vcc
    """ % (3 * S1_BUF + 12288, T, WS_P))
    for rb in range(16):
        a("buffer_load_dwordx4 %s, v6, s[20:23], s66 offen sc1" % vr(16 + 8 * rb))
        a("buffer_load_dwordx4 %s, v7, s[20:23], s66 offen sc1" % vr(20 + 8 * rb))
        if rb < 15:
            a("s_add_u32 s66, s66, %d" % (32 * 1680))
    a("""
    s_lshl_b32 s67, s35, 2
    s_sub_u32 s68, s67, 16
    v_add_u32 v8, s68, v4                    ; 4w + e - 16
    v_and_b32 v8, 15, v8
    v_add_u32 v8, 48, v8                     ; +768/16
    v_cmp_gt_u32 vcc, 16, v4
    s_mul_i32 s66, s64, 1536
    s_add_u32 s66, s66, 0x%x
    v_cndmask_b32 v8, v8, v4, vcc
    v_lshlrev_b32 v8, 4, v8
    v_lshl_add_u32 v8, v5, 8, v8
    """ % WS_KVT)
    for rb in range(1, 16):
        a("s_waitcnt vmcnt(%d)" % (30 - 2 * rb))
        for i in range(0, 8, 2):
            a("v_pk_add_f32 v[%d:%d], v[%d:%d], v[%d:%d]" % (16 + i, 17 + i, 16 + i, 17 + i, 16 + 8 * rb + i, 17 + 8 * rb + i))
    for i in range(4):
        a("v_cvt_pk_bf16_f32 v%d, v%d, v%d" % (12 + i, 16 + 2 * i, 17 + 2 * i))
    a("buffer_store_dwordx4 v[12:15], v8, s[20:23], s66 offen")
    a("s_mov_b64 exec, s[72:73]")
    a.label("L_s1_la_done_%s" % T)


def stage1_gate(a):
    a("""
    s_lshl_b32 s60, s32, 7
    s_lshl_b32 s61, s33, 4
    s_add_u32 s60, s60, s61
    s_lshl_b32 s61, s35, 2
    s_add_u32 s60, s60, s61
    v_lshrrev_b32 v2, 5, v1
    v_add_u32 v2, s60, v2
    v_lshlrev_b32 v100, 2, v2
    v_add_u32 v100, 0x%x, v100
    v_mul_u32_u24 v2, 1280, v2
    v_and_b32 v3, 31, v1
    v_cmp_eq_u32 s[74:75], 0, v3
    v_mul_u32_u24 v3, 40, v3
    v_add_u32 v2, v2, v3
    buffer_load_dwordx4 v[20:23], v3, s[28:31], 0 offen
    buffer_load_dwordx4 v[24:27], v3, s[28:31], 0 offen offset:16
    buffer_load_dwordx2 v[28:29], v3, s[28:31], 0 offen offset:32
    """ % WS_G)
    for p in range(2):
        b = 32 + 12 * p
        a("buffer_load_dwordx4 %s, v2, s[8:11], 0 offen offset:%d" % (vr(b), p * 2560))
        a("buffer_load_dwordx4 %s, v2, s[8:11], 0 offen offset:%d" % (vr(b + 4), p * 2560 + 16))
        a("buffer_load_dwordx2 v[%d:%d], v2, s[8:11], 0 offen offset:%d" % (b + 8, b + 9, p * 2560 + 32))

def stage1_gate2(a, nst):
    a("s_waitcnt vmcnt(%d)" % nst)
    for i in range(10):
        a("v_lshlrev_b32 v%d, 16, v%d" % (60 + 2 * i, 20 + i))
        a("v_and_b32 v%d, 0xffff0000, v%d" % (61 + 2 * i, 20 + i))
    a("v_pk_mov_b32 v[96:97], 0, 0")
    for i in range(10):
        for p in range(2):
            b = 32 + 12 * p; t = 8 + 4 * p
            a("v_lshlrev_b32 v%d, 16, v%d" % (t, b + i))
            a("v_and_b32 v%d, 0xffff0000, v%d" % (t + 1, b + i))
        for p in range(2):
            t = 8 + 4 * p
            a("v_pk_mul_f32 v[%d:%d], v[%d:%d], v[%d:%d]" % (t, t + 1, t, t + 1, 60 + 2 * i, 61 + 2 * i))
        for p in range(2):
            t = 8 + 4 * p
            a("v_cvt_pk_bf16_f32 v%d, v%d, v%d" % (t, t, t + 1))
        for p in range(2):
            t = 8 + 4 * p
            a("v_lshlrev_b32 v%d, 16, v%d" % (t + 1, t))
            a("v_and_b32 v%d, 0xffff0000, v%d" % (t, t))
        for p in range(2):
            t = 8 + 4 * p
            a("v_add_f32 v%d, v%d, v%d" % (96 + p, 96 + p, t + 1))
        for p in range(2):
            t = 8 + 4 * p
            a("v_add_f32 v%d, v%d, v%d" % (96 + p, 96 + p, t))
    for mode in ("quad_perm:[1,0,3,2]", "quad_perm:[2,3,0,1]", "row_half_mirror", "row_mirror"):
        a("s_nop 1")
        for p in range(2):
            a("v_add_f32_dpp v%d, v%d, v%d %s row_mask:0xf bank_mask:0xf" % (96 + p, 96 + p, 96 + p, mode))
    for p in range(2):
        a("ds_swizzle_b32 v%d, v%d offset:0x401F" % (98 + p, 96 + p))
    a("s_waitcnt lgkmcnt(0)")
    for ins in ("v_add_f32 v{r}, v{r}, v{q}", "v_cvt_pk_bf16_f32 v{r}, v{r}, v{r}", "v_lshlrev_b32 v{r}, 16, v{r}", "v_mul_f32 v{r}, 0xbfb8aa3b, v{r}",
                "v_exp_f32 v{r}, v{r}", "NOP", "v_add_f32 v{r}, 1.0, v{r}", "v_rcp_f32 v{r}, v{r}", "NOP", "v_cvt_pk_bf16_f32 v{r}, v{r}, v{r}", "v_lshlrev_b32 v{r}, 16, v{r}"):
        if ins == "NOP":
            a("s_nop 0"); continue
        for p in range(2):
            a(ins.format(r=96 + p, q=98 + p))
    a("s_and_saveexec_b64 s[72:73], s[74:75]")
    for p in range(2):
        a("buffer_store_dword v%d, v100, s[20:23], 0 offen offset:%d" % (96 + p, p * 8))
    a("s_mov_b64 exec, s[72:73]")

def s1_warm(a):
    if int(os.environ.get("WARM", "1")):
        a("v_lshlrev_b32 v2, 4, v1")
        for (srdn, S, n) in ((8, 10240, 3), (12, 9600, 3), (16, 7680, 2)):
            a("s_mul_i32 s60, s2, %d" % S)
            a("s_mul_i32 s61, s35, %d" % (S // 4))
            a("s_add_u32 s60, s60, s61")
            for i in range(n):
                a("buffer_load_dwordx4 v[240:243], v2, s[%d:%d], s60 offen offset:%d" % (srdn, srdn + 3, i * 1024))

def s1_dma(typ):
    L = []
    if typ == 2:
        for i in range(16):
            L.append("s_add_u32 m0, s57, %d" % (i * 1024))
            L.append("s_add_u32 s64, s54, %d" % (i * 10240))
            L.append("buffer_load_dwordx4 v%d, s[8:11], s64 offen lds" % (96 + (i & 1)))
        L.append("s_add_u32 s54, s54, 128")
    elif typ == 0:
        for i in range(28):
            L.append("s_add_u32 m0, s57, %d" % (16384 + i * 1024))
            L.append("s_add_u32 s64, s55, %d" % ((i // 7) * 16 * 3840))
            L.append("buffer_load_dwordx4 v%d, s[12:15], s64 offen lds" % (98 + i % 7))
        L.append("s_add_u32 s55, s55, %d" % (64 * 3840))
    else:
        for i in range(24):
            L.append("s_add_u32 m0, s57, %d" % (16384 + i * 1024))
            L.append("s_add_u32 s64, s56, %d" % ((i // 6) * 16 * 3072))
            L.append("buffer_load_dwordx4 v%d, s[16:19], s64 offen lds" % (98 + i % 6))
        for i in range(2):
            L.append("s_add_u32 m0, s57, %d" % (16384 + 24576 + i * 1024))
            L.append("s_add_u32 s64, s55, %d" % (i * 32 * 3840))
            L.append("buffer_load_dwordx4 v104, s[12:15], s64 offen lds")
        L.append("s_add_u32 s55, s55, %d" % (64 * 3840))
        L.append("s_add_u32 s56, s56, %d" % (64 * 3072))
    L.append("s_add_u32 s57, s57, %d" % S1_BUF)
    L.append("s_cmp_eq_u32 s57, %d" % (3 * S1_BUF))
    L.append("s_cselect_b32 s57, 0, s57")
    return L

def stage1_loader(a, typ):
    T = "ABX"[typ]
    N = [28, 26, 16][typ]
    if typ == 2:
        a("""
        v_lshrrev_b32 v2, 3, v1
        v_mul_u32_u24 v2, 1280, v2
        v_and_b32 v3, 7, v1
        v_lshrrev_b32 v4, 4, v1
        v_xor_b32 v5, v3, v4
        v_lshlrev_b32 v6, 4, v5
        v_add_u32 v96, v2, v6
        v_xor_b32 v5, 4, v5
        v_lshlrev_b32 v6, 4, v5
        v_add_u32 v97, v2, v6
        s_lshl_b32 s60, s32, 7
        s_mul_i32 s54, s60, 1280
        """)
    else:
        a("s_mov_b32 s55, 0")
        a("s_mov_b32 s56, 0")
    if typ == 0:
        C = 28
        a("s_mov_b32 s67, %d" % ((2**32 + C - 1) // C))
        a("s_mul_i32 s68, s33, 160")
        a("s_add_u32 s69, s68, 1280")
        a("s_add_u32 s70, s68, %d" % (2560 - 160))
        a("s_lshl_b32 s71, s33, 7")
        a("s_sub_u32 s71, s71, 320")
        a("v_mov_b32 v8, s69")
        a("v_mov_b32 v9, s70")
        a("v_mov_b32 v10, s71")
        for i in range(7):
            a("v_add_u32 v2, %d, v1" % (64 * i))
            a("v_mul_hi_u32 v3, v2, s67")
            a("v_mul_u32_u24 v4, %d, v3" % C)
            a("v_sub_u32 v4, v2, v4")
            a("v_and_b32 v5, 4, v3")
            a("v_lshrrev_b32 v5, 1, v5")
            a("v_xor_b32 v4, v4, v5")
            a("v_cmp_gt_u32 vcc, 10, v4")
            a("v_cmp_gt_u32 s[72:73], 20, v4")
            swap23_v(a, 5, 3, 6)
            a("v_mul_u32_u24 v5, 3840, v5")
            a("v_cndmask_b32 v6, v9, v8, vcc")
            a("v_cndmask_b32 v6, v10, v6, s[72:73]")
            a("v_lshlrev_b32 v4, 4, v4")
            a("v_add3_u32 v%d, v5, v6, v4" % (98 + i))
    elif typ == 1:
        C = 24
        a("s_mov_b32 s67, %d" % ((2**32 + C - 1) // C))
        a("s_mul_i32 s68, s33, 384")
        for i in range(6):
            a("v_add_u32 v2, %d, v1" % (64 * i))
            a("v_mul_hi_u32 v3, v2, s67")
            a("v_mul_u32_u24 v4, %d, v3" % C)
            a("v_sub_u32 v4, v2, v4")
            a("v_and_b32 v5, 6, v3")
            a("v_xor_b32 v4, v4, v5")
            swap23_v(a, 5, 3, 6)
            a("v_mul_u32_u24 v5, 3072, v5")
            a("v_lshlrev_b32 v4, 4, v4")
            a("v_add3_u32 v%d, v5, s68, v4" % (98 + i))
        a("v_lshrrev_b32 v2, 1, v1")
        a("v_and_b32 v3, 15, v2")
        swap23_v(a, 5, 3, 6)
        a("v_and_b32 v3, 16, v2")
        a("v_add_u32 v5, v5, v3")
        a("v_mul_u32_u24 v5, 3840, v5")
        a("v_and_b32 v4, 1, v1")
        a("v_lshlrev_b32 v4, 4, v4")
        a("s_lshl_b32 s68, s33, 5")
        a("s_add_u32 s68, s68, 1024")
        a("v_add3_u32 v104, v5, s68, v4")
    stamp(a, 1)
    a.label("L_s1_ld_%s" % T)
    for s in s1_dma(typ):
        if int(os.environ.get("NODMA", "0")) and "buffer_load" in s: continue
        a(s)
    a("s_add_u32 s59, s59, 1")
    a("s_cmp_eq_u32 s59, 1")
    a("s_cbranch_scc1 L_s1_ld_%s" % T)
    if STAMP:
        a("s_cmp_lg_u32 s59, 2")
        a("s_cbranch_scc1 L_s1_ldst_%s" % T)
        stamp(a, 2)
        a("s_waitcnt vmcnt(%d)" % N)
        stamp(a, 3)
        a.label("L_s1_ldst_%s" % T)
    a("s_waitcnt vmcnt(%d)" % N)
    a("s_barrier")
    a("s_cmp_lt_u32 s59, 10")
    a("s_cbranch_scc1 L_s1_ld_%s" % T)
    a("s_waitcnt vmcnt(0)")
    a("s_barrier")
    a("s_barrier")
    stamp(a, 4)
    stamp_flush(a, 0, 20, 35)
    a("s_endpgm")

def stage1_type(a, typ):
    T = "AB"[typ]
    if typ == 0:
        a("""
        v_mul_u32_u24 v2, 448, v6
        v_add_u32 v2, v2, v5
        v_add_u32 v2, 16384, v2
        v_lshlrev_b32 v7, 5, v7
        v_add_u32 v107, v2, v7
        v_sub_u32 v108, v2, v7
        """)
        nb = 2
    else:
        a("""
        v_mul_u32_u24 v2, 384, v6
        v_add_u32 v2, v2, v5
        v_add_u32 v2, 16384, v2
        v_lshrrev_b32 v7, 1, v6
        v_and_b32 v7, 3, v7
        """)
        for j in range(4):
            a("v_xor_b32 v3, %d, v7" % j)
            a("v_subrev_u32 v3, %d, v3" % j)
            a("v_lshlrev_b32 v3, 5, v3")
            a("v_add_u32 v%d, v2, v3" % (107 + j))
        a("v_lshlrev_b32 v2, 5, v6")
        a("v_add_u32 v2, v2, v5")
        a("v_add_u32 v111, %d, v2" % (16384 + 24576))
        nb = 5
        a("s_mul_i32 s63, s33, 384")
        a("s_mul_i32 s64, s53, 192")
        a("s_add_u32 s63, s63, s64")
        a("v_lshrrev_b32 v3, 4, v1")
        a("v_lshlrev_b32 v4, 3, v3")
        for i in range(6):
            a("buffer_load_dwordx2 v[%d:%d], v4, s[24:27], s63 offen offset:%d" % (32 + 2 * i, 33 + 2 * i, 32 * i))
    a("s_cmp_eq_u32 s53, 1")
    a("s_cbranch_scc1 L_s1_%s1" % T)
    for wc in (0, 1):
        if wc == 1:
            a.label("L_s1_%s1" % T)
        stage1_wave(a, typ, wc, nb)

def s1_tiles(typ, wc):
    if typ == 0:
        return [("k", 0), ("k", 1), ("k", 2), ("v", 0), ("v", 1), ("q", 0), ("q", 1)] if wc == 0 else \
               [("k", 3), ("k", 4), ("v", 2), ("v", 3), ("v", 4), ("q", 2), ("q", 3)]
    else:
        return [("h", i) for i in range(6)] + [("q", 0)] if wc == 0 else [("h", i) for i in range(6, 12)] + [("g", 0)]

def s1_reads(typ, tiles, ks, aset, bset):
    L = []
    for ti, (kind, idx) in enumerate(tiles):
        if kind == "g":
            L.append("ds_read_b128 %s, v119 offset:%d" % (vr(bset + 4 * ti), 64 * ks))
            continue
        for hh in range(2):
            dst = bset + 4 * ti + 2 * hh
            if typ == 0:
                slot = {"k": 0, "v": 5, "q": 10}[kind] + idx
                base = 114 + (slot & 1)
                off = (32 * ks + 8 * hh) * 448 + slot * 32
            else:
                if kind == "q":
                    base = 118
                    off = (32 * ks + 8 * hh) * 32
                else:
                    base = 114 + (idx & 3)
                    off = (32 * ks + 8 * hh) * 384 + idx * 32
            L.append("ds_read_b64_tr_b16 v[%d:%d], v%d offset:%d" % (dst, dst + 1, base, off))
        if ti == 0:
            for rt in range(4):
                L.append("ds_read_b128 %s, v%d offset:%d" % (vr(aset + 4 * rt), 112 + ks, rt * 2048))
    return L

def s1_mfmas(tiles, aset, bset):
    L = []
    for ti, (kind, idx) in enumerate(tiles):
        for rt in range(4):
            acc = 128 + (ti * 4 + rt) * 4
            x = vr(aset + 4 * rt); w = vr(bset + 4 * ti)
            if kind in ("k", "v"):
                L.append("v_mfma_f32_16x16x32_bf16 %s, %s, %s, %s" % (vr(acc), x, w, vr(acc)))
            else:
                L.append("v_mfma_f32_16x16x32_bf16 %s, %s, %s, %s" % (vr(acc), w, x, vr(acc)))
    return L

def s1_setbase(nb):
    L = ["v_add_u32 v112, s58, v105", "v_add_u32 v113, s58, v106"]
    for j in range(nb):
        L.append("v_add_u32 v%d, s58, v%d" % (114 + j, 107 + j))
    return L

def stage1_wave(a, typ, wc, nb):
    T = "AB"[typ] + str(wc)
    tiles = s1_tiles(typ, wc)
    if typ == 1:
        a("s_waitcnt vmcnt(0)")
    for ti, (kind, idx) in enumerate(tiles):
        acc = 128 + (ti * 4) * 4
        if kind == "h":
            b = 32 + 2 * (idx % 6)
            a("v_lshlrev_b32 v%d, 16, v%d" % (acc, b))
            a("v_and_b32 v%d, 0xffff0000, v%d" % (acc + 1, b))
            a("v_lshlrev_b32 v%d, 16, v%d" % (acc + 2, b + 1))
            a("v_and_b32 v%d, 0xffff0000, v%d" % (acc + 3, b + 1))
            for rt in range(1, 4):
                for i in (0, 2):
                    a("v_pk_mov_b32 v[%d:%d], v[%d:%d], v[%d:%d] op_sel:[0,1]" % (acc + 4 * rt + i, acc + 4 * rt + i + 1, acc + i, acc + i + 1, acc + i, acc + i + 1))
        else:
            for r in range(0, 16, 2):
                a("v_pk_mov_b32 v[%d:%d], 0, 0" % (acc + r, acc + r + 1))
    for s in s1_setbase(nb):
        a(s)
    GT = (typ == 1 and wc == 1)
    if GT:
        a("v_lshrrev_b32 v119, 4, v1")
        a("v_lshlrev_b32 v119, 4, v119")
        a("v_add_u32 v119, %d, v119" % (3 * S1_BUF + 12288))
    s1_warm(a)
    stamp(a, 1)
    a("s_barrier")
    for s in s1_reads(typ, tiles, 0, 64, 8):
        a(s)
    a("s_waitcnt lgkmcnt(0)")
    stamp(a, 2)
    a.label("L_s1_loop_%s" % T)
    NOLDS = int(os.environ.get("NOLDS", "0"))
    interleave(a, s1_mfmas(tiles, 64, 8), [] if NOLDS else s1_reads(typ, tiles, 1, 80, 36))
    a("s_add_u32 s58, s58, %d" % S1_BUF)
    a("s_cmp_eq_u32 s58, %d" % (3 * S1_BUF))
    a("s_cselect_b32 s58, 0, s58")
    a("s_waitcnt lgkmcnt(0)")
    a("s_barrier")
    m = s1_mfmas(tiles, 80, 36)
    interleave(a, m, s1_setbase(nb) + (["v_add_u32 v119, 128, v119"] if GT else []) + ([] if NOLDS else s1_reads(typ, tiles, 0, 64, 8)))
    a("s_add_u32 s59, s59, 1")
    a("s_cmp_lt_u32 s59, 10")
    a("s_waitcnt lgkmcnt(0)")
    a("s_cbranch_scc1 L_s1_loop_%s" % T)
    stamp(a, 3)
    a("v_and_b32 v2, 15, v1")
    a("v_lshrrev_b32 v3, 4, v1")
    a("s_lshl_b32 s60, s32, 7")
    a("s_lshl_b32 s63, s52, 6")
    a("s_add_u32 s60, s60, s63")
    if typ == 1:
        a("s_lshl_b32 s63, s52, 8")
        a("v_lshl_add_u32 v6, v2, 2, s63")
        if wc == 1:
            gacc = 128 + 6 * 16
            a("s_nop 4")
            for ins in ("v_cvt_pk_bf16_f32 v{r}, v{g}, v{g}", "v_lshlrev_b32 v{r}, 16, v{r}", "v_mul_f32 v{r}, 0xbfb8aa3b, v{r}", "v_exp_f32 v{r}, v{r}", "NOP",
                        "v_add_f32 v{r}, 1.0, v{r}", "v_rcp_f32 v{r}, v{r}", "NOP", "v_cvt_pk_bf16_f32 v{r}, v{r}, v{r}", "v_lshlrev_b32 v{r}, 16, v{r}",
                        "v_sub_f32 v{o}, 1.0, v{r}", "v_cvt_pk_bf16_f32 v{o}, v{o}, v{o}", "v_lshlrev_b32 v{o}, 16, v{o}"):
                if ins == "NOP":
                    a("s_nop 0"); continue
                for rt in range(4):
                    a(ins.format(r=21 + 2 * rt, o=20 + 2 * rt, g=gacc + 4 * rt))
            a("v_add_u32 v4, s60, v2")
            a("v_lshlrev_b32 v4, 2, v4")
            a("v_add_u32 v4, 0x%x, v4" % WS_G)
            a("v_cmp_eq_u32 vcc, 0, v3")
            a("s_and_saveexec_b64 s[72:73], vcc")
            for rt in range(4):
                a("ds_write_b32 v6, v%d offset:%d" % (20 + 2 * rt, rt * 64))
                a("buffer_store_dword v%d, v4, s[20:23], 0 offen offset:%d" % (21 + 2 * rt, rt * 64))
            a("s_mov_b64 exec, s[72:73]")
            a("s_waitcnt lgkmcnt(0)")
            a("s_barrier")
        else:
            a("s_barrier")
            for rt in range(4):
                a("ds_read_b32 v%d, v6 offset:%d" % (20 + 2 * rt, rt * 64))
            a("s_waitcnt lgkmcnt(0)")
    first_h = True; first_kv = True
    for ti, (kind, idx) in enumerate(tiles):
        if kind == "g":
            continue
        if kind == "h":
            if first_h:
                a("v_and_b32 v4, 1, v3")
                a("v_mul_u32_u24 v4, 192, v4")
                a("v_lshrrev_b32 v5, 1, v3")
                a("v_add_u32 v4, v4, v5")
                a("v_lshlrev_b32 v4, 8, v4")
                a("v_lshl_add_u32 v5, v2, 4, v4")
                a("s_lshr_b32 s63, s60, 4")
                a("s_mul_i32 s63, s63, 192")
                a("s_mul_i32 s64, s33, 24")
                a("s_add_u32 s63, s63, s64")
                a("s_add_u32 s63, s63, %d" % (12 * wc))
                a("s_lshl_b32 s63, s63, 8")
                a("s_add_u32 s66, s63, %d" % (2 * 192 * 256))
                first_h = False
            for p in range(2):
                accA = 128 + (ti * 4 + 2 * p) * 4
                accB = accA + 4
                for i in range(8):
                    a("v_max_f32 v%d, 0, v%d" % (accA + i, accA + i))
                for i in range(0, 8, 2):
                    a("v_pk_mul_f32 v[%d:%d], v[%d:%d], v[%d:%d]" % (accA + i, accA + i + 1, accA + i, accA + i + 1, accA + i, accA + i + 1))
                for i in range(0, 8, 2):
                    om = 20 + 2 * (2 * p + (i >> 2))
                    a("v_pk_mul_f32 v[%d:%d], v[%d:%d], v[%d:%d] op_sel_hi:[1,0]" % (accA + i, accA + i + 1, accA + i, accA + i + 1, om, om + 1))
                a("v_cvt_pk_bf16_f32 v%d, v%d, v%d" % (accA, accA, accA + 1))
                a("v_cvt_pk_bf16_f32 v%d, v%d, v%d" % (accA + 1, accA + 2, accA + 3))
                a("v_cvt_pk_bf16_f32 v%d, v%d, v%d" % (accA + 2, accB, accB + 1))
                a("v_cvt_pk_bf16_f32 v%d, v%d, v%d" % (accA + 3, accB + 2, accB + 3))
                a("s_nop 1")
                a("v_permlane16_swap_b32 v%d, v%d" % (accA, accA + 2))
                a("v_permlane16_swap_b32 v%d, v%d" % (accA + 1, accA + 3))
                a("buffer_store_dwordx4 %s, v5, s[20:23], s%d offen offset:%d" % (vr(accA), [63, 66][p], (idx % 6) * 512))
        elif kind == "q":
            if typ == 0:
                a("s_lshl_b32 s63, s33, 4")
                a("s_add_u32 s63, s63, %d" % (4 * idx))
            else:
                a("s_lshl_b32 s63, s33, 2")
                a("s_add_u32 s63, s63, 128")
            a("s_lshr_b32 s64, s60, 4")
            a("s_mul_i32 s64, s64, 160")
            a("s_add_u32 s63, s63, s64")
            a("s_lshl_b32 s63, s63, 7")
            a("s_add_u32 s63, s63, 0x%x" % WS_PQF)
            a("v_lshlrev_b32 v7, 3, v1")
            for rt in range(4):
                acc = 128 + (ti * 4 + rt) * 4
                phi4(a, acc, 12, 78, 80)
                a("v_cvt_pk_bf16_f32 v%d, v%d, v%d" % (acc, acc, acc + 1))
                a("v_cvt_pk_bf16_f32 v%d, v%d, v%d" % (acc + 1, acc + 2, acc + 3))
                a("s_add_u32 s64, s63, %d" % (rt * 160 * 128))
                a("buffer_store_dwordx2 v[%d:%d], v7, s[20:23], s64 offen" % (acc, acc + 1))
        else:
            tc0 = 16 * idx + (80 if kind == "v" else 0)
            if first_kv:
                a("v_mul_u32_u24 v5, 272, v2")
                a("v_lshlrev_b32 v6, 3, v3")
                a("s_lshl_b32 s63, s52, 7")
                a("v_add3_u32 v5, v5, v6, s63")
                first_kv = False
            for rt in range(4):
                acc = 128 + (ti * 4 + rt) * 4
                if kind == "k":
                    phi4(a, acc, 12, 78, 80)
                a("v_cvt_pk_bf16_f32 v%d, v%d, v%d" % (acc, acc, acc + 1))
                a("v_cvt_pk_bf16_f32 v%d, v%d, v%d" % (acc + 1, acc + 2, acc + 3))
                a("ds_write_b64 v5, v[%d:%d] offset:%d" % (acc, acc + 1, tc0 * 272 + rt * 32))
            if ti == 4:
                a("s_waitcnt lgkmcnt(0)")
                a("s_barrier")
                a("s_mul_i32 s63, s35, %d" % (20 * 272))
                a("v_mul_u32_u24 v5, 272, v2")
                a("v_lshlrev_b32 v6, 4, v3")
                a("v_add3_u32 v5, v5, v6, s63")
                for ks in range(4):
                    b = 16 + 16 * ks
                    a("ds_read_b128 %s, v5 offset:%d" % (vr(b), ks * 64))
                    a("ds_read_b128 %s, v5 offset:%d" % (vr(b + 4), ks * 64 + 16 * 272))
                    a("ds_read_b128 %s, v5 offset:%d" % (vr(b + 8), ks * 64 + 80 * 272))
                    a("ds_read_b128 %s, v5 offset:%d" % (vr(b + 12), ks * 64 + 96 * 272))
                a("v_cmp_eq_u32 vcc, 4, v2")
                a("v_mov_b32 v6, 0x3f803f80")
                a("s_waitcnt lgkmcnt(0)")
                for ks in range(4):
                    b = 16 + 16 * ks
                    for i in range(4):
                        a("v_cndmask_b32 v%d, v%d, v6, vcc" % (b + 12 + i, b + 12 + i))
                a("s_nop 1")
                for ks in range(4):
                    b = 16 + 16 * ks
                    c = lambda r: ("0" if ks == 0 else vr(r))
                    a("v_mfma_f32_16x16x32_bf16 v[80:83], %s, %s, %s" % (vr(b), vr(b + 8), c(80)))
                    a("v_mfma_f32_16x16x32_bf16 v[84:87], %s, %s, %s" % (vr(b), vr(b + 12), c(84)))
                    a("v_mfma_f32_16x16x32_bf16 v[88:91], %s, %s, %s" % (vr(b + 4), vr(b + 8), c(88)))
                    a("v_mfma_f32_16x16x32_bf16 v[92:95], %s, %s, %s" % (vr(b + 4), vr(b + 12), c(92)))
                a("s_lshl_b32 s63, s32, 5")
                a("s_lshl_b32 s64, s33, 2")
                a("s_add_u32 s63, s63, s64")
                a("s_add_u32 s63, s63, s35")
                a("s_mul_i32 s63, s63, 1680")
                a("s_add_u32 s63, s63, 0x%x" % WS_P)
                a("v_mul_u32_u24 v5, 80, v2")
                a("v_lshlrev_b32 v6, 4, v3")
                a("v_add_u32 v5, v5, v6")
                a("v_cmp_eq_u32 s[74:75], 0, v3")
                a("v_cmp_gt_u32 s[76:77], 5, v2")
                a("s_nop 7")
                a("buffer_store_dwordx4 v[80:83], v5, s[20:23], s63 offen")
                a("s_and_saveexec_b64 s[72:73], s[74:75]")
                a("buffer_store_dwordx4 v[88:91], v5, s[20:23], s63 offen offset:64")
                a("s_mov_b64 exec, s[76:77]")
                a("buffer_store_dwordx4 v[84:87], v5, s[20:23], s63 offen offset:1280")
                a("s_and_b64 exec, exec, s[74:75]")
                a("buffer_store_dwordx4 v[92:95], v5, s[20:23], s63 offen offset:1344")
                a("s_mov_b64 exec, s[72:73]")

    stamp(a, 4)
    stamp_flush(a, 0, 20, 35)
    a("s_endpgm")

def stage2(a):
    a.raw(".globl s2_kernel\n.p2align 8\n.type s2_kernel,@function")
    a.label("s2_kernel")
    a("""
    s_cmp_ge_u32 s2, 252
    s_cbranch_scc1 L_s2_end
    s_mov_b32 s3, s2
    s_sub_u32 s2, s2, 32
    """)
    stamp_start(a)
    a("""
    s_load_dwordx2 s[42:43], s[0:1], 56      ; b2
    s_load_dwordx4 s[44:47], s[0:1], 72
    s_load_dwordx2 s[38:39], s[0:1], 88      ; ws
    s_and_b32 s48, s2, 7
    s_lshr_b32 s49, s2, 3
    s_lshr_b32 s50, s48, 1
    s_mul_i32 s51, s50, 28
    s_cmp_eq_u32 s50, 3
    s_cselect_b32 s50, 1, 0
    s_sub_u32 s51, s51, s50
    s_add_u32 s51, s51, s49
    s_mul_i32 s50, s51, 205
    s_lshr_b32 s50, s50, 10
    s_mul_i32 s52, s50, 5
    s_sub_u32 s52, s51, s52
    s_and_b32 s53, s48, 1
    s_mul_i32 s53, s53, 5
    s_add_u32 s33, s52, s53                  ; cb
    s_mul_i32 s32, s50, 96
    s_min_u32 s32, s32, 1952                 ; row0
    v_and_b32 v1, 63, v0
    v_lshrrev_b32 v2, 6, v0
    v_lshlrev_b32 v4, 4, v1                  ; lane*16
    v_readfirstlane_b32 s35, v2
    s_waitcnt lgkmcnt(0)
    """)
    srd(a, 8, 38, WS_SIZE)
    srd(a, 20, 42, 1280)
    srd(a, 24, 44, 2621440)
    srd(a, 28, 46, 256)
    ACC = 128
    def mfmas(aset, bset):
        L = []
        for t in range(4):
            for rt in range(6):
                acc = ACC + (t * 6 + rt) * 4
                L.append("v_mfma_f32_16x16x32_bf16 %s, %s, %s, %s" % (vr(acc), vr(bset + 4 * t), vr(aset + 4 * rt), vr(acc)))
        return L
    a("""
    s_cmp_lt_u32 s3, 32
    s_cbranch_scc1 L_s2_red
    s_lshr_b32 s34, s32, 4                   ; rt0
    v_and_b32 v2, 15, v1
    v_lshrrev_b32 v3, 4, v1
    v_add_u32 v5, s32, v2
    v_lshlrev_b32 v5, 2, v5
    v_add_u32 v5, 0x%x, v5
    s_cmp_ge_u32 s35, 4
    s_cbranch_scc1 L_s2_awave
    """ % WS_G)
    a("""
    s_mul_i32 s55, s34, 192
    s_mul_i32 s60, s35, 48
    s_add_u32 s55, s55, s60
    s_lshl_b32 s55, s55, 8                   ; A soffset = (rt0*192 + 48w)*256
    s_mul_i32 s56, s35, 480
    s_lshl_b32 s60, s33, 2
    s_add_u32 s56, s56, s60
    s_lshl_b32 s56, s56, 10
    s_add_u32 s56, s56, 0x%x                 ; B soffset = W2F + (12w*40 + 4cb)*1024
    """ % WS_W2F)
    for rt in range(6):
        a("v_add_u32 v%d, %d, v4" % (224 + rt, rt * 49152))
    SETS = [(8, 32), (48, 72), (88, 112)]
    def loads(st):
        A, B = SETS[st]
        L = []
        L.append("buffer_load_dwordx4 %s, v4, s[8:11], s56 offen" % vr(B))
        for rt in range(6):
            L.append("buffer_load_dwordx4 %s, v%d, s[8:11], s55 offen" % (vr(A + 4 * rt), 224 + rt))
        for t in range(1, 4):
            L.append("buffer_load_dwordx4 %s, v4, s[8:11], s56 offen offset:%d" % (vr(B + 4 * t), t * 1024))
        L.append("s_add_u32 s55, s55, 1024")
        L.append("s_add_u32 s56, s56, %d" % (40 * 1024))
        return L
    GR = [232, 233, 234, 235, 236, 237]
    for rt in range(6):
        a("buffer_load_dword v%d, v5, s[8:11], 0 offen offset:%d" % (GR[rt], rt * 64))
    for s in loads(0): a(s)
    for s in loads(1): a(s)
    stamp(a, 1)
    for r in range(0, 96, 2):
        a("v_pk_mov_b32 v[%d:%d], 0, 0" % (ACC + r, ACC + r + 1))
    a("s_mov_b32 s59, 0")
    stamp(a, 2)
    a.label("L_s2_bloop")
    for st in range(3):
        a("s_waitcnt vmcnt(10)")
        A, B = SETS[st]
        interleave(a, mfmas(A, B), loads((st + 2) % 3), start=1, every=2)
    a("s_add_u32 s59, s59, 1")
    a("s_cmp_lt_u32 s59, 3")
    a("s_cbranch_scc1 L_s2_bloop")
    a("s_mul_i32 s57, s35, 200")
    a("s_lshl_b32 s60, s33, 2")
    a("s_add_u32 s57, s57, s60")
    a("s_lshl_b32 s57, s57, 10")
    a("s_add_u32 s57, s57, 0x%x" % WS_WOF)
    def wl(step):
        L = []
        for t in range(4):
            L.append("buffer_load_dwordx4 %s, v4, s[8:11], s57 offen offset:%d" % (vr(8 + 16 * step + 4 * t), t * 1024))
        L.append("s_add_u32 s57, s57, %d" % (40 * 1024))
        return L
    a("s_waitcnt vmcnt(10)")
    interleave(a, mfmas(*SETS[0]), loads(2), start=1, every=2)
    a("s_waitcnt vmcnt(10)")
    interleave(a, mfmas(*SETS[1]), wl(0) + wl(1), start=1, every=2)
    a("s_waitcnt vmcnt(8)")
    interleave(a, mfmas(*SETS[2]), wl(2) + wl(3) + wl(4), start=1, every=1)
    stamp(a, 3)
    for rt in range(6):
        a("v_sub_f32 v%d, 1.0, v%d" % (112 + 2 * rt, GR[rt]))
        a("v_cvt_pk_bf16_f32 v%d, v%d, v%d" % (112 + 2 * rt, 112 + 2 * rt, 112 + 2 * rt))
        a("v_lshlrev_b32 v%d, 16, v%d" % (112 + 2 * rt, 112 + 2 * rt))
    a("s_mul_i32 s60, s35, 30720")
    a("v_add_u32 v5, s60, v4")
    a("s_barrier")
    AB = [88, 224]
    def oreads(step):
        return ["ds_read_b128 %s, v5 offset:%d" % (vr(AB[step & 1] + 4 * rt), rt * 5120 + step * 1024) for rt in range(6)]
    for s in oreads(0): a(s)
    for step in range(5):
        a("s_waitcnt vmcnt(%d) lgkmcnt(0)" % (16 - 4 * step))
        interleave(a, mfmas(AB[step & 1], 8 + 16 * step), oreads(step + 1) if step < 4 else [], start=2, every=2)
    stamp(a, 4)
    a("v_and_b32 v2, 15, v1")
    a("v_lshrrev_b32 v3, 4, v1")
    a("s_lshl_b32 s60, s33, 7")
    a("s_lshl_b32 s61, s35, 5")
    a("s_add_u32 s60, s60, s61")
    a("v_lshlrev_b32 v6, 3, v3")
    a("buffer_load_dwordx2 v[8:9], v6, s[20:23], s60 offen")
    a("s_barrier")
    for w in range(4):
        a("s_cmp_lg_u32 s35, %d" % w)
        a("s_cbranch_scc1 L_s2_fw%d" % w)
        for t in range(4):
            if t == w: continue
            si = w if w < t else w - 1
            for rt in range(6):
                off = (t * 3 + si) * 6144 + rt * 1024
                if off < 65536:
                    a("ds_write_b128 v4, %s offset:%d" % (vr(ACC + (t * 6 + rt) * 4), off))
                else:
                    if rt == 0 or (t * 3 + si) * 6144 + (rt - 1) * 1024 < 65536:
                        a("v_add_u32 v7, 0x10000, v4")
                    a("ds_write_b128 v7, %s offset:%d" % (vr(ACC + (t * 6 + rt) * 4), off - 65536))
        for rt in range(6):
            for i in (0, 2):
                src = ACC + (w * 6 + rt) * 4 + i
                a("v_pk_mov_b32 v[%d:%d], v[%d:%d], v[%d:%d] op_sel:[0,1]" % (16 + 4 * rt + i, 17 + 4 * rt + i, src, src + 1, src, src + 1))
        a.label("L_s2_fw%d" % w)
    a("s_mul_i32 s61, s35, %d" % (3 * 6144))
    a("v_add_u32 v7, s61, v4")
    a("s_waitcnt lgkmcnt(0)")
    a("s_barrier")
    for si in range(3):
        for rt in range(6):
            a("ds_read_b128 %s, v7 offset:%d" % (vr(40 + (si * 6 + rt) * 4), si * 6144 + rt * 1024))
    a("v_and_b32 v6, 1, v3")
    a("v_lshl_add_u32 v6, v6, 4, v2")
    a("v_add_u32 v6, s32, v6")
    a("v_mul_u32_u24 v6, 1280, v6")
    a("v_lshrrev_b32 v5, 1, v3")
    a("v_lshl_add_u32 v6, v5, 4, v6")
    a("s_waitcnt vmcnt(0)")
    a("v_lshlrev_b32 v10, 16, v8")
    a("v_and_b32 v11, 0xffff0000, v8")
    a("v_lshlrev_b32 v12, 16, v9")
    a("v_and_b32 v13, 0xffff0000, v9")
    for rt in range(6):
        o = 16 + 4 * rt
        for i in (0, 2):
            a("v_pk_fma_f32 v[%d:%d], v[%d:%d], v[%d:%d], v[%d:%d] op_sel_hi:[1,0,1]" % (o + i, o + i + 1, 10 + i, 11 + i, 112 + 2 * rt, 113 + 2 * rt, o + i, o + i + 1))
    for si in range(3):
        a("s_waitcnt lgkmcnt(%d)" % (12 - 6 * si))
        for rt in range(6):
            o = 16 + 4 * rt; q = 40 + (si * 6 + rt) * 4
            for i in (0, 2):
                a("v_pk_add_f32 v[%d:%d], v[%d:%d], v[%d:%d]" % (o + i, o + i + 1, o + i, o + i + 1, q + i, q + i + 1))
    for p in range(3):
        A_, B_ = 16 + 8 * p, 20 + 8 * p
        a("v_cvt_pk_bf16_f32 v%d, v%d, v%d" % (A_, A_, A_ + 1))
        a("v_cvt_pk_bf16_f32 v%d, v%d, v%d" % (A_ + 1, A_ + 2, A_ + 3))
        a("v_cvt_pk_bf16_f32 v%d, v%d, v%d" % (A_ + 2, B_, B_ + 1))
        a("v_cvt_pk_bf16_f32 v%d, v%d, v%d" % (A_ + 3, B_ + 2, B_ + 3))
        a("s_add_u32 s62, s60, %d" % (p * 32 * 1280))
        a("s_nop 0")
        a("v_permlane16_swap_b32 v%d, v%d" % (A_, A_ + 2))
        a("v_permlane16_swap_b32 v%d, v%d" % (A_ + 1, A_ + 3))
        a("buffer_store_dwordx4 %s, v6, s[24:27], s62 offen" % vr(A_))
    stamp_flush(a, 2, 8, 35)
    a("s_endpgm")
    a.label("L_s2_awave")
    a("s_setprio 2")
    F, PQB, Z, OA, RY, T1 = 8, [40, 64], 88, 112, 136, 184
    G = [92, 93, 94, 95, 96, 97]
    DS = 98
    a("""
    s_sub_u32 s58, s35, 4                    ; aw
    s_mul_i32 s54, s58, 30720
    s_mul_i32 s60, s34, 160
    s_mul_i32 s61, s58, 40
    s_add_u32 s60, s60, s61
    s_lshl_b32 s60, s60, 7
    s_add_u32 s60, s60, 0x%x
    """ % WS_PQF)
    a("v_cmp_gt_u32 s[82:83], 48, v1")
    a("v_cmp_gt_u32 s[84:85], 32, v1")
    a("s_lshl_b32 s61, s58, 3")
    a("s_mul_i32 s61, s61, 1536")
    a("s_add_u32 s61, s61, 0x%x" % WS_KVT)
    for r in range(8, 40, 2):
        a("v_pk_mov_b32 v[%d:%d], 0, 0" % (r, r + 1))
    def pqreads(j):
        P = PQB[j & 1]
        a("s_mov_b64 exec, s[82:83]")
        for rt in range(6):
            a("ds_read_b64 v[%d:%d], v6 offset:%d" % (P + 4 * rt, P + 4 * rt + 1, rt * 5120 + j * 640))
        a("s_mov_b64 exec, s[84:85]")
        for rt in range(6):
            a("ds_read_b64 v[%d:%d], v6 offset:%d" % (P + 4 * rt + 2, P + 4 * rt + 3, rt * 5120 + j * 640 + 128))
        a("s_mov_b64 exec, -1")
    def fload(j):
        a("s_mov_b64 exec, s[82:83]")
        a("buffer_load_dwordx4 %s, v4, s[8:11], s61 offen sc1" % vr(F + 8 * (j & 3)))
        a("buffer_load_dwordx4 %s, v4, s[8:11], s61 offen offset:768 sc1" % vr(F + 8 * (j & 3) + 4))
        a("s_mov_b64 exec, -1")
        a("s_add_u32 s61, s61, 1536")
    for rt in range(6):
        a("buffer_load_dword v%d, v5, s[8:11], 0 offen offset:%d" % (G[rt], rt * 64))
    for i in range(5):
        for rt in range(6):
            a("s_add_u32 m0, s54, %d" % (rt * 5120 + i * 1024))
            a("s_add_u32 s64, s60, %d" % (rt * 160 * 128 + i * 1024))
            a("buffer_load_dwordx4 v4, s[8:11], s64 offen lds")
    stamp(a, 1)
    a("v_lshrrev_b32 v0, 2, v2")
    for jj in range(4):
        a("v_cmp_ne_u32 s[%d:%d], %d, v0" % (66 + 2 * jj, 67 + 2 * jj, jj))
        a("v_cmp_eq_u32 s[%d:%d], %d, v3" % (74 + 2 * jj, 75 + 2 * jj, jj))
    a("v_lshlrev_b32 v6, 8, v3")
    a("v_lshl_add_u32 v6, v2, 3, v6")
    a("v_add_u32 v6, s54, v6")
    a("v_add_u32 v7, s54, v4")
    for r in list(range(40, 88, 2)) + list(range(98, 110, 2)) + list(range(T1, T1 + 48, 2)):
        a("v_pk_mov_b32 v[%d:%d], 0, 0" % (r, r + 1))
    for i in range(4):
        a("v_mov_b32 v%d, %s" % (232 + i, EPS))
    a("s_lshl_b32 s62, s58, 6")
    a("v_mov_b32 v1, s62")
    a("s_mov_b32 s63, 0")
    a.label("L_s2_poll")
    a("buffer_load_dword v0, v1, s[28:31], 0 offen sc1")
    a("s_waitcnt vmcnt(0)")
    a("v_readfirstlane_b32 s62, v0")
    a("s_add_u32 s63, s63, 1")
    a("s_cmp_ge_u32 s62, 8")
    a("s_cbranch_scc1 L_s2_ready")
    a("s_cmp_ge_u32 s63, 100000")
    a("s_cbranch_scc1 L_s2_ready")
    a("s_sleep 8")
    a("s_branch L_s2_poll")
    a.label("L_s2_ready")
    stamp(a, 2)
    for j in range(4):
        fload(j)
    pqreads(0)
    for j in range(8):
        jj = j & 3
        f0, f1 = F + 8 * jj, F + 8 * jj + 4
        P = PQB[j & 1]
        a("s_waitcnt vmcnt(%d)" % [6, 6, 6, 6, 6, 4, 2, 0][j])
        for i in range(4):
            a("v_mov_b32_dpp v%d, v%d row_newbcast:%d row_mask:0xf bank_mask:0xf" % (Z + i, f1 + i, (4 * jj + 4) & 15))
        a("s_nop 0")
        for i in range(4):
            a("v_cndmask_b32 v%d, v%d, 0, s[%d:%d]" % (f1 + i, f1 + i, 66 + 2 * jj, 67 + 2 * jj))
        a("s_waitcnt lgkmcnt(0)")
        if j < 7:
            pqreads(j + 1)
        else:
            a("s_nop 0")
        for rt in range(6):
            a("v_mfma_f32_16x16x32_bf16 %s, %s, %s, v[232:235]" % (vr(RY + 8 * rt + 4), vr(Z), vr(P + 4 * rt)))
        for rt in range(6):
            a("v_mfma_f32_16x16x32_bf16 %s, %s, %s, 0" % (vr(RY + 8 * rt), vr(f0), vr(P + 4 * rt)))
        for rt in range(6):
            t1 = T1 + ((j >> 2) * 6 + rt) * 4
            a("v_mfma_f32_16x16x32_bf16 %s, %s, %s, %s" % (vr(t1), vr(f1), vr(P + 4 * rt), vr(t1)))
            a("v_rcp_f32 v%d, v%d" % (RY + 8 * rt + 4, RY + 8 * rt + 4))
        if j < 4:
            fload(j + 4)
        else:
            a("s_nop 0")
        for rt in range(6):
            a("v_mul_f32 v%d, v%d, v%d" % (RY + 8 * rt + 4, RY + 8 * rt + 4, G[rt]))
        for rt in range(6):
            t0 = RY + 8 * rt
            for i in (0, 2):
                a("v_pk_mul_f32 v[%d:%d], v[%d:%d], v[%d:%d] op_sel_hi:[1,0]" % (t0 + i, t0 + i + 1, t0 + i, t0 + i + 1, t0 + 4, t0 + 5))
        for rt in range(6):
            t0 = RY + 8 * rt
            ds = DS + (j >> 2) * 6 + rt
            a("v_cndmask_b32 v%d, v%d, v%d, s[%d:%d]" % (ds, ds, t0 + 4, 74 + 2 * jj, 75 + 2 * jj))
        for rt in range(6):
            t0 = RY + 8 * rt
            oa = OA + 4 * rt + 2 * (j & 1)
            a("v_cvt_pk_bf16_f32 v%d, v%d, v%d" % (oa, t0, t0 + 1))
            a("v_cvt_pk_bf16_f32 v%d, v%d, v%d" % (oa + 1, t0 + 2, t0 + 3))
        if j & 1:
            a("s_waitcnt lgkmcnt(0)")
            for rt in range(6):
                a("ds_write_b128 v7, %s offset:%d" % (vr(OA + 4 * rt), rt * 5120 + (j >> 1) * 1024))
    for rt in range(6):
        for q in range(2):
            t1 = T1 + (q * 6 + rt) * 4
            ds = DS + q * 6 + rt
            for i in range(4):
                a("v_mul_f32 v%d, v%d, v%d" % (t1 + i, t1 + i, ds))
            oa = RY + 4 * rt + 2 * q
            a("v_cvt_pk_bf16_f32 v%d, v%d, v%d" % (oa, t1, t1 + 1))
            a("v_cvt_pk_bf16_f32 v%d, v%d, v%d" % (oa + 1, t1 + 2, t1 + 3))
        a("ds_write_b128 v7, %s offset:%d" % (vr(RY + 4 * rt), rt * 5120 + 4096))
    stamp(a, 3)
    stamp(a, 4)
    a("s_waitcnt lgkmcnt(0)")
    a("s_barrier")
    stamp_flush(a, 2, 8, 35)
    a("s_endpgm")
    a.label("L_s2_red")
    a("""
    s_cmp_lg_u32 s35, 0
    s_cbranch_scc1 L_s2_end
    v_mul_u32_u24 v4, 171, v1
    v_lshrrev_b32 v4, 9, v4                  ; e
    v_mul_u32_u24 v5, 3, v4
    v_sub_u32 v5, v1, v5                     ; g'
    v_mul_u32_u24 v6, 80, v4
    v_lshl_add_u32 v6, v5, 5, v6
    v_add_u32 v7, 16, v6
    v_mov_b32 v8, 0x7000000
    v_cmp_eq_u32 vcc, 2, v5
    s_mul_i32 s66, s3, 1680
    s_add_u32 s66, s66, 0x%x
    s_nop 0
    v_cndmask_b32 v7, v7, v8, vcc
    v_cmp_gt_u32 vcc, 63, v1
    s_and_saveexec_b64 s[72:73], vcc
    """ % WS_P)
    for rb in range(16):
        a("buffer_load_dwordx4 %s, v6, s[8:11], s66 offen" % vr(16 + 8 * rb))
        a("buffer_load_dwordx4 %s, v7, s[8:11], s66 offen" % vr(20 + 8 * rb))
        if rb < 15:
            a("s_add_u32 s66, s66, %d" % (32 * 1680))
    a("""
    s_and_b32 s67, s3, 3
    s_lshl_b32 s67, s67, 2
    s_sub_u32 s68, s67, 16
    v_add_u32 v8, s68, v4
    v_and_b32 v8, 15, v8
    v_add_u32 v8, 48, v8
    v_cmp_gt_u32 vcc, 16, v4
    s_mul_i32 s66, s3, 1536
    s_add_u32 s66, s66, 0x%x
    v_cndmask_b32 v8, v8, v4, vcc
    v_lshlrev_b32 v8, 4, v8
    v_lshl_add_u32 v8, v5, 8, v8
    """ % WS_KVT)
    for rb in range(1, 16):
        a("s_waitcnt vmcnt(%d)" % (30 - 2 * rb))
        for i in range(0, 8, 2):
            a("v_pk_add_f32 v[%d:%d], v[%d:%d], v[%d:%d]" % (16 + i, 17 + i, 16 + i, 17 + i, 16 + 8 * rb + i, 17 + 8 * rb + i))
    for i in range(4):
        a("v_cvt_pk_bf16_f32 v%d, v%d, v%d" % (12 + i, 16 + 2 * i, 17 + 2 * i))
    a("""
    buffer_store_dwordx4 v[12:15], v8, s[8:11], s66 offen sc1
    s_waitcnt vmcnt(0)
    v_mov_b32 v2, 1
    s_lshr_b32 s66, s3, 3
    s_lshl_b32 s66, s66, 6
    v_mov_b32 v3, s66
    s_mov_b64 exec, 1
    buffer_atomic_add v2, v3, s[28:31], 0 offen sc1
    s_waitcnt vmcnt(0)
    """)
    a.label("L_s2_end")
    a("s_endpgm")

def kd(name, vgpr, accum, sgpr=100):
    return """.amdhsa_kernel %s
  .amdhsa_next_free_vgpr %d
  .amdhsa_next_free_sgpr %d
  .amdhsa_accum_offset %d
  .amdhsa_group_segment_fixed_size 0
  .amdhsa_kernarg_size 96
  .amdhsa_user_sgpr_count 2
  .amdhsa_user_sgpr_kernarg_segment_ptr 1
  .amdhsa_system_sgpr_workgroup_id_x 1
.end_amdhsa_kernel
""" % (name, vgpr, sgpr, accum)

def main():
    a = Asm()
    hdr = open("cdna_kernels/%s.s.ref" % NAME).read().split("; Override launch")[0]
    out = hdr
    out += "; @launch kernel=s1_kernel grid=(256,1,1) block=(448,1,1) lds=%d\n" % (3 * S1_BUF + 16384)
    out += "; @launch kernel=s2_kernel grid=(252,1,1) block=(512,1,1) lds=122880\n"
    out += '.amdgcn_target "amdgcn-amd-amdhsa--gfx950"\n.text\n'
    stage1(a)
    stage2(a)
    out += a.text()
    out += '.section .rodata,"a"\n.p2align 6\n'
    out += kd("s1_kernel", 256, 256)
    out += ".p2align 6\n" + kd("s2_kernel", 256, 256)
    dst = sys.argv[1] if len(sys.argv) > 1 else "cdna_kernels/%s.s" % NAME
    open(dst, "w").write(out)

main()
```

```python
import sys, os

NAME = "gated_mix__linear_attn_block__dense_activation_squared_relu__prompt"

WS_H   = 0x000000
WS_PQF = 0x600000
WS_P   = 0x900000
WS_KVT = 0xA00000
WS_G   = 0xA10000
WS_W2F = 0xC00000
WS_WOF = 0xE00000
WS_SIZE = 0x1000000
STAMP = int(os.environ.get("STAMP", "0"))
WS_STAMP = 0xB00000

class Asm:
    def __init__(self):
        self.L = []
    def __call__(self, s):
        for ln in s.strip("\n").split("\n"):
            if ln.strip():
                self.L.append("  " + ln.strip())
    def label(self, l):
        self.L.append(l + ":")
    def raw(self, s):
        self.L.append(s)
    def text(self):
        return "\n".join(self.L) + "\n"

def vr(b, n=4):
    return "v[%d:%d]" % (b, b + n - 1)

def srd(a, d, lo, size):
    a("s_mov_b32 s%d, s%d" % (d, lo))
    a("s_and_b32 s%d, s%d, 0xffff" % (d + 1, lo + 1))
    a("s_mov_b32 s%d, 0x%x" % (d + 2, size))
    a("s_mov_b32 s%d, 0x00020000" % (d + 3))

def interleave(a, main, side, start=1, every=1):
    side = list(side)
    for i, m in enumerate(main):
        a(m)
        if i >= start - 1 and (i - (start - 1)) % every == 0 and side:
            a(side.pop(0))
    for s in side:
        a(s)

DBG = int(os.environ.get("DBG", "0"))
def dbg_start(a):
    if DBG:
        a("s_memrealtime s[96:97]")
def dbg_end1(a):
    if DBG:
        a("s_waitcnt vmcnt(0)")
        a("s_memrealtime s[98:99]")
        a("s_waitcnt lgkmcnt(0)")
        a("s_or_b32 s97, s2, s35")
        a("s_cmp_lg_u32 s97, 0")
        a("s_cbranch_scc1 L_dbg1_%d" % len(a.L))
        lab = "L_dbg1_%d" % (len(a.L) - 1)
        a("v_mov_b32 v2, s96")
        a("v_mov_b32 v3, s98")
        a("v_mov_b32 v4, 0x%x" % WS_STAMP)
        a("s_mov_b64 exec, 1")
        a("buffer_store_dwordx2 v[2:3], v4, s[20:23], 0 offen")
        a("s_waitcnt vmcnt(0)")
        a.label(lab)
def dbg_end2(a):
    if DBG:
        a("s_waitcnt vmcnt(0)")
        a("s_memrealtime s[98:99]")
        a("s_waitcnt lgkmcnt(0)")
        a("s_or_b32 s97, s2, s35")
        a("s_cmp_lg_u32 s97, 0")
        a("s_cbranch_scc1 L_dbg2")
        a("v_mov_b32 v4, 0x%x" % WS_STAMP)
        a("s_mov_b64 exec, 1")
        a("buffer_load_dwordx2 v[8:9], v4, s[8:11], 0 offen")
        a("v_mov_b32 v10, s96")
        a("v_mov_b32 v11, s98")
        a("v_mov_b32 v4, 16")
        a("s_waitcnt vmcnt(0)")
        a("buffer_store_dwordx4 v[8:11], v4, s[28:31], 0 offen")
        a("s_waitcnt vmcnt(0)")
        a.label("L_dbg2")
def stamp_start(a):
    dbg_start(a)
    if STAMP:
        a("s_memrealtime s[86:87]")
        a("s_waitcnt lgkmcnt(0)")
        a("s_mov_b32 s94, s86")
        stamp(a, 0)
def stamp(a, idx):
    if STAMP:
        a("s_memtime s[86:87]")
        a("s_waitcnt lgkmcnt(0)")
        a("s_mov_b32 s%d, s86" % (88 + idx))
def stamp_flush(a, kern, srdreg, wavereg):
    if STAMP:
        a("s_waitcnt vmcnt(0)")
        stamp(a, 5)
        a("s_memrealtime s[86:87]")
        a("s_waitcnt lgkmcnt(0)")
        a("s_mov_b32 s95, s86")
        a("s_lshl_b32 s86, s2, 3")
        a("s_add_u32 s86, s86, s%d" % wavereg)
        a("s_lshl_b32 s86, s86, 5")
        a("s_add_u32 s86, s86, 0x%x" % (WS_STAMP + kern * 0x10000))
        a("s_mov_b64 exec, 1")
        for i in range(8):
            a("v_mov_b32 v2, s%d" % (88 + i))
            a("v_mov_b32 v3, %d" % (4 * i))
            a("buffer_store_dword v2, v3, s[%d:%d], s86 offen" % (srdreg, srdreg + 3))
        a("s_waitcnt vmcnt(0)")

LOG2E = "0x3fb8aa3b"
EPS = "0x358637bd"

def phi4(a, src, tmp, sl, se):
    for i in (0, 2):
        a("v_pk_mul_f32 v[%d:%d], v[%d:%d], s[%d:%d]" % (tmp + i, tmp + i + 1, src + i, src + i + 1, sl, sl + 1))
    for i in range(4):
        a("v_min_f32 v%d, 0, v%d" % (tmp + i, tmp + i))
    for i in range(4):
        a("v_exp_f32 v%d, v%d" % (tmp + i, tmp + i))
    for i in range(4):
        a("v_max_f32 v%d, 0, v%d" % (src + i, src + i))
    for i in (0, 2):
        a("v_pk_add_f32 v[%d:%d], v[%d:%d], v[%d:%d]" % (src + i, src + i + 1, src + i, src + i + 1, tmp + i, tmp + i + 1))
    for i in (0, 2):
        a("v_pk_add_f32 v[%d:%d], v[%d:%d], s[%d:%d]" % (src + i, src + i + 1, src + i, src + i + 1, se, se + 1))

def swap23_v(a, d, s, t):
    a("v_and_b32 v%d, 3, v%d" % (d, s))
    a("v_and_b32 v%d, 4, v%d" % (t, s))
    a("v_lshlrev_b32 v%d, 1, v%d" % (t, t))
    a("v_or_b32 v%d, v%d, v%d" % (d, d, t))
    a("v_and_b32 v%d, 8, v%d" % (t, s))
    a("v_lshrrev_b32 v%d, 1, v%d" % (t, t))
    a("v_or_b32 v%d, v%d, v%d" % (d, d, t))

S1_BUF = 45056
def stage1(a):
    a.raw(".globl s1_kernel\n.p2align 8\n.type s1_kernel,@function")
    a.label("s1_kernel")
    a("""
    s_cmp_ge_u32 s2, 256
    s_cbranch_scc1 L_s1_end
    """)
    stamp_start(a)
    a("""
    s_load_dwordx4 s[36:39], s[0:1], 0
    s_load_dwordx4 s[40:43], s[0:1], 32
    s_load_dwordx2 s[44:45], s[0:1], 64
    s_load_dwordx2 s[46:47], s[0:1], 88
    s_load_dwordx2 s[66:67], s[0:1], 16
    s_load_dwordx2 s[68:69], s[0:1], 48
    s_load_dwordx2 s[70:71], s[0:1], 80
    s_and_b32 s48, s2, 7
    s_lshr_b32 s49, s2, 3
    s_and_b32 s50, s48, 1
    s_lshl_b32 s50, s50, 3
    s_and_b32 s51, s49, 7
    s_add_u32 s32, s50, s51          ; rb
    s_lshr_b32 s50, s48, 1
    s_lshl_b32 s50, s50, 2
    s_lshr_b32 s51, s49, 3
    s_add_u32 s65, s50, s51          ; cg
    s_and_b32 s34, s65, 1            ; type
    s_lshr_b32 s33, s65, 1           ; jj
    v_and_b32 v1, 63, v0
    v_lshrrev_b32 v2, 6, v0
    s_nop 0
    v_readfirstlane_b32 s35, v2      ; wave
    s_nop 3
    s_lshr_b32 s52, s35, 1           ; wr
    s_and_b32 s53, s35, 1            ; wc
    s_mov_b32 s57, 0
    s_mov_b32 s58, 0
    s_mov_b32 s59, 0
    s_waitcnt lgkmcnt(0)
    """)
    srd(a, 8, 36, 2621440)
    srd(a, 12, 38, 2457600)
    srd(a, 16, 40, 1966080)
    srd(a, 20, 46, WS_SIZE)
    srd(a, 24, 42, 3072)
    srd(a, 28, 44, 1280)
    srd(a, 4, 70, 256)
    a("s_cmp_eq_u32 s35, 4")
    a("s_cbranch_scc1 L_s1_loader")
    a("s_cmp_eq_u32 s35, 5")
    a("s_cbranch_scc1 L_s1_loaderX")
    a("s_cmp_eq_u32 s35, 6")
    a("s_cbranch_scc1 L_s1_aux")
    a("""
    s_mov_b32 s78, %s
    s_mov_b32 s79, %s
    s_mov_b32 s80, %s
    s_mov_b32 s81, %s
    """ % (LOG2E, LOG2E, EPS, EPS))
    a("""
    v_and_b32 v2, 15, v1             ; m
    v_lshrrev_b32 v3, 4, v1          ; g
    s_lshl_b32 s60, s52, 6
    v_add_u32 v4, s60, v2
    v_lshlrev_b32 v4, 7, v4
    v_lshrrev_b32 v5, 1, v2
    v_xor_b32 v5, v5, v3
    v_lshlrev_b32 v6, 4, v5
    v_add_u32 v105, v4, v6
    v_xor_b32 v5, 4, v5
    v_lshlrev_b32 v6, 4, v5
    v_add_u32 v106, v4, v6
    v_lshrrev_b32 v4, 2, v1
    v_and_b32 v4, 3, v4              ; r
    v_and_b32 v5, 3, v1
    v_lshlrev_b32 v5, 3, v5          ; c*8
    v_lshrrev_b32 v6, 1, v3
    v_lshlrev_b32 v6, 4, v6
    v_and_b32 v7, 1, v3              ; g&1
    v_lshlrev_b32 v2, 2, v7
    v_add3_u32 v6, v6, v2, v4        ; pil
    s_cmp_eq_u32 s34, 1
    s_cbranch_scc1 L_s1_typeB
    """)
    for typ in (0, 1):
        if typ == 1:
            a.label("L_s1_typeB")
        stage1_type(a, typ)
    a.label("L_s1_loader")
    a("s_cmp_eq_u32 s34, 1")
    a("s_cbranch_scc1 L_s1_loaderB")
    stage1_loader(a, 0)
    a.label("L_s1_loaderB")
    stage1_loader(a, 1)
    a.label("L_s1_loaderX")
    stage1_loader(a, 2)
    a.label("L_s1_aux")
    stage1_aux(a)
    a.label("L_s1_end")
    a("s_endpgm")

def stage1_transposer_old(a):
    a("""
    s_lshl_b32 s60, s2, 2
    s_add_u32 s60, s60, s35
    s_cmp_ge_u32 s60, 720
    s_cbranch_scc1 L_s1_tr_done
    s_lshl_b32 s61, s35, 12
    s_add_u32 s61, s61, %d                   ; scratch base
    v_lshrrev_b32 v2, 3, v1                  ; lr
    v_and_b32 v4, 7, v1
    v_lshrrev_b32 v5, 4, v1
    v_lshlrev_b32 v5, 1, v5
    v_xor_b32 v6, v4, v5
    v_lshlrev_b32 v6, 4, v6                  ; colpart
    v_and_b32 v3, 3, v2
    v_lshrrev_b32 v4, 2, v2                  ; lr>>2
    s_cmp_ge_u32 s60, 480
    s_cbranch_scc1 L_s1_tr_wo
    """ % (3 * S1_BUF))
    srd(a, 72, 68, 1966080)
    a("""
    s_mul_i32 s62, s60, 6554
    s_lshr_b32 s62, s62, 16                  ; ks = u/10
    s_mul_i32 s63, s62, 10
    s_sub_u32 s63, s60, s63                  ; cb
    s_mul_i32 s70, s62, %d
    s_lshl_b32 s71, s63, 7
    s_add_u32 s70, s70, s71                  ; src soffset
    s_mul_i32 s71, s62, 40
    s_lshl_b32 s63, s63, 2
    s_add_u32 s71, s71, s63
    s_lshl_b32 s71, s71, 10
    s_add_u32 s71, s71, 0x%x                 ; dst offset
    v_lshlrev_b32 v5, 3, v4
    v_add_u32 v5, v5, v3
    v_mul_u32_u24 v5, 1280, v5
    v_add_u32 v7, v5, v6
    """ % (32 * 1280, WS_W2F))
    for i in range(4):
        a("s_add_u32 m0, s61, %d" % (i * 1024))
        a("s_add_u32 s64, s70, %d" % ((16 * (i >> 1) + 4 * (i & 1)) * 1280))
        a("buffer_load_dwordx4 v7, s[72:75], s64 offen lds")
    a("s_branch L_s1_tr_go")
    a.label("L_s1_tr_wo")
    srd(a, 72, 66, 819200)
    a("""
    s_sub_u32 s60, s60, 480
    s_mul_i32 s62, s60, 6554
    s_lshr_b32 s62, s62, 16                  ; st = u/10 (0..23)
    s_mul_i32 s63, s62, 10
    s_sub_u32 s63, s60, s63                  ; cb
    s_mul_i32 s71, s62, 40
    s_lshl_b32 s64, s63, 2
    s_add_u32 s71, s71, s64
    s_lshl_b32 s71, s71, 10
    s_add_u32 s71, s71, 0x%x                 ; dst offset
    s_mul_i32 s64, s62, 21846
    s_lshr_b32 s64, s64, 16                  ; wg8 = st/3
    s_mul_i32 s70, s64, 3
    s_sub_u32 s62, s62, s70                  ; step = st%%3
    s_mul_i32 s70, s64, %d                   ; 80*wg8 rows
    s_lshl_b32 s63, s63, 7
    s_add_u32 s70, s70, s63
    s_cmp_eq_u32 s62, 2
    s_cbranch_scc1 L_s1_tr_wo2
    s_mul_i32 s62, s62, %d                   ; 40 rows per pair step
    s_add_u32 s70, s70, s62
    v_mul_u32_u24 v5, 1280, v2
    v_add_u32 v7, v5, v6
    """ % (WS_WOF, 80 * 1280, 40 * 1280))
    for i in range(4):
        row = 20 * (i & 1) + 8 * ((i >> 1) & 1)
        a("s_add_u32 m0, s61, %d" % (i * 1024))
        a("s_add_u32 s64, s70, %d" % (row * 1280))
        a("buffer_load_dwordx4 v7, s[72:75], s64 offen lds")
    a("s_branch L_s1_tr_go")
    a.label("L_s1_tr_wo2")
    a("""
    v_mul_u32_u24 v5, 20, v4
    v_add_u32 v5, v5, v3
    v_mul_u32_u24 v5, 1280, v5
    v_add_u32 v7, v5, v6
    """)
    for i in range(4):
        row = 20 * (2 * ((i >> 1) & 1)) + 16
        a("s_add_u32 m0, s61, %d" % (i * 1024))
        a("s_add_u32 s64, s70, %d" % (row * 1280))
        a("buffer_load_dwordx4 v7, s[72:75], s64 offen lds")
    a.label("L_s1_tr_go")
    a("""
    v_lshrrev_b32 v3, 4, v1
    v_lshrrev_b32 v4, 2, v1
    v_and_b32 v4, 3, v4
    v_and_b32 v5, 3, v1
    v_lshlrev_b32 v5, 3, v5
    v_lshrrev_b32 v6, 1, v3
    v_lshlrev_b32 v6, 4, v6
    v_and_b32 v7, 1, v3
    v_lshlrev_b32 v7, 2, v7
    v_add3_u32 v6, v6, v7, v4
    v_lshrrev_b32 v7, 1, v6
    v_and_b32 v7, 3, v7
    v_lshlrev_b32 v6, 7, v6
    v_add3_u32 v6, v6, v5, s61
    v_lshlrev_b32 v2, 4, v1
    s_waitcnt vmcnt(0)
    """)
    for t in range(4):
        a("v_xor_b32 v4, %d, v7" % t)
        a("v_lshl_add_u32 v4, v4, 5, v6")
        a("ds_read_b64_tr_b16 v[%d:%d], v4" % (8 + 4 * t, 9 + 4 * t))
        a("ds_read_b64_tr_b16 v[%d:%d], v4 offset:1024" % (10 + 4 * t, 11 + 4 * t))
    a("s_waitcnt lgkmcnt(0)")
    for t in range(4):
        a("buffer_store_dwordx4 %s, v2, s[20:23], s71 offen offset:%d" % (vr(8 + 4 * t), t * 1024))
    a("s_nop 1")
    a.label("L_s1_tr_done")


def stage1_aux(a):
    SCR = 3 * S1_BUF
    a("v_lshlrev_b32 v2, 4, v1")
    a("s_mov_b32 m0, %d" % (SCR + 12288))
    a("s_nop 0")
    a("buffer_load_dwordx4 v2, s[28:31], 0 offen lds")
    a("buffer_load_dwordx4 v2, s[28:31], 0 offen offset:1024 lds")
    a("s_waitcnt vmcnt(0)")
    a("s_barrier")
    srd(a, 72, 68, 1966080)
    srd(a, 76, 66, 819200)
    a("""
    v_lshrrev_b32 v2, 3, v1                  ; lr
    v_and_b32 v4, 7, v1
    v_lshrrev_b32 v5, 4, v1
    v_lshlrev_b32 v5, 1, v5
    v_xor_b32 v6, v4, v5
    v_lshlrev_b32 v6, 4, v6                  ; colpart
    v_and_b32 v3, 3, v2
    v_lshrrev_b32 v4, 2, v2                  ; lr>>2
    v_lshlrev_b32 v5, 3, v4
    v_add_u32 v5, v5, v3
    v_mul_u32_u24 v5, 1280, v5
    v_add_u32 v7, v5, v6                     ; voff w2
    v_mul_u32_u24 v5, 1280, v2
    v_add_u32 v8, v5, v6
    v_mul_u32_u24 v5, 20, v4
    v_add_u32 v5, v5, v3
    v_mul_u32_u24 v5, 1280, v5
    v_add_u32 v9, v5, v6
    """)
    for n in range(3):
        D = 82 + n
        a("s_mul_i32 s60, s2, 3")
        a("s_add_u32 s60, s60, %d" % n)
        a("s_mov_b32 s%d, -1" % D)
        a("s_cmp_ge_u32 s60, 680")
        a("s_cbranch_scc1 L_s1_tr_done%d" % n)
        a("s_cmp_ge_u32 s60, 480")
        a("s_cbranch_scc1 L_s1_tr_wo%d" % n)
        a("""
        s_mul_i32 s62, s60, 6554
        s_lshr_b32 s62, s62, 16
        s_mul_i32 s63, s62, 10
        s_sub_u32 s63, s60, s63
        s_mul_i32 s70, s62, %d
        s_lshl_b32 s71, s63, 7
        s_add_u32 s70, s70, s71
        s_mul_i32 s71, s62, 40
        s_lshl_b32 s63, s63, 2
        s_add_u32 s71, s71, s63
        s_lshl_b32 s71, s71, 10
        s_add_u32 s%d, s71, 0x%x
        """ % (32 * 1280, D, WS_W2F))
        for i in range(4):
            a("s_mov_b32 m0, %d" % (SCR + n * 4096 + i * 1024))
            a("s_add_u32 s64, s70, %d" % ((16 * (i >> 1) + 4 * (i & 1)) * 1280))
            a("buffer_load_dwordx4 v7, s[72:75], s64 offen lds")
        a("s_branch L_s1_tr_done%d" % n)
        a.label("L_s1_tr_wo%d" % n)
        a("""
        s_sub_u32 s60, s60, 480
        s_mul_i32 s62, s60, 6554
        s_lshr_b32 s62, s62, 16
        s_mul_i32 s63, s62, 10
        s_sub_u32 s63, s60, s63
        s_mul_i32 s71, s62, 40
        s_lshl_b32 s64, s63, 2
        s_add_u32 s71, s71, s64
        s_lshl_b32 s71, s71, 10
        s_add_u32 s%d, s71, 0x%x
        s_mul_i32 s64, s62, 13108
        s_lshr_b32 s64, s64, 16
        s_mul_i32 s70, s64, 5
        s_sub_u32 s62, s62, s70
        s_mul_i32 s70, s64, %d
        s_lshl_b32 s63, s63, 7
        s_add_u32 s70, s70, s63
        s_cmp_eq_u32 s62, 4
        s_cbranch_scc1 L_s1_tr_wl%d
        s_mul_i32 s62, s62, %d
        s_add_u32 s70, s70, s62
        """ % (D, WS_WOF, 160 * 1280, n, 40 * 1280))
        for i in range(4):
            row = 20 * (i & 1) + 8 * ((i >> 1) & 1)
            a("s_mov_b32 m0, %d" % (SCR + n * 4096 + i * 1024))
            a("s_add_u32 s64, s70, %d" % (row * 1280))
            a("buffer_load_dwordx4 v8, s[76:79], s64 offen lds")
        a("s_branch L_s1_tr_done%d" % n)
        a.label("L_s1_tr_wl%d" % n)
        for i in range(4):
            row = 20 * (4 * (i & 1) + 2 * ((i >> 1) & 1)) + 16
            a("s_mov_b32 m0, %d" % (SCR + n * 4096 + i * 1024))
            a("s_add_u32 s64, s70, %d" % (row * 1280))
            a("buffer_load_dwordx4 v9, s[76:79], s64 offen lds")
        a.label("L_s1_tr_done%d" % n)
    a("s_barrier")
    a("s_barrier")
    a("s_barrier")
    a("s_waitcnt vmcnt(0)")
    a("""
    v_lshrrev_b32 v3, 4, v1
    v_lshrrev_b32 v4, 2, v1
    v_and_b32 v4, 3, v4
    v_and_b32 v5, 3, v1
    v_lshlrev_b32 v5, 3, v5
    v_lshrrev_b32 v6, 1, v3
    v_lshlrev_b32 v6, 4, v6
    v_and_b32 v7, 1, v3
    v_lshlrev_b32 v7, 2, v7
    v_add3_u32 v6, v6, v7, v4
    v_lshrrev_b32 v7, 1, v6
    v_and_b32 v7, 3, v7
    v_lshlrev_b32 v6, 7, v6
    v_add_u32 v6, v6, v5
    v_add_u32 v6, %d, v6
    v_lshlrev_b32 v2, 4, v1
    """ % SCR)
    for t in range(4):
        a("v_xor_b32 v4, %d, v7" % t)
        a("v_lshl_add_u32 v%d, v4, 5, v6" % (10 + t))
    for n in range(3):
        for t in range(4):
            b = 104 + 16 * n + 4 * t
            a("ds_read_b64_tr_b16 v[%d:%d], v%d offset:%d" % (b, b + 1, 10 + t, n * 4096))
            a("ds_read_b64_tr_b16 v[%d:%d], v%d offset:%d" % (b + 2, b + 3, 10 + t, n * 4096 + 1024))
    a("s_waitcnt lgkmcnt(0)")
    for n in range(3):
        a("s_cmp_eq_u32 s%d, -1" % (82 + n))
        a("s_cbranch_scc1 L_s1_tr_skip%d" % n)
        for t in range(4):
            a("buffer_store_dwordx4 %s, v2, s[20:23], s%d offen offset:%d" % (vr(104 + 16 * n + 4 * t), 82 + n, t * 1024))
        a.label("L_s1_tr_skip%d" % n)
    for i in range(7):
        a("s_barrier")
    a("s_endpgm")


def stage1_lastarriver(a, T):
    a("""
    s_waitcnt vmcnt(0)
    s_barrier
    s_cmp_lg_u32 s35, 0
    s_cbranch_scc1 L_s1_la_wait_%s
    v_mov_b32 v4, 1
    s_lshl_b32 s63, s33, 2
    v_mov_b32 v5, s63
    s_mov_b64 s[72:73], exec
    s_mov_b64 exec, 1
    buffer_atomic_add v4, v5, s[4:7], 0 offen sc0 sc1
    s_waitcnt vmcnt(0)
    v_mov_b32 v5, 0x%x
    ds_write_b32 v5, v4
    s_waitcnt lgkmcnt(0)
    s_mov_b64 exec, s[72:73]
    """ % (T, 3 * S1_BUF + 12288))
    a.label("L_s1_la_wait_%s" % T)
    a("""
    s_barrier
    v_mov_b32 v5, 0x%x
    ds_read_b32 v4, v5
    s_waitcnt lgkmcnt(0)
    v_readfirstlane_b32 s63, v4
    s_nop 3
    s_cmp_lg_u32 s63, 15
    s_cbranch_scc1 L_s1_la_done_%s
    ; ---- reduce head h = 4jj + w : lane t<63: e=t/3, g'=t%%3
    v_mul_u32_u24 v4, 171, v1
    v_lshrrev_b32 v4, 9, v4                  ; e
    v_mul_u32_u24 v5, 3, v4
    v_sub_u32 v5, v1, v5                     ; g'
    v_mul_u32_u24 v6, 80, v4
    v_lshl_add_u32 v6, v5, 5, v6
    v_add_u32 v7, 16, v6
    v_mov_b32 v8, 0x7000000
    v_cmp_eq_u32 vcc, 2, v5
    s_lshl_b32 s64, s33, 2
    s_add_u32 s64, s64, s35                  ; head
    s_mul_i32 s66, s64, 1680
    s_add_u32 s66, s66, 0x%x
    v_cndmask_b32 v7, v7, v8, vcc
    v_cmp_gt_u32 vcc, 63, v1
    s_and_saveexec_b64 s[72:73], vcc
    """ % (3 * S1_BUF + 12288, T, WS_P))
    for rb in range(16):
        a("buffer_load_dwordx4 %s, v6, s[20:23], s66 offen sc1" % vr(16 + 8 * rb))
        a("buffer_load_dwordx4 %s, v7, s[20:23], s66 offen sc1" % vr(20 + 8 * rb))
        if rb < 15:
            a("s_add_u32 s66, s66, %d" % (32 * 1680))
    a("""
    s_lshl_b32 s67, s35, 2
    s_sub_u32 s68, s67, 16
    v_add_u32 v8, s68, v4                    ; 4w + e - 16
    v_and_b32 v8, 15, v8
    v_add_u32 v8, 48, v8                     ; +768/16
    v_cmp_gt_u32 vcc, 16, v4
    s_mul_i32 s66, s64, 1536
    s_add_u32 s66, s66, 0x%x
    v_cndmask_b32 v8, v8, v4, vcc
    v_lshlrev_b32 v8, 4, v8
    v_lshl_add_u32 v8, v5, 8, v8
    """ % WS_KVT)
    for rb in range(1, 16):
        a("s_waitcnt vmcnt(%d)" % (30 - 2 * rb))
        for i in range(0, 8, 2):
            a("v_pk_add_f32 v[%d:%d], v[%d:%d], v[%d:%d]" % (16 + i, 17 + i, 16 + i, 17 + i, 16 + 8 * rb + i, 17 + 8 * rb + i))
    for i in range(4):
        a("v_cvt_pk_bf16_f32 v%d, v%d, v%d" % (12 + i, 16 + 2 * i, 17 + 2 * i))
    a("buffer_store_dwordx4 v[12:15], v8, s[20:23], s66 offen")
    a("s_mov_b64 exec, s[72:73]")
    a.label("L_s1_la_done_%s" % T)


def stage1_gate(a):
    a("""
    s_lshl_b32 s60, s32, 7
    s_lshl_b32 s61, s33, 4
    s_add_u32 s60, s60, s61
    s_lshl_b32 s61, s35, 2
    s_add_u32 s60, s60, s61
    v_lshrrev_b32 v2, 5, v1
    v_add_u32 v2, s60, v2
    v_lshlrev_b32 v100, 2, v2
    v_add_u32 v100, 0x%x, v100
    v_mul_u32_u24 v2, 1280, v2
    v_and_b32 v3, 31, v1
    v_cmp_eq_u32 s[74:75], 0, v3
    v_mul_u32_u24 v3, 40, v3
    v_add_u32 v2, v2, v3
    buffer_load_dwordx4 v[20:23], v3, s[28:31], 0 offen
    buffer_load_dwordx4 v[24:27], v3, s[28:31], 0 offen offset:16
    buffer_load_dwordx2 v[28:29], v3, s[28:31], 0 offen offset:32
    """ % WS_G)
    for p in range(2):
        b = 32 + 12 * p
        a("buffer_load_dwordx4 %s, v2, s[8:11], 0 offen offset:%d" % (vr(b), p * 2560))
        a("buffer_load_dwordx4 %s, v2, s[8:11], 0 offen offset:%d" % (vr(b + 4), p * 2560 + 16))
        a("buffer_load_dwordx2 v[%d:%d], v2, s[8:11], 0 offen offset:%d" % (b + 8, b + 9, p * 2560 + 32))

def stage1_gate2(a, nst):
    a("s_waitcnt vmcnt(%d)" % nst)
    for i in range(10):
        a("v_lshlrev_b32 v%d, 16, v%d" % (60 + 2 * i, 20 + i))
        a("v_and_b32 v%d, 0xffff0000, v%d" % (61 + 2 * i, 20 + i))
    a("v_pk_mov_b32 v[96:97], 0, 0")
    for i in range(10):
        for p in range(2):
            b = 32 + 12 * p; t = 8 + 4 * p
            a("v_lshlrev_b32 v%d, 16, v%d" % (t, b + i))
            a("v_and_b32 v%d, 0xffff0000, v%d" % (t + 1, b + i))
        for p in range(2):
            t = 8 + 4 * p
            a("v_pk_mul_f32 v[%d:%d], v[%d:%d], v[%d:%d]" % (t, t + 1, t, t + 1, 60 + 2 * i, 61 + 2 * i))
        for p in range(2):
            t = 8 + 4 * p
            a("v_cvt_pk_bf16_f32 v%d, v%d, v%d" % (t, t, t + 1))
        for p in range(2):
            t = 8 + 4 * p
            a("v_lshlrev_b32 v%d, 16, v%d" % (t + 1, t))
            a("v_and_b32 v%d, 0xffff0000, v%d" % (t, t))
        for p in range(2):
            t = 8 + 4 * p
            a("v_add_f32 v%d, v%d, v%d" % (96 + p, 96 + p, t + 1))
        for p in range(2):
            t = 8 + 4 * p
            a("v_add_f32 v%d, v%d, v%d" % (96 + p, 96 + p, t))
    for mode in ("quad_perm:[1,0,3,2]", "quad_perm:[2,3,0,1]", "row_half_mirror", "row_mirror"):
        a("s_nop 1")
        for p in range(2):
            a("v_add_f32_dpp v%d, v%d, v%d %s row_mask:0xf bank_mask:0xf" % (96 + p, 96 + p, 96 + p, mode))
    for p in range(2):
        a("ds_swizzle_b32 v%d, v%d offset:0x401F" % (98 + p, 96 + p))
    a("s_waitcnt lgkmcnt(0)")
    for ins in ("v_add_f32 v{r}, v{r}, v{q}", "v_cvt_pk_bf16_f32 v{r}, v{r}, v{r}", "v_lshlrev_b32 v{r}, 16, v{r}", "v_mul_f32 v{r}, 0xbfb8aa3b, v{r}",
                "v_exp_f32 v{r}, v{r}", "NOP", "v_add_f32 v{r}, 1.0, v{r}", "v_rcp_f32 v{r}, v{r}", "NOP", "v_cvt_pk_bf16_f32 v{r}, v{r}, v{r}", "v_lshlrev_b32 v{r}, 16, v{r}"):
        if ins == "NOP":
            a("s_nop 0"); continue
        for p in range(2):
            a(ins.format(r=96 + p, q=98 + p))
    a("s_and_saveexec_b64 s[72:73], s[74:75]")
    for p in range(2):
        a("buffer_store_dword v%d, v100, s[20:23], 0 offen offset:%d" % (96 + p, p * 8))
    a("s_mov_b64 exec, s[72:73]")

def s1_warm(a):
    if int(os.environ.get("WARM", "1")):
        a("v_lshlrev_b32 v2, 4, v1")
        for (srdn, S, n) in ((8, 10240, 3), (12, 9600, 3), (16, 7680, 2)):
            a("s_mul_i32 s60, s2, %d" % S)
            a("s_mul_i32 s61, s35, %d" % (S // 4))
            a("s_add_u32 s60, s60, s61")
            for i in range(n):
                a("buffer_load_dwordx4 v[240:243], v2, s[%d:%d], s60 offen offset:%d" % (srdn, srdn + 3, i * 1024))

def s1_dma(typ):
    L = []
    if typ == 2:
        for i in range(16):
            L.append("s_add_u32 m0, s57, %d" % (i * 1024))
            L.append("s_add_u32 s64, s54, %d" % (i * 10240))
            L.append("buffer_load_dwordx4 v%d, s[8:11], s64 offen lds" % (96 + (i & 1)))
        L.append("s_add_u32 s54, s54, 128")
    elif typ == 0:
        for i in range(28):
            L.append("s_add_u32 m0, s57, %d" % (16384 + i * 1024))
            L.append("s_add_u32 s64, s55, %d" % ((i // 7) * 16 * 3840))
            L.append("buffer_load_dwordx4 v%d, s[12:15], s64 offen lds" % (98 + i % 7))
        L.append("s_add_u32 s55, s55, %d" % (64 * 3840))
    else:
        for i in range(24):
            L.append("s_add_u32 m0, s57, %d" % (16384 + i * 1024))
            L.append("s_add_u32 s64, s56, %d" % ((i // 6) * 16 * 3072))
            L.append("buffer_load_dwordx4 v%d, s[16:19], s64 offen lds" % (98 + i % 6))
        for i in range(2):
            L.append("s_add_u32 m0, s57, %d" % (16384 + 24576 + i * 1024))
            L.append("s_add_u32 s64, s55, %d" % (i * 32 * 3840))
            L.append("buffer_load_dwordx4 v104, s[12:15], s64 offen lds")
        L.append("s_add_u32 s55, s55, %d" % (64 * 3840))
        L.append("s_add_u32 s56, s56, %d" % (64 * 3072))
    L.append("s_add_u32 s57, s57, %d" % S1_BUF)
    L.append("s_cmp_eq_u32 s57, %d" % (3 * S1_BUF))
    L.append("s_cselect_b32 s57, 0, s57")
    return L

def stage1_loader(a, typ):
    T = "ABX"[typ]
    N = [28, 26, 16][typ]
    if typ == 2:
        a("""
        v_lshrrev_b32 v2, 3, v1
        v_mul_u32_u24 v2, 1280, v2
        v_and_b32 v3, 7, v1
        v_lshrrev_b32 v4, 4, v1
        v_xor_b32 v5, v3, v4
        v_lshlrev_b32 v6, 4, v5
        v_add_u32 v96, v2, v6
        v_xor_b32 v5, 4, v5
        v_lshlrev_b32 v6, 4, v5
        v_add_u32 v97, v2, v6
        s_lshl_b32 s60, s32, 7
        s_mul_i32 s54, s60, 1280
        """)
    else:
        a("s_mov_b32 s55, 0")
        a("s_mov_b32 s56, 0")
    if typ == 0:
        C = 28
        a("s_mov_b32 s67, %d" % ((2**32 + C - 1) // C))
        a("s_mul_i32 s68, s33, 160")
        a("s_add_u32 s69, s68, 1280")
        a("s_add_u32 s70, s68, %d" % (2560 - 160))
        a("s_lshl_b32 s71, s33, 7")
        a("s_sub_u32 s71, s71, 320")
        a("v_mov_b32 v8, s69")
        a("v_mov_b32 v9, s70")
        a("v_mov_b32 v10, s71")
        for i in range(7):
            a("v_add_u32 v2, %d, v1" % (64 * i))
            a("v_mul_hi_u32 v3, v2, s67")
            a("v_mul_u32_u24 v4, %d, v3" % C)
            a("v_sub_u32 v4, v2, v4")
            a("v_and_b32 v5, 4, v3")
            a("v_lshrrev_b32 v5, 1, v5")
            a("v_xor_b32 v4, v4, v5")
            a("v_cmp_gt_u32 vcc, 10, v4")
            a("v_cmp_gt_u32 s[72:73], 20, v4")
            swap23_v(a, 5, 3, 6)
            a("v_mul_u32_u24 v5, 3840, v5")
            a("v_cndmask_b32 v6, v9, v8, vcc")
            a("v_cndmask_b32 v6, v10, v6, s[72:73]")
            a("v_lshlrev_b32 v4, 4, v4")
            a("v_add3_u32 v%d, v5, v6, v4" % (98 + i))
    elif typ == 1:
        C = 24
        a("s_mov_b32 s67, %d" % ((2**32 + C - 1) // C))
        a("s_mul_i32 s68, s33, 384")
        for i in range(6):
            a("v_add_u32 v2, %d, v1" % (64 * i))
            a("v_mul_hi_u32 v3, v2, s67")
            a("v_mul_u32_u24 v4, %d, v3" % C)
            a("v_sub_u32 v4, v2, v4")
            a("v_and_b32 v5, 6, v3")
            a("v_xor_b32 v4, v4, v5")
            swap23_v(a, 5, 3, 6)
            a("v_mul_u32_u24 v5, 3072, v5")
            a("v_lshlrev_b32 v4, 4, v4")
            a("v_add3_u32 v%d, v5, s68, v4" % (98 + i))
        a("v_lshrrev_b32 v2, 1, v1")
        a("v_and_b32 v3, 15, v2")
        swap23_v(a, 5, 3, 6)
        a("v_and_b32 v3, 16, v2")
        a("v_add_u32 v5, v5, v3")
        a("v_mul_u32_u24 v5, 3840, v5")
        a("v_and_b32 v4, 1, v1")
        a("v_lshlrev_b32 v4, 4, v4")
        a("s_lshl_b32 s68, s33, 5")
        a("s_add_u32 s68, s68, 1024")
        a("v_add3_u32 v104, v5, s68, v4")
    stamp(a, 1)
    a.label("L_s1_ld_%s" % T)
    for s in s1_dma(typ):
        if int(os.environ.get("NODMA", "0")) and "buffer_load" in s: continue
        a(s)
    a("s_add_u32 s59, s59, 1")
    a("s_cmp_eq_u32 s59, 1")
    a("s_cbranch_scc1 L_s1_ld_%s" % T)
    if STAMP:
        a("s_cmp_lg_u32 s59, 2")
        a("s_cbranch_scc1 L_s1_ldst_%s" % T)
        stamp(a, 2)
        a("s_waitcnt vmcnt(%d)" % N)
        stamp(a, 3)
        a.label("L_s1_ldst_%s" % T)
    a("s_waitcnt vmcnt(%d)" % N)
    a("s_barrier")
    a("s_cmp_lt_u32 s59, 10")
    a("s_cbranch_scc1 L_s1_ld_%s" % T)
    a("s_waitcnt vmcnt(0)")
    a("s_barrier")
    a("s_barrier")
    stamp(a, 4)
    stamp_flush(a, 0, 20, 35)
    a("s_endpgm")

def stage1_type(a, typ):
    T = "AB"[typ]
    if typ == 0:
        a("""
        v_mul_u32_u24 v2, 448, v6
        v_add_u32 v2, v2, v5
        v_add_u32 v2, 16384, v2
        v_lshlrev_b32 v7, 5, v7
        v_add_u32 v107, v2, v7
        v_sub_u32 v108, v2, v7
        """)
        nb = 2
    else:
        a("""
        v_mul_u32_u24 v2, 384, v6
        v_add_u32 v2, v2, v5
        v_add_u32 v2, 16384, v2
        v_lshrrev_b32 v7, 1, v6
        v_and_b32 v7, 3, v7
        """)
        for j in range(4):
            a("v_xor_b32 v3, %d, v7" % j)
            a("v_subrev_u32 v3, %d, v3" % j)
            a("v_lshlrev_b32 v3, 5, v3")
            a("v_add_u32 v%d, v2, v3" % (107 + j))
        a("v_lshlrev_b32 v2, 5, v6")
        a("v_add_u32 v2, v2, v5")
        a("v_add_u32 v111, %d, v2" % (16384 + 24576))
        nb = 5
        a("s_mul_i32 s63, s33, 384")
        a("s_mul_i32 s64, s53, 192")
        a("s_add_u32 s63, s63, s64")
        a("v_lshrrev_b32 v3, 4, v1")
        a("v_lshlrev_b32 v4, 3, v3")
        for i in range(6):
            a("buffer_load_dwordx2 v[%d:%d], v4, s[24:27], s63 offen offset:%d" % (32 + 2 * i, 33 + 2 * i, 32 * i))
    a("s_cmp_eq_u32 s53, 1")
    a("s_cbranch_scc1 L_s1_%s1" % T)
    for wc in (0, 1):
        if wc == 1:
            a.label("L_s1_%s1" % T)
        stage1_wave(a, typ, wc, nb)

def s1_tiles(typ, wc):
    if typ == 0:
        return [("k", 0), ("k", 1), ("k", 2), ("v", 0), ("v", 1), ("q", 0), ("q", 1)] if wc == 0 else \
               [("k", 3), ("k", 4), ("v", 2), ("v", 3), ("v", 4), ("q", 2), ("q", 3)]
    else:
        return [("h", i) for i in range(6)] + [("q", 0)] if wc == 0 else [("h", i) for i in range(6, 12)] + [("g", 0)]

def s1_reads(typ, tiles, ks, aset, bset):
    L = []
    for ti, (kind, idx) in enumerate(tiles):
        if kind == "g":
            L.append("ds_read_b128 %s, v119 offset:%d" % (vr(bset + 4 * ti), 64 * ks))
            continue
        for hh in range(2):
            dst = bset + 4 * ti + 2 * hh
            if typ == 0:
                slot = {"k": 0, "v": 5, "q": 10}[kind] + idx
                base = 114 + (slot & 1)
                off = (32 * ks + 8 * hh) * 448 + slot * 32
            else:
                if kind == "q":
                    base = 118
                    off = (32 * ks + 8 * hh) * 32
                else:
                    base = 114 + (idx & 3)
                    off = (32 * ks + 8 * hh) * 384 + idx * 32
            L.append("ds_read_b64_tr_b16 v[%d:%d], v%d offset:%d" % (dst, dst + 1, base, off))
        if ti == 0:
            for rt in range(4):
                L.append("ds_read_b128 %s, v%d offset:%d" % (vr(aset + 4 * rt), 112 + ks, rt * 2048))
    return L

def s1_mfmas(tiles, aset, bset):
    L = []
    for ti, (kind, idx) in enumerate(tiles):
        for rt in range(4):
            acc = 128 + (ti * 4 + rt) * 4
            x = vr(aset + 4 * rt); w = vr(bset + 4 * ti)
            if kind in ("k", "v"):
                L.append("v_mfma_f32_16x16x32_bf16 %s, %s, %s, %s" % (vr(acc), x, w, vr(acc)))
            else:
                L.append("v_mfma_f32_16x16x32_bf16 %s, %s, %s, %s" % (vr(acc), w, x, vr(acc)))
    return L

def s1_setbase(nb):
    L = ["v_add_u32 v112, s58, v105", "v_add_u32 v113, s58, v106"]
    for j in range(nb):
        L.append("v_add_u32 v%d, s58, v%d" % (114 + j, 107 + j))
    return L

def stage1_wave(a, typ, wc, nb):
    T = "AB"[typ] + str(wc)
    tiles = s1_tiles(typ, wc)
    if typ == 1:
        a("s_waitcnt vmcnt(0)")
    for ti, (kind, idx) in enumerate(tiles):
        acc = 128 + (ti * 4) * 4
        if kind == "h":
            b = 32 + 2 * (idx % 6)
            a("v_lshlrev_b32 v%d, 16, v%d" % (acc, b))
            a("v_and_b32 v%d, 0xffff0000, v%d" % (acc + 1, b))
            a("v_lshlrev_b32 v%d, 16, v%d" % (acc + 2, b + 1))
            a("v_and_b32 v%d, 0xffff0000, v%d" % (acc + 3, b + 1))
            for rt in range(1, 4):
                for i in (0, 2):
                    a("v_pk_mov_b32 v[%d:%d], v[%d:%d], v[%d:%d] op_sel:[0,1]" % (acc + 4 * rt + i, acc + 4 * rt + i + 1, acc + i, acc + i + 1, acc + i, acc + i + 1))
        else:
            for r in range(0, 16, 2):
                a("v_pk_mov_b32 v[%d:%d], 0, 0" % (acc + r, acc + r + 1))
    for s in s1_setbase(nb):
        a(s)
    GT = (typ == 1 and wc == 1)
    if GT:
        a("v_lshrrev_b32 v119, 4, v1")
        a("v_lshlrev_b32 v119, 4, v119")
        a("v_add_u32 v119, %d, v119" % (3 * S1_BUF + 12288))
    s1_warm(a)
    stamp(a, 1)
    a("s_barrier")
    for s in s1_reads(typ, tiles, 0, 64, 8):
        a(s)
    a("s_waitcnt lgkmcnt(0)")
    stamp(a, 2)
    a.label("L_s1_loop_%s" % T)
    NOLDS = int(os.environ.get("NOLDS", "0"))
    interleave(a, s1_mfmas(tiles, 64, 8), [] if NOLDS else s1_reads(typ, tiles, 1, 80, 36))
    a("s_add_u32 s58, s58, %d" % S1_BUF)
    a("s_cmp_eq_u32 s58, %d" % (3 * S1_BUF))
    a("s_cselect_b32 s58, 0, s58")
    a("s_waitcnt lgkmcnt(0)")
    a("s_barrier")
    m = s1_mfmas(tiles, 80, 36)
    interleave(a, m, s1_setbase(nb) + (["v_add_u32 v119, 128, v119"] if GT else []) + ([] if NOLDS else s1_reads(typ, tiles, 0, 64, 8)))
    a("s_add_u32 s59, s59, 1")
    a("s_cmp_lt_u32 s59, 10")
    a("s_waitcnt lgkmcnt(0)")
    a("s_cbranch_scc1 L_s1_loop_%s" % T)
    stamp(a, 3)
    a("v_and_b32 v2, 15, v1")
    a("v_lshrrev_b32 v3, 4, v1")
    a("s_lshl_b32 s60, s32, 7")
    a("s_lshl_b32 s63, s52, 6")
    a("s_add_u32 s60, s60, s63")
    if typ == 1:
        a("s_lshl_b32 s63, s52, 8")
        a("v_lshl_add_u32 v6, v2, 2, s63")
        if wc == 1:
            gacc = 128 + 6 * 16
            a("s_nop 4")
            for ins in ("v_cvt_pk_bf16_f32 v{r}, v{g}, v{g}", "v_lshlrev_b32 v{r}, 16, v{r}", "v_mul_f32 v{r}, 0xbfb8aa3b, v{r}", "v_exp_f32 v{r}, v{r}", "NOP",
                        "v_add_f32 v{r}, 1.0, v{r}", "v_rcp_f32 v{r}, v{r}", "NOP", "v_cvt_pk_bf16_f32 v{r}, v{r}, v{r}", "v_lshlrev_b32 v{r}, 16, v{r}",
                        "v_sub_f32 v{o}, 1.0, v{r}", "v_cvt_pk_bf16_f32 v{o}, v{o}, v{o}", "v_lshlrev_b32 v{o}, 16, v{o}"):
                if ins == "NOP":
                    a("s_nop 0"); continue
                for rt in range(4):
                    a(ins.format(r=21 + 2 * rt, o=20 + 2 * rt, g=gacc + 4 * rt))
            a("v_add_u32 v4, s60, v2")
            a("v_lshlrev_b32 v4, 2, v4")
            a("v_add_u32 v4, 0x%x, v4" % WS_G)
            a("v_cmp_eq_u32 vcc, 0, v3")
            a("s_and_saveexec_b64 s[72:73], vcc")
            for rt in range(4):
                a("ds_write_b32 v6, v%d offset:%d" % (20 + 2 * rt, rt * 64))
                a("buffer_store_dword v%d, v4, s[20:23], 0 offen offset:%d" % (21 + 2 * rt, rt * 64))
            a("s_mov_b64 exec, s[72:73]")
            a("s_waitcnt lgkmcnt(0)")
            a("s_barrier")
        else:
            a("s_barrier")
            for rt in range(4):
                a("ds_read_b32 v%d, v6 offset:%d" % (20 + 2 * rt, rt * 64))
            a("s_waitcnt lgkmcnt(0)")
    first_h = True; first_kv = True
    for ti, (kind, idx) in enumerate(tiles):
        if kind == "g":
            continue
        if kind == "h":
            if first_h:
                a("v_and_b32 v4, 1, v3")
                a("v_mul_u32_u24 v4, 192, v4")
                a("v_lshrrev_b32 v5, 1, v3")
                a("v_add_u32 v4, v4, v5")
                a("v_lshlrev_b32 v4, 8, v4")
                a("v_lshl_add_u32 v5, v2, 4, v4")
                a("s_lshr_b32 s63, s60, 4")
                a("s_mul_i32 s63, s63, 192")
                a("s_mul_i32 s64, s33, 24")
                a("s_add_u32 s63, s63, s64")
                a("s_add_u32 s63, s63, %d" % (12 * wc))
                a("s_lshl_b32 s63, s63, 8")
                a("s_add_u32 s66, s63, %d" % (2 * 192 * 256))
                first_h = False
            for p in range(2):
                accA = 128 + (ti * 4 + 2 * p) * 4
                accB = accA + 4
                for i in range(8):
                    a("v_max_f32 v%d, 0, v%d" % (accA + i, accA + i))
                for i in range(0, 8, 2):
                    a("v_pk_mul_f32 v[%d:%d], v[%d:%d], v[%d:%d]" % (accA + i, accA + i + 1, accA + i, accA + i + 1, accA + i, accA + i + 1))
                for i in range(0, 8, 2):
                    om = 20 + 2 * (2 * p + (i >> 2))
                    a("v_pk_mul_f32 v[%d:%d], v[%d:%d], v[%d:%d] op_sel_hi:[1,0]" % (accA + i, accA + i + 1, accA + i, accA + i + 1, om, om + 1))
                a("v_cvt_pk_bf16_f32 v%d, v%d, v%d" % (accA, accA, accA + 1))
                a("v_cvt_pk_bf16_f32 v%d, v%d, v%d" % (accA + 1, accA + 2, accA + 3))
                a("v_cvt_pk_bf16_f32 v%d, v%d, v%d" % (accA + 2, accB, accB + 1))
                a("v_cvt_pk_bf16_f32 v%d, v%d, v%d" % (accA + 3, accB + 2, accB + 3))
                a("s_nop 1")
                a("v_permlane16_swap_b32 v%d, v%d" % (accA, accA + 2))
                a("v_permlane16_swap_b32 v%d, v%d" % (accA + 1, accA + 3))
                a("buffer_store_dwordx4 %s, v5, s[20:23], s%d offen offset:%d" % (vr(accA), [63, 66][p], (idx % 6) * 512))
        elif kind == "q":
            if typ == 0:
                a("s_lshl_b32 s63, s33, 4")
                a("s_add_u32 s63, s63, %d" % (4 * idx))
            else:
                a("s_lshl_b32 s63, s33, 2")
                a("s_add_u32 s63, s63, 128")
            a("s_lshr_b32 s64, s60, 4")
            a("s_mul_i32 s64, s64, 160")
            a("s_add_u32 s63, s63, s64")
            a("s_lshl_b32 s63, s63, 7")
            a("s_add_u32 s63, s63, 0x%x" % WS_PQF)
            a("v_lshlrev_b32 v7, 3, v1")
            for rt in range(4):
                acc = 128 + (ti * 4 + rt) * 4
                phi4(a, acc, 12, 78, 80)
                a("v_cvt_pk_bf16_f32 v%d, v%d, v%d" % (acc, acc, acc + 1))
                a("v_cvt_pk_bf16_f32 v%d, v%d, v%d" % (acc + 1, acc + 2, acc + 3))
                a("s_add_u32 s64, s63, %d" % (rt * 160 * 128))
                a("buffer_store_dwordx2 v[%d:%d], v7, s[20:23], s64 offen" % (acc, acc + 1))
        else:
            tc0 = 16 * idx + (80 if kind == "v" else 0)
            if first_kv:
                a("v_mul_u32_u24 v5, 272, v2")
                a("v_lshlrev_b32 v6, 3, v3")
                a("s_lshl_b32 s63, s52, 7")
                a("v_add3_u32 v5, v5, v6, s63")
                first_kv = False
            for rt in range(4):
                acc = 128 + (ti * 4 + rt) * 4
                if kind == "k":
                    phi4(a, acc, 12, 78, 80)
                a("v_cvt_pk_bf16_f32 v%d, v%d, v%d" % (acc, acc, acc + 1))
                a("v_cvt_pk_bf16_f32 v%d, v%d, v%d" % (acc + 1, acc + 2, acc + 3))
                a("ds_write_b64 v5, v[%d:%d] offset:%d" % (acc, acc + 1, tc0 * 272 + rt * 32))
            if ti == 4:
                a("s_waitcnt lgkmcnt(0)")
                a("s_barrier")
                a("s_mul_i32 s63, s35, %d" % (20 * 272))
                a("v_mul_u32_u24 v5, 272, v2")
                a("v_lshlrev_b32 v6, 4, v3")
                a("v_add3_u32 v5, v5, v6, s63")
                for ks in range(4):
                    b = 16 + 16 * ks
                    a("ds_read_b128 %s, v5 offset:%d" % (vr(b), ks * 64))
                    a("ds_read_b128 %s, v5 offset:%d" % (vr(b + 4), ks * 64 + 16 * 272))
                    a("ds_read_b128 %s, v5 offset:%d" % (vr(b + 8), ks * 64 + 80 * 272))
                    a("ds_read_b128 %s, v5 offset:%d" % (vr(b + 12), ks * 64 + 96 * 272))
                a("v_cmp_eq_u32 vcc, 4, v2")
                a("v_mov_b32 v6, 0x3f803f80")
                a("s_waitcnt lgkmcnt(0)")
                for ks in range(4):
                    b = 16 + 16 * ks
                    for i in range(4):
                        a("v_cndmask_b32 v%d, v%d, v6, vcc" % (b + 12 + i, b + 12 + i))
                a("s_nop 1")
                for ks in range(4):
                    b = 16 + 16 * ks
                    c = lambda r: ("0" if ks == 0 else vr(r))
                    a("v_mfma_f32_16x16x32_bf16 v[80:83], %s, %s, %s" % (vr(b), vr(b + 8), c(80)))
                    a("v_mfma_f32_16x16x32_bf16 v[84:87], %s, %s, %s" % (vr(b), vr(b + 12), c(84)))
                    a("v_mfma_f32_16x16x32_bf16 v[88:91], %s, %s, %s" % (vr(b + 4), vr(b + 8), c(88)))
                    a("v_mfma_f32_16x16x32_bf16 v[92:95], %s, %s, %s" % (vr(b + 4), vr(b + 12), c(92)))
                a("s_lshl_b32 s63, s32, 5")
                a("s_lshl_b32 s64, s33, 2")
                a("s_add_u32 s63, s63, s64")
                a("s_add_u32 s63, s63, s35")
                a("s_mul_i32 s63, s63, 1680")
                a("s_add_u32 s63, s63, 0x%x" % WS_P)
                a("v_mul_u32_u24 v5, 80, v2")
                a("v_lshlrev_b32 v6, 4, v3")
                a("v_add_u32 v5, v5, v6")
                a("v_cmp_eq_u32 s[74:75], 0, v3")
                a("v_cmp_gt_u32 s[76:77], 5, v2")
                a("s_nop 7")
                a("buffer_store_dwordx4 v[80:83], v5, s[20:23], s63 offen")
                a("s_and_saveexec_b64 s[72:73], s[74:75]")
                a("buffer_store_dwordx4 v[88:91], v5, s[20:23], s63 offen offset:64")
                a("s_mov_b64 exec, s[76:77]")
                a("buffer_store_dwordx4 v[84:87], v5, s[20:23], s63 offen offset:1280")
                a("s_and_b64 exec, exec, s[74:75]")
                a("buffer_store_dwordx4 v[92:95], v5, s[20:23], s63 offen offset:1344")
                a("s_mov_b64 exec, s[72:73]")

    stamp(a, 4)
    stamp_flush(a, 0, 20, 35)
    dbg_end1(a)
    a("s_endpgm")

def stage2(a):
    a.raw(".globl s2_kernel\n.p2align 8\n.type s2_kernel,@function")
    a.label("s2_kernel")
    a("""
    s_cmp_ge_u32 s2, 252
    s_cbranch_scc1 L_s2_end
    s_mov_b32 s3, s2
    s_sub_u32 s2, s2, 32
    """)
    stamp_start(a)
    a("""
    s_load_dwordx2 s[42:43], s[0:1], 56      ; b2
    s_load_dwordx4 s[44:47], s[0:1], 72
    s_load_dwordx2 s[38:39], s[0:1], 88      ; ws
    s_and_b32 s48, s2, 7
    s_lshr_b32 s49, s2, 3
    s_lshr_b32 s50, s48, 1
    s_mul_i32 s51, s50, 28
    s_cmp_eq_u32 s50, 3
    s_cselect_b32 s50, 1, 0
    s_sub_u32 s51, s51, s50
    s_add_u32 s51, s51, s49
    s_mul_i32 s50, s51, 205
    s_lshr_b32 s50, s50, 10
    s_mul_i32 s52, s50, 5
    s_sub_u32 s52, s51, s52
    s_and_b32 s53, s48, 1
    s_mul_i32 s53, s53, 5
    s_add_u32 s33, s52, s53                  ; cb
    s_mul_i32 s32, s50, 96
    s_min_u32 s32, s32, 1952                 ; row0
    v_and_b32 v1, 63, v0
    v_lshrrev_b32 v2, 6, v0
    v_lshlrev_b32 v4, 4, v1                  ; lane*16
    v_readfirstlane_b32 s35, v2
    s_waitcnt lgkmcnt(0)
    """)
    srd(a, 8, 38, WS_SIZE)
    srd(a, 20, 42, 1280)
    srd(a, 24, 44, 2621440)
    srd(a, 28, 46, 256)
    ACC = 128
    def mfmas(aset, bset):
        L = []
        for t in range(4):
            for rt in range(6):
                acc = ACC + (t * 6 + rt) * 4
                L.append("v_mfma_f32_16x16x32_bf16 %s, %s, %s, %s" % (vr(acc), vr(bset + 4 * t), vr(aset + 4 * rt), vr(acc)))
        return L
    a("""
    s_cmp_lt_u32 s3, 32
    s_cbranch_scc1 L_s2_red
    s_lshr_b32 s34, s32, 4                   ; rt0
    v_and_b32 v2, 15, v1
    v_lshrrev_b32 v3, 4, v1
    v_add_u32 v5, s32, v2
    v_lshlrev_b32 v5, 2, v5
    v_add_u32 v5, 0x%x, v5
    s_cmp_ge_u32 s35, 4
    s_cbranch_scc1 L_s2_awave
    """ % WS_G)
    a("""
    s_mul_i32 s55, s34, 192
    s_mul_i32 s60, s35, 48
    s_add_u32 s55, s55, s60
    s_lshl_b32 s55, s55, 8                   ; A soffset = (rt0*192 + 48w)*256
    s_mul_i32 s56, s35, 480
    s_lshl_b32 s60, s33, 2
    s_add_u32 s56, s56, s60
    s_lshl_b32 s56, s56, 10
    s_add_u32 s56, s56, 0x%x                 ; B soffset = W2F + (12w*40 + 4cb)*1024
    """ % WS_W2F)
    for rt in range(6):
        a("v_add_u32 v%d, %d, v4" % (224 + rt, rt * 49152))
    SETS = [(8, 32), (48, 72), (88, 112)]
    def loads(st):
        A, B = SETS[st]
        L = []
        L.append("buffer_load_dwordx4 %s, v4, s[8:11], s56 offen" % vr(B))
        for rt in range(6):
            L.append("buffer_load_dwordx4 %s, v%d, s[8:11], s55 offen" % (vr(A + 4 * rt), 224 + rt))
        for t in range(1, 4):
            L.append("buffer_load_dwordx4 %s, v4, s[8:11], s56 offen offset:%d" % (vr(B + 4 * t), t * 1024))
        L.append("s_add_u32 s55, s55, 1024")
        L.append("s_add_u32 s56, s56, %d" % (40 * 1024))
        return L
    GR = [232, 233, 234, 235, 236, 237]
    for rt in range(6):
        a("buffer_load_dword v%d, v5, s[8:11], 0 offen offset:%d" % (GR[rt], rt * 64))
    for s in loads(0): a(s)
    for s in loads(1): a(s)
    stamp(a, 1)
    for r in range(0, 96, 2):
        a("v_pk_mov_b32 v[%d:%d], 0, 0" % (ACC + r, ACC + r + 1))
    a("s_mov_b32 s59, 0")
    stamp(a, 2)
    a.label("L_s2_bloop")
    for st in range(3):
        a("s_waitcnt vmcnt(10)")
        A, B = SETS[st]
        interleave(a, mfmas(A, B), loads((st + 2) % 3), start=1, every=2)
    a("s_add_u32 s59, s59, 1")
    a("s_cmp_lt_u32 s59, 3")
    a("s_cbranch_scc1 L_s2_bloop")
    a("s_mul_i32 s57, s35, 200")
    a("s_lshl_b32 s60, s33, 2")
    a("s_add_u32 s57, s57, s60")
    a("s_lshl_b32 s57, s57, 10")
    a("s_add_u32 s57, s57, 0x%x" % WS_WOF)
    def wl(step):
        L = []
        for t in range(4):
            L.append("buffer_load_dwordx4 %s, v4, s[8:11], s57 offen offset:%d" % (vr(8 + 16 * step + 4 * t), t * 1024))
        L.append("s_add_u32 s57, s57, %d" % (40 * 1024))
        return L
    a("s_waitcnt vmcnt(10)")
    interleave(a, mfmas(*SETS[0]), loads(2), start=1, every=2)
    a("s_waitcnt vmcnt(10)")
    interleave(a, mfmas(*SETS[1]), wl(0) + wl(1), start=1, every=2)
    a("s_waitcnt vmcnt(8)")
    interleave(a, mfmas(*SETS[2]), wl(2) + wl(3) + wl(4), start=1, every=1)
    stamp(a, 3)
    for rt in range(6):
        a("v_sub_f32 v%d, 1.0, v%d" % (112 + 2 * rt, GR[rt]))
        a("v_cvt_pk_bf16_f32 v%d, v%d, v%d" % (112 + 2 * rt, 112 + 2 * rt, 112 + 2 * rt))
        a("v_lshlrev_b32 v%d, 16, v%d" % (112 + 2 * rt, 112 + 2 * rt))
    a("s_mul_i32 s60, s35, 30720")
    a("v_add_u32 v5, s60, v4")
    a("s_barrier")
    AB = [88, 224]
    def oreads(step):
        return ["ds_read_b128 %s, v5 offset:%d" % (vr(AB[step & 1] + 4 * rt), rt * 5120 + step * 1024) for rt in range(6)]
    for s in oreads(0): a(s)
    for step in range(5):
        a("s_waitcnt vmcnt(%d) lgkmcnt(0)" % (16 - 4 * step))
        interleave(a, mfmas(AB[step & 1], 8 + 16 * step), oreads(step + 1) if step < 4 else [], start=2, every=2)
    stamp(a, 4)
    a("v_and_b32 v2, 15, v1")
    a("v_lshrrev_b32 v3, 4, v1")
    a("s_lshl_b32 s60, s33, 7")
    a("s_lshl_b32 s61, s35, 5")
    a("s_add_u32 s60, s60, s61")
    a("v_lshlrev_b32 v6, 3, v3")
    a("buffer_load_dwordx2 v[8:9], v6, s[20:23], s60 offen")
    a("s_barrier")
    for w in range(4):
        a("s_cmp_lg_u32 s35, %d" % w)
        a("s_cbranch_scc1 L_s2_fw%d" % w)
        for t in range(4):
            if t == w: continue
            si = w if w < t else w - 1
            for rt in range(6):
                off = (t * 3 + si) * 6144 + rt * 1024
                if off < 65536:
                    a("ds_write_b128 v4, %s offset:%d" % (vr(ACC + (t * 6 + rt) * 4), off))
                else:
                    if rt == 0 or (t * 3 + si) * 6144 + (rt - 1) * 1024 < 65536:
                        a("v_add_u32 v7, 0x10000, v4")
                    a("ds_write_b128 v7, %s offset:%d" % (vr(ACC + (t * 6 + rt) * 4), off - 65536))
        for rt in range(6):
            for i in (0, 2):
                src = ACC + (w * 6 + rt) * 4 + i
                a("v_pk_mov_b32 v[%d:%d], v[%d:%d], v[%d:%d] op_sel:[0,1]" % (16 + 4 * rt + i, 17 + 4 * rt + i, src, src + 1, src, src + 1))
        a.label("L_s2_fw%d" % w)
    a("s_mul_i32 s61, s35, %d" % (3 * 6144))
    a("v_add_u32 v7, s61, v4")
    a("s_waitcnt lgkmcnt(0)")
    a("s_barrier")
    for si in range(3):
        for rt in range(6):
            a("ds_read_b128 %s, v7 offset:%d" % (vr(40 + (si * 6 + rt) * 4), si * 6144 + rt * 1024))
    a("v_and_b32 v6, 1, v3")
    a("v_lshl_add_u32 v6, v6, 4, v2")
    a("v_add_u32 v6, s32, v6")
    a("v_mul_u32_u24 v6, 1280, v6")
    a("v_lshrrev_b32 v5, 1, v3")
    a("v_lshl_add_u32 v6, v5, 4, v6")
    a("s_waitcnt vmcnt(0)")
    a("v_lshlrev_b32 v10, 16, v8")
    a("v_and_b32 v11, 0xffff0000, v8")
    a("v_lshlrev_b32 v12, 16, v9")
    a("v_and_b32 v13, 0xffff0000, v9")
    for rt in range(6):
        o = 16 + 4 * rt
        for i in (0, 2):
            a("v_pk_fma_f32 v[%d:%d], v[%d:%d], v[%d:%d], v[%d:%d] op_sel_hi:[1,0,1]" % (o + i, o + i + 1, 10 + i, 11 + i, 112 + 2 * rt, 113 + 2 * rt, o + i, o + i + 1))
    for si in range(3):
        a("s_waitcnt lgkmcnt(%d)" % (12 - 6 * si))
        for rt in range(6):
            o = 16 + 4 * rt; q = 40 + (si * 6 + rt) * 4
            for i in (0, 2):
                a("v_pk_add_f32 v[%d:%d], v[%d:%d], v[%d:%d]" % (o + i, o + i + 1, o + i, o + i + 1, q + i, q + i + 1))
    for p in range(3):
        A_, B_ = 16 + 8 * p, 20 + 8 * p
        a("v_cvt_pk_bf16_f32 v%d, v%d, v%d" % (A_, A_, A_ + 1))
        a("v_cvt_pk_bf16_f32 v%d, v%d, v%d" % (A_ + 1, A_ + 2, A_ + 3))
        a("v_cvt_pk_bf16_f32 v%d, v%d, v%d" % (A_ + 2, B_, B_ + 1))
        a("v_cvt_pk_bf16_f32 v%d, v%d, v%d" % (A_ + 3, B_ + 2, B_ + 3))
        a("s_add_u32 s62, s60, %d" % (p * 32 * 1280))
        a("s_nop 0")
        a("v_permlane16_swap_b32 v%d, v%d" % (A_, A_ + 2))
        a("v_permlane16_swap_b32 v%d, v%d" % (A_ + 1, A_ + 3))
        a("buffer_store_dwordx4 %s, v6, s[24:27], s62 offen" % vr(A_))
    dbg_end2(a)
    stamp_flush(a, 2, 8, 35)
    a("s_endpgm")
    a.label("L_s2_awave")
    a("s_setprio 2")
    F, PQB, Z, OA, RY, T1 = 8, [40, 64], 88, 112, 136, 184
    G = [92, 93, 94, 95, 96, 97]
    DS = 98
    a("""
    s_sub_u32 s58, s35, 4                    ; aw
    s_mul_i32 s54, s58, 30720
    s_mul_i32 s60, s34, 160
    s_mul_i32 s61, s58, 40
    s_add_u32 s60, s60, s61
    s_lshl_b32 s60, s60, 7
    s_add_u32 s60, s60, 0x%x
    """ % WS_PQF)
    a("v_cmp_gt_u32 s[82:83], 48, v1")
    a("v_cmp_gt_u32 s[84:85], 32, v1")
    a("s_lshl_b32 s61, s58, 3")
    a("s_mul_i32 s61, s61, 1536")
    a("s_add_u32 s61, s61, 0x%x" % WS_KVT)
    for r in range(8, 40, 2):
        a("v_pk_mov_b32 v[%d:%d], 0, 0" % (r, r + 1))
    def pqreads(j):
        P = PQB[j & 1]
        a("s_mov_b64 exec, s[82:83]")
        for rt in range(6):
            a("ds_read_b64 v[%d:%d], v6 offset:%d" % (P + 4 * rt, P + 4 * rt + 1, rt * 5120 + j * 640))
        a("s_mov_b64 exec, s[84:85]")
        for rt in range(6):
            a("ds_read_b64 v[%d:%d], v6 offset:%d" % (P + 4 * rt + 2, P + 4 * rt + 3, rt * 5120 + j * 640 + 128))
        a("s_mov_b64 exec, -1")
    def fload(j):
        a("s_mov_b64 exec, s[82:83]")
        a("buffer_load_dwordx4 %s, v4, s[8:11], s61 offen sc1" % vr(F + 8 * (j & 3)))
        a("buffer_load_dwordx4 %s, v4, s[8:11], s61 offen offset:768 sc1" % vr(F + 8 * (j & 3) + 4))
        a("s_mov_b64 exec, -1")
        a("s_add_u32 s61, s61, 1536")
    for rt in range(6):
        a("buffer_load_dword v%d, v5, s[8:11], 0 offen offset:%d" % (G[rt], rt * 64))
    for i in range(5):
        for rt in range(6):
            a("s_add_u32 m0, s54, %d" % (rt * 5120 + i * 1024))
            a("s_add_u32 s64, s60, %d" % (rt * 160 * 128 + i * 1024))
            a("buffer_load_dwordx4 v4, s[8:11], s64 offen lds")
    stamp(a, 1)
    a("v_lshrrev_b32 v0, 2, v2")
    for jj in range(4):
        a("v_cmp_ne_u32 s[%d:%d], %d, v0" % (66 + 2 * jj, 67 + 2 * jj, jj))
        a("v_cmp_eq_u32 s[%d:%d], %d, v3" % (74 + 2 * jj, 75 + 2 * jj, jj))
    a("v_lshlrev_b32 v6, 8, v3")
    a("v_lshl_add_u32 v6, v2, 3, v6")
    a("v_add_u32 v6, s54, v6")
    a("v_add_u32 v7, s54, v4")
    for r in list(range(40, 88, 2)) + list(range(98, 110, 2)) + list(range(T1, T1 + 48, 2)):
        a("v_pk_mov_b32 v[%d:%d], 0, 0" % (r, r + 1))
    for i in range(4):
        a("v_mov_b32 v%d, %s" % (232 + i, EPS))
    a("s_lshl_b32 s62, s58, 6")
    a("v_mov_b32 v1, s62")
    a("s_mov_b32 s63, 0")
    a.label("L_s2_poll")
    a("buffer_load_dword v0, v1, s[28:31], 0 offen sc1")
    a("s_waitcnt vmcnt(0)")
    a("v_readfirstlane_b32 s62, v0")
    a("s_add_u32 s63, s63, 1")
    a("s_cmp_ge_u32 s62, 8")
    a("s_cbranch_scc1 L_s2_ready")
    a("s_cmp_ge_u32 s63, 100000")
    a("s_cbranch_scc1 L_s2_ready")
    a("s_sleep 8")
    a("s_branch L_s2_poll")
    a.label("L_s2_ready")
    stamp(a, 2)
    for j in range(4):
        fload(j)
    pqreads(0)
    for j in range(8):
        jj = j & 3
        f0, f1 = F + 8 * jj, F + 8 * jj + 4
        P = PQB[j & 1]
        a("s_waitcnt vmcnt(%d)" % [6, 6, 6, 6, 6, 4, 2, 0][j])
        for i in range(4):
            a("v_mov_b32_dpp v%d, v%d row_newbcast:%d row_mask:0xf bank_mask:0xf" % (Z + i, f1 + i, (4 * jj + 4) & 15))
        a("s_nop 0")
        for i in range(4):
            a("v_cndmask_b32 v%d, v%d, 0, s[%d:%d]" % (f1 + i, f1 + i, 66 + 2 * jj, 67 + 2 * jj))
        a("s_waitcnt lgkmcnt(0)")
        if j < 7:
            pqreads(j + 1)
        else:
            a("s_nop 0")
        for rt in range(6):
            a("v_mfma_f32_16x16x32_bf16 %s, %s, %s, v[232:235]" % (vr(RY + 8 * rt + 4), vr(Z), vr(P + 4 * rt)))
        for rt in range(6):
            a("v_mfma_f32_16x16x32_bf16 %s, %s, %s, 0" % (vr(RY + 8 * rt), vr(f0), vr(P + 4 * rt)))
        for rt in range(6):
            t1 = T1 + ((j >> 2) * 6 + rt) * 4
            a("v_mfma_f32_16x16x32_bf16 %s, %s, %s, %s" % (vr(t1), vr(f1), vr(P + 4 * rt), vr(t1)))
            a("v_rcp_f32 v%d, v%d" % (RY + 8 * rt + 4, RY + 8 * rt + 4))
        if j < 4:
            fload(j + 4)
        else:
            a("s_nop 0")
        for rt in range(6):
            a("v_mul_f32 v%d, v%d, v%d" % (RY + 8 * rt + 4, RY + 8 * rt + 4, G[rt]))
        for rt in range(6):
            t0 = RY + 8 * rt
            for i in (0, 2):
                a("v_pk_mul_f32 v[%d:%d], v[%d:%d], v[%d:%d] op_sel_hi:[1,0]" % (t0 + i, t0 + i + 1, t0 + i, t0 + i + 1, t0 + 4, t0 + 5))
        for rt in range(6):
            t0 = RY + 8 * rt
            ds = DS + (j >> 2) * 6 + rt
            a("v_cndmask_b32 v%d, v%d, v%d, s[%d:%d]" % (ds, ds, t0 + 4, 74 + 2 * jj, 75 + 2 * jj))
        for rt in range(6):
            t0 = RY + 8 * rt
            oa = OA + 4 * rt + 2 * (j & 1)
            a("v_cvt_pk_bf16_f32 v%d, v%d, v%d" % (oa, t0, t0 + 1))
            a("v_cvt_pk_bf16_f32 v%d, v%d, v%d" % (oa + 1, t0 + 2, t0 + 3))
        if j & 1:
            a("s_waitcnt lgkmcnt(0)")
            for rt in range(6):
                a("ds_write_b128 v7, %s offset:%d" % (vr(OA + 4 * rt), rt * 5120 + (j >> 1) * 1024))
    for rt in range(6):
        for q in range(2):
            t1 = T1 + (q * 6 + rt) * 4
            ds = DS + q * 6 + rt
            for i in range(4):
                a("v_mul_f32 v%d, v%d, v%d" % (t1 + i, t1 + i, ds))
            oa = RY + 4 * rt + 2 * q
            a("v_cvt_pk_bf16_f32 v%d, v%d, v%d" % (oa, t1, t1 + 1))
            a("v_cvt_pk_bf16_f32 v%d, v%d, v%d" % (oa + 1, t1 + 2, t1 + 3))
        a("ds_write_b128 v7, %s offset:%d" % (vr(RY + 4 * rt), rt * 5120 + 4096))
    stamp(a, 3)
    stamp(a, 4)
    a("s_waitcnt lgkmcnt(0)")
    a("s_barrier")
    stamp_flush(a, 2, 8, 35)
    a("s_endpgm")
    a.label("L_s2_red")
    a("""
    s_cmp_lg_u32 s35, 0
    s_cbranch_scc1 L_s2_end
    v_mul_u32_u24 v4, 171, v1
    v_lshrrev_b32 v4, 9, v4                  ; e
    v_mul_u32_u24 v5, 3, v4
    v_sub_u32 v5, v1, v5                     ; g'
    v_mul_u32_u24 v6, 80, v4
    v_lshl_add_u32 v6, v5, 5, v6
    v_add_u32 v7, 16, v6
    v_mov_b32 v8, 0x7000000
    v_cmp_eq_u32 vcc, 2, v5
    s_mul_i32 s66, s3, 1680
    s_add_u32 s66, s66, 0x%x
    s_nop 0
    v_cndmask_b32 v7, v7, v8, vcc
    v_cmp_gt_u32 vcc, 63, v1
    s_and_saveexec_b64 s[72:73], vcc
    """ % WS_P)
    for rb in range(16):
        a("buffer_load_dwordx4 %s, v6, s[8:11], s66 offen" % vr(16 + 8 * rb))
        a("buffer_load_dwordx4 %s, v7, s[8:11], s66 offen" % vr(20 + 8 * rb))
        if rb < 15:
            a("s_add_u32 s66, s66, %d" % (32 * 1680))
    a("""
    s_and_b32 s67, s3, 3
    s_lshl_b32 s67, s67, 2
    s_sub_u32 s68, s67, 16
    v_add_u32 v8, s68, v4
    v_and_b32 v8, 15, v8
    v_add_u32 v8, 48, v8
    v_cmp_gt_u32 vcc, 16, v4
    s_mul_i32 s66, s3, 1536
    s_add_u32 s66, s66, 0x%x
    v_cndmask_b32 v8, v8, v4, vcc
    v_lshlrev_b32 v8, 4, v8
    v_lshl_add_u32 v8, v5, 8, v8
    """ % WS_KVT)
    for rb in range(1, 16):
        a("s_waitcnt vmcnt(%d)" % (30 - 2 * rb))
        for i in range(0, 8, 2):
            a("v_pk_add_f32 v[%d:%d], v[%d:%d], v[%d:%d]" % (16 + i, 17 + i, 16 + i, 17 + i, 16 + 8 * rb + i, 17 + 8 * rb + i))
    for i in range(4):
        a("v_cvt_pk_bf16_f32 v%d, v%d, v%d" % (12 + i, 16 + 2 * i, 17 + 2 * i))
    a("""
    buffer_store_dwordx4 v[12:15], v8, s[8:11], s66 offen sc1
    s_waitcnt vmcnt(0)
    v_mov_b32 v2, 1
    s_lshr_b32 s66, s3, 3
    s_lshl_b32 s66, s66, 6
    v_mov_b32 v3, s66
    s_mov_b64 exec, 1
    buffer_atomic_add v2, v3, s[28:31], 0 offen sc1
    s_waitcnt vmcnt(0)
    """)
    a.label("L_s2_end")
    a("s_endpgm")

def kd(name, vgpr, accum, sgpr=102):
    return """.amdhsa_kernel %s
  .amdhsa_next_free_vgpr %d
  .amdhsa_next_free_sgpr %d
  .amdhsa_accum_offset %d
  .amdhsa_group_segment_fixed_size 0
  .amdhsa_kernarg_size 96
  .amdhsa_user_sgpr_count 2
  .amdhsa_user_sgpr_kernarg_segment_ptr 1
  .amdhsa_system_sgpr_workgroup_id_x 1
.end_amdhsa_kernel
""" % (name, vgpr, sgpr, accum)

def main():
    a = Asm()
    hdr = open("cdna_kernels/%s.s.ref" % NAME).read().split("; Override launch")[0]
    out = hdr
    out += "; @launch kernel=s1_kernel grid=(256,1,1) block=(448,1,1) lds=%d\n" % (3 * S1_BUF + 16384)
    out += "; @launch kernel=s2_kernel grid=(252,1,1) block=(512,1,1) lds=122880\n"
    out += '.amdgcn_target "amdgcn-amd-amdhsa--gfx950"\n.text\n'
    stage1(a)
    stage2(a)
    out += a.text()
    out += '.section .rodata,"a"\n.p2align 6\n'
    out += kd("s1_kernel", 256, 256)
    out += ".p2align 6\n" + kd("s2_kernel", 256, 256)
    dst = sys.argv[1] if len(sys.argv) > 1 else "cdna_kernels/%s.s" % NAME
    open(dst, "w").write(out)

main()
```

```python
import sys, os

NAME = "gated_mix__linear_attn_block__dense_activation_squared_relu__prompt"

WS_H   = 0x000000
WS_PQF = 0x600000
WS_P   = 0x900000
WS_KVT = 0xA00000
WS_G   = 0xA10000
WS_FLAG = 0xA20000
WS_W2F = 0xC00000
WS_WOF = 0xE00000
WS_SIZE = 0x1000000
STAMP = int(os.environ.get("STAMP", "0"))
WS_STAMP = 0xB00000

class Asm:
    def __init__(self):
        self.L = []
    def __call__(self, s):
        for ln in s.strip("\n").split("\n"):
            if ln.strip():
                self.L.append("  " + ln.strip())
    def label(self, l):
        self.L.append(l + ":")
    def raw(self, s):
        self.L.append(s)
    def text(self):
        return "\n".join(self.L) + "\n"

def vr(b, n=4):
    return "v[%d:%d]" % (b, b + n - 1)

def srd(a, d, lo, size):
    a("s_mov_b32 s%d, s%d" % (d, lo))
    a("s_and_b32 s%d, s%d, 0xffff" % (d + 1, lo + 1))
    a("s_mov_b32 s%d, 0x%x" % (d + 2, size))
    a("s_mov_b32 s%d, 0x00020000" % (d + 3))

def interleave(a, main, side, start=1, every=1):
    side = list(side)
    for i, m in enumerate(main):
        a(m)
        if i >= start - 1 and (i - (start - 1)) % every == 0 and side:
            a(side.pop(0))
    for s in side:
        a(s)

DBG = int(os.environ.get("DBG", "0"))
def dbg_start(a):
    if DBG:
        a("s_memrealtime s[96:97]")
def dbg_end1(a):
    if DBG:
        a("s_waitcnt vmcnt(0)")
        a("s_memrealtime s[98:99]")
        a("s_waitcnt lgkmcnt(0)")
        a("s_or_b32 s97, s2, s35")
        a("s_cmp_lg_u32 s97, 0")
        a("s_cbranch_scc1 L_dbg1_%d" % len(a.L))
        lab = "L_dbg1_%d" % (len(a.L) - 1)
        a("v_mov_b32 v2, s96")
        a("v_mov_b32 v3, s98")
        a("v_mov_b32 v4, 0x%x" % WS_STAMP)
        a("s_mov_b64 exec, 1")
        a("buffer_store_dwordx2 v[2:3], v4, s[20:23], 0 offen")
        a("s_waitcnt vmcnt(0)")
        a.label(lab)
def dbg_end2(a):
    if DBG:
        a("s_waitcnt vmcnt(0)")
        a("s_memrealtime s[98:99]")
        a("s_waitcnt lgkmcnt(0)")
        a("s_or_b32 s97, s2, s35")
        a("s_cmp_lg_u32 s97, 0")
        a("s_cbranch_scc1 L_dbg2")
        a("v_mov_b32 v4, 0x%x" % WS_STAMP)
        a("s_mov_b64 exec, 1")
        a("buffer_load_dwordx2 v[8:9], v4, s[8:11], 0 offen")
        a("v_mov_b32 v10, s96")
        a("v_mov_b32 v11, s98")
        a("v_mov_b32 v4, 16")
        a("s_waitcnt vmcnt(0)")
        a("buffer_store_dwordx4 v[8:11], v4, s[28:31], 0 offen")
        a("s_waitcnt vmcnt(0)")
        a.label("L_dbg2")
def stamp_start(a):
    dbg_start(a)
    if STAMP:
        a("s_memrealtime s[86:87]")
        a("s_waitcnt lgkmcnt(0)")
        a("s_mov_b32 s94, s86")
        stamp(a, 0)
def stamp(a, idx):
    if STAMP:
        a("s_memtime s[86:87]")
        a("s_waitcnt lgkmcnt(0)")
        a("s_mov_b32 s%d, s86" % (88 + idx))
def stamp_flush(a, kern, srdreg, wavereg):
    if STAMP:
        a("s_waitcnt vmcnt(0)")
        stamp(a, 5)
        a("s_memrealtime s[86:87]")
        a("s_waitcnt lgkmcnt(0)")
        a("s_mov_b32 s95, s86")
        a("s_lshl_b32 s86, s2, 3")
        a("s_add_u32 s86, s86, s%d" % wavereg)
        a("s_lshl_b32 s86, s86, 5")
        a("s_add_u32 s86, s86, 0x%x" % (WS_STAMP + kern * 0x10000))
        a("s_mov_b64 exec, 1")
        for i in range(8):
            a("v_mov_b32 v2, s%d" % (88 + i))
            a("v_mov_b32 v3, %d" % (4 * i))
            a("buffer_store_dword v2, v3, s[%d:%d], s86 offen" % (srdreg, srdreg + 3))
        a("s_waitcnt vmcnt(0)")

LOG2E = "0x3fb8aa3b"
EPS = "0x358637bd"

def phi4(a, src, tmp, sl, se):
    for i in (0, 2):
        a("v_pk_mul_f32 v[%d:%d], v[%d:%d], s[%d:%d]" % (tmp + i, tmp + i + 1, src + i, src + i + 1, sl, sl + 1))
    for i in range(4):
        a("v_min_f32 v%d, 0, v%d" % (tmp + i, tmp + i))
    for i in range(4):
        a("v_exp_f32 v%d, v%d" % (tmp + i, tmp + i))
    for i in range(4):
        a("v_max_f32 v%d, 0, v%d" % (src + i, src + i))
    for i in (0, 2):
        a("v_pk_add_f32 v[%d:%d], v[%d:%d], v[%d:%d]" % (src + i, src + i + 1, src + i, src + i + 1, tmp + i, tmp + i + 1))
    for i in (0, 2):
        a("v_pk_add_f32 v[%d:%d], v[%d:%d], s[%d:%d]" % (src + i, src + i + 1, src + i, src + i + 1, se, se + 1))

def swap23_v(a, d, s, t):
    a("v_and_b32 v%d, 3, v%d" % (d, s))
    a("v_and_b32 v%d, 4, v%d" % (t, s))
    a("v_lshlrev_b32 v%d, 1, v%d" % (t, t))
    a("v_or_b32 v%d, v%d, v%d" % (d, d, t))
    a("v_and_b32 v%d, 8, v%d" % (t, s))
    a("v_lshrrev_b32 v%d, 1, v%d" % (t, t))
    a("v_or_b32 v%d, v%d, v%d" % (d, d, t))

S1_BUF = 45056
def stage1(a):
    a.raw(".globl s1_kernel\n.p2align 8\n.type s1_kernel,@function")
    a.label("s1_kernel")
    a("""
    s_cmp_ge_u32 s2, 256
    s_cbranch_scc1 L_s1_end
    """)
    stamp_start(a)
    a("""
    s_load_dwordx4 s[36:39], s[0:1], 0
    s_load_dwordx4 s[40:43], s[0:1], 32
    s_load_dwordx2 s[44:45], s[0:1], 64
    s_load_dwordx2 s[46:47], s[0:1], 88
    s_load_dwordx2 s[66:67], s[0:1], 16
    s_load_dwordx2 s[68:69], s[0:1], 48
    s_load_dwordx2 s[70:71], s[0:1], 80
    s_and_b32 s48, s2, 7
    s_lshr_b32 s49, s2, 3
    s_and_b32 s50, s48, 1
    s_lshl_b32 s50, s50, 3
    s_and_b32 s51, s49, 7
    s_add_u32 s32, s50, s51          ; rb
    s_lshr_b32 s50, s48, 1
    s_lshl_b32 s50, s50, 2
    s_lshr_b32 s51, s49, 3
    s_add_u32 s65, s50, s51          ; cg
    s_and_b32 s34, s65, 1            ; type
    s_lshr_b32 s33, s65, 1           ; jj
    v_and_b32 v1, 63, v0
    v_lshrrev_b32 v2, 6, v0
    s_nop 0
    v_readfirstlane_b32 s35, v2      ; wave
    s_nop 3
    s_lshr_b32 s52, s35, 1           ; wr
    s_and_b32 s53, s35, 1            ; wc
    s_mov_b32 s57, 0
    s_mov_b32 s58, 0
    s_mov_b32 s59, 0
    s_waitcnt lgkmcnt(0)
    """)
    srd(a, 8, 36, 2621440)
    srd(a, 12, 38, 2457600)
    srd(a, 16, 40, 1966080)
    srd(a, 20, 46, WS_SIZE)
    srd(a, 24, 42, 3072)
    srd(a, 28, 44, 1280)
    srd(a, 4, 70, 256)
    a("s_cmp_eq_u32 s35, 4")
    a("s_cbranch_scc1 L_s1_loader")
    a("s_cmp_eq_u32 s35, 5")
    a("s_cbranch_scc1 L_s1_loaderX")
    a("s_cmp_eq_u32 s35, 6")
    a("s_cbranch_scc1 L_s1_aux")
    a("""
    s_mov_b32 s78, %s
    s_mov_b32 s79, %s
    s_mov_b32 s80, %s
    s_mov_b32 s81, %s
    """ % (LOG2E, LOG2E, EPS, EPS))
    a("""
    v_and_b32 v2, 15, v1             ; m
    v_lshrrev_b32 v3, 4, v1          ; g
    s_lshl_b32 s60, s52, 6
    v_add_u32 v4, s60, v2
    v_lshlrev_b32 v4, 7, v4
    v_lshrrev_b32 v5, 1, v2
    v_xor_b32 v5, v5, v3
    v_lshlrev_b32 v6, 4, v5
    v_add_u32 v105, v4, v6
    v_xor_b32 v5, 4, v5
    v_lshlrev_b32 v6, 4, v5
    v_add_u32 v106, v4, v6
    v_lshrrev_b32 v4, 2, v1
    v_and_b32 v4, 3, v4              ; r
    v_and_b32 v5, 3, v1
    v_lshlrev_b32 v5, 3, v5          ; c*8
    v_lshrrev_b32 v6, 1, v3
    v_lshlrev_b32 v6, 4, v6
    v_and_b32 v7, 1, v3              ; g&1
    v_lshlrev_b32 v2, 2, v7
    v_add3_u32 v6, v6, v2, v4        ; pil
    s_cmp_eq_u32 s34, 1
    s_cbranch_scc1 L_s1_typeB
    """)
    for typ in (0, 1):
        if typ == 1:
            a.label("L_s1_typeB")
        stage1_type(a, typ)
    a.label("L_s1_loader")
    a("s_cmp_eq_u32 s34, 1")
    a("s_cbranch_scc1 L_s1_loaderB")
    stage1_loader(a, 0)
    a.label("L_s1_loaderB")
    stage1_loader(a, 1)
    a.label("L_s1_loaderX")
    stage1_loader(a, 2)
    a.label("L_s1_aux")
    stage1_aux(a)
    a.label("L_s1_end")
    a("s_endpgm")

def stage1_transposer_old(a):
    a("""
    s_lshl_b32 s60, s2, 2
    s_add_u32 s60, s60, s35
    s_cmp_ge_u32 s60, 720
    s_cbranch_scc1 L_s1_tr_done
    s_lshl_b32 s61, s35, 12
    s_add_u32 s61, s61, %d                   ; scratch base
    v_lshrrev_b32 v2, 3, v1                  ; lr
    v_and_b32 v4, 7, v1
    v_lshrrev_b32 v5, 4, v1
    v_lshlrev_b32 v5, 1, v5
    v_xor_b32 v6, v4, v5
    v_lshlrev_b32 v6, 4, v6                  ; colpart
    v_and_b32 v3, 3, v2
    v_lshrrev_b32 v4, 2, v2                  ; lr>>2
    s_cmp_ge_u32 s60, 480
    s_cbranch_scc1 L_s1_tr_wo
    """ % (3 * S1_BUF))
    srd(a, 72, 68, 1966080)
    a("""
    s_mul_i32 s62, s60, 6554
    s_lshr_b32 s62, s62, 16                  ; ks = u/10
    s_mul_i32 s63, s62, 10
    s_sub_u32 s63, s60, s63                  ; cb
    s_mul_i32 s70, s62, %d
    s_lshl_b32 s71, s63, 7
    s_add_u32 s70, s70, s71                  ; src soffset
    s_mul_i32 s71, s62, 40
    s_lshl_b32 s63, s63, 2
    s_add_u32 s71, s71, s63
    s_lshl_b32 s71, s71, 10
    s_add_u32 s71, s71, 0x%x                 ; dst offset
    v_lshlrev_b32 v5, 3, v4
    v_add_u32 v5, v5, v3
    v_mul_u32_u24 v5, 1280, v5
    v_add_u32 v7, v5, v6
    """ % (32 * 1280, WS_W2F))
    for i in range(4):
        a("s_add_u32 m0, s61, %d" % (i * 1024))
        a("s_add_u32 s64, s70, %d" % ((16 * (i >> 1) + 4 * (i & 1)) * 1280))
        a("buffer_load_dwordx4 v7, s[72:75], s64 offen lds")
    a("s_branch L_s1_tr_go")
    a.label("L_s1_tr_wo")
    srd(a, 72, 66, 819200)
    a("""
    s_sub_u32 s60, s60, 480
    s_mul_i32 s62, s60, 6554
    s_lshr_b32 s62, s62, 16                  ; st = u/10 (0..23)
    s_mul_i32 s63, s62, 10
    s_sub_u32 s63, s60, s63                  ; cb
    s_mul_i32 s71, s62, 40
    s_lshl_b32 s64, s63, 2
    s_add_u32 s71, s71, s64
    s_lshl_b32 s71, s71, 10
    s_add_u32 s71, s71, 0x%x                 ; dst offset
    s_mul_i32 s64, s62, 21846
    s_lshr_b32 s64, s64, 16                  ; wg8 = st/3
    s_mul_i32 s70, s64, 3
    s_sub_u32 s62, s62, s70                  ; step = st%%3
    s_mul_i32 s70, s64, %d                   ; 80*wg8 rows
    s_lshl_b32 s63, s63, 7
    s_add_u32 s70, s70, s63
    s_cmp_eq_u32 s62, 2
    s_cbranch_scc1 L_s1_tr_wo2
    s_mul_i32 s62, s62, %d                   ; 40 rows per pair step
    s_add_u32 s70, s70, s62
    v_mul_u32_u24 v5, 1280, v2
    v_add_u32 v7, v5, v6
    """ % (WS_WOF, 80 * 1280, 40 * 1280))
    for i in range(4):
        row = 20 * (i & 1) + 8 * ((i >> 1) & 1)
        a("s_add_u32 m0, s61, %d" % (i * 1024))
        a("s_add_u32 s64, s70, %d" % (row * 1280))
        a("buffer_load_dwordx4 v7, s[72:75], s64 offen lds")
    a("s_branch L_s1_tr_go")
    a.label("L_s1_tr_wo2")
    a("""
    v_mul_u32_u24 v5, 20, v4
    v_add_u32 v5, v5, v3
    v_mul_u32_u24 v5, 1280, v5
    v_add_u32 v7, v5, v6
    """)
    for i in range(4):
        row = 20 * (2 * ((i >> 1) & 1)) + 16
        a("s_add_u32 m0, s61, %d" % (i * 1024))
        a("s_add_u32 s64, s70, %d" % (row * 1280))
        a("buffer_load_dwordx4 v7, s[72:75], s64 offen lds")
    a.label("L_s1_tr_go")
    a("""
    v_lshrrev_b32 v3, 4, v1
    v_lshrrev_b32 v4, 2, v1
    v_and_b32 v4, 3, v4
    v_and_b32 v5, 3, v1
    v_lshlrev_b32 v5, 3, v5
    v_lshrrev_b32 v6, 1, v3
    v_lshlrev_b32 v6, 4, v6
    v_and_b32 v7, 1, v3
    v_lshlrev_b32 v7, 2, v7
    v_add3_u32 v6, v6, v7, v4
    v_lshrrev_b32 v7, 1, v6
    v_and_b32 v7, 3, v7
    v_lshlrev_b32 v6, 7, v6
    v_add3_u32 v6, v6, v5, s61
    v_lshlrev_b32 v2, 4, v1
    s_waitcnt vmcnt(0)
    """)
    for t in range(4):
        a("v_xor_b32 v4, %d, v7" % t)
        a("v_lshl_add_u32 v4, v4, 5, v6")
        a("ds_read_b64_tr_b16 v[%d:%d], v4" % (8 + 4 * t, 9 + 4 * t))
        a("ds_read_b64_tr_b16 v[%d:%d], v4 offset:1024" % (10 + 4 * t, 11 + 4 * t))
    a("s_waitcnt lgkmcnt(0)")
    for t in range(4):
        a("buffer_store_dwordx4 %s, v2, s[20:23], s71 offen offset:%d" % (vr(8 + 4 * t), t * 1024))
    a("s_nop 1")
    a.label("L_s1_tr_done")


def stage1_aux(a):
    SCR = 3 * S1_BUF
    a("v_lshlrev_b32 v2, 4, v1")
    a("s_mov_b32 m0, %d" % (SCR + 12288))
    a("s_nop 0")
    a("buffer_load_dwordx4 v2, s[28:31], 0 offen lds")
    a("buffer_load_dwordx4 v2, s[28:31], 0 offen offset:1024 lds")
    a("s_cmp_ge_u32 s2, 16")
    a("s_cbranch_scc1 L_s1_noz")
    a("v_pk_mov_b32 v[8:9], 0, 0")
    a("v_pk_mov_b32 v[10:11], 0, 0")
    a("s_lshl_b32 s60, s2, 10")
    a("s_add_u32 s60, s60, 0x%x" % WS_FLAG)
    a("buffer_store_dwordx4 v[8:11], v2, s[20:23], s60 offen")
    a.label("L_s1_noz")
    a("s_waitcnt vmcnt(0)")
    a("s_barrier")
    srd(a, 72, 68, 1966080)
    srd(a, 76, 66, 819200)
    a("""
    v_lshrrev_b32 v2, 3, v1                  ; lr
    v_and_b32 v4, 7, v1
    v_lshrrev_b32 v5, 4, v1
    v_lshlrev_b32 v5, 1, v5
    v_xor_b32 v6, v4, v5
    v_lshlrev_b32 v6, 4, v6                  ; colpart
    v_and_b32 v3, 3, v2
    v_lshrrev_b32 v4, 2, v2                  ; lr>>2
    v_lshlrev_b32 v5, 3, v4
    v_add_u32 v5, v5, v3
    v_mul_u32_u24 v5, 1280, v5
    v_add_u32 v7, v5, v6                     ; voff w2
    v_mul_u32_u24 v5, 1280, v2
    v_add_u32 v8, v5, v6
    v_mul_u32_u24 v5, 20, v4
    v_add_u32 v5, v5, v3
    v_mul_u32_u24 v5, 1280, v5
    v_add_u32 v9, v5, v6
    """)
    for n in range(3):
        D = 82 + n
        a("s_mul_i32 s60, s2, 3")
        a("s_add_u32 s60, s60, %d" % n)
        a("s_mov_b32 s%d, -1" % D)
        a("s_cmp_ge_u32 s60, 680")
        a("s_cbranch_scc1 L_s1_tr_done%d" % n)
        a("s_cmp_ge_u32 s60, 480")
        a("s_cbranch_scc1 L_s1_tr_wo%d" % n)
        a("""
        s_mul_i32 s62, s60, 6554
        s_lshr_b32 s62, s62, 16
        s_mul_i32 s63, s62, 10
        s_sub_u32 s63, s60, s63
        s_mul_i32 s70, s62, %d
        s_lshl_b32 s71, s63, 7
        s_add_u32 s70, s70, s71
        s_mul_i32 s71, s62, 40
        s_lshl_b32 s63, s63, 2
        s_add_u32 s71, s71, s63
        s_lshl_b32 s71, s71, 10
        s_add_u32 s%d, s71, 0x%x
        """ % (32 * 1280, D, WS_W2F))
        for i in range(4):
            a("s_mov_b32 m0, %d" % (SCR + n * 4096 + i * 1024))
            a("s_add_u32 s64, s70, %d" % ((16 * (i >> 1) + 4 * (i & 1)) * 1280))
            a("buffer_load_dwordx4 v7, s[72:75], s64 offen lds")
        a("s_branch L_s1_tr_done%d" % n)
        a.label("L_s1_tr_wo%d" % n)
        a("""
        s_sub_u32 s60, s60, 480
        s_mul_i32 s62, s60, 6554
        s_lshr_b32 s62, s62, 16
        s_mul_i32 s63, s62, 10
        s_sub_u32 s63, s60, s63
        s_mul_i32 s71, s62, 40
        s_lshl_b32 s64, s63, 2
        s_add_u32 s71, s71, s64
        s_lshl_b32 s71, s71, 10
        s_add_u32 s%d, s71, 0x%x
        s_mul_i32 s64, s62, 13108
        s_lshr_b32 s64, s64, 16
        s_mul_i32 s70, s64, 5
        s_sub_u32 s62, s62, s70
        s_mul_i32 s70, s64, %d
        s_lshl_b32 s63, s63, 7
        s_add_u32 s70, s70, s63
        s_cmp_eq_u32 s62, 4
        s_cbranch_scc1 L_s1_tr_wl%d
        s_mul_i32 s62, s62, %d
        s_add_u32 s70, s70, s62
        """ % (D, WS_WOF, 160 * 1280, n, 40 * 1280))
        for i in range(4):
            row = 20 * (i & 1) + 8 * ((i >> 1) & 1)
            a("s_mov_b32 m0, %d" % (SCR + n * 4096 + i * 1024))
            a("s_add_u32 s64, s70, %d" % (row * 1280))
            a("buffer_load_dwordx4 v8, s[76:79], s64 offen lds")
        a("s_branch L_s1_tr_done%d" % n)
        a.label("L_s1_tr_wl%d" % n)
        for i in range(4):
            row = 20 * (4 * (i & 1) + 2 * ((i >> 1) & 1)) + 16
            a("s_mov_b32 m0, %d" % (SCR + n * 4096 + i * 1024))
            a("s_add_u32 s64, s70, %d" % (row * 1280))
            a("buffer_load_dwordx4 v9, s[76:79], s64 offen lds")
        a.label("L_s1_tr_done%d" % n)
    a("s_barrier")
    a("s_barrier")
    a("s_barrier")
    a("s_waitcnt vmcnt(0)")
    a("""
    v_lshrrev_b32 v3, 4, v1
    v_lshrrev_b32 v4, 2, v1
    v_and_b32 v4, 3, v4
    v_and_b32 v5, 3, v1
    v_lshlrev_b32 v5, 3, v5
    v_lshrrev_b32 v6, 1, v3
    v_lshlrev_b32 v6, 4, v6
    v_and_b32 v7, 1, v3
    v_lshlrev_b32 v7, 2, v7
    v_add3_u32 v6, v6, v7, v4
    v_lshrrev_b32 v7, 1, v6
    v_and_b32 v7, 3, v7
    v_lshlrev_b32 v6, 7, v6
    v_add_u32 v6, v6, v5
    v_add_u32 v6, %d, v6
    v_lshlrev_b32 v2, 4, v1
    """ % SCR)
    for t in range(4):
        a("v_xor_b32 v4, %d, v7" % t)
        a("v_lshl_add_u32 v%d, v4, 5, v6" % (10 + t))
    for n in range(3):
        for t in range(4):
            b = 104 + 16 * n + 4 * t
            a("ds_read_b64_tr_b16 v[%d:%d], v%d offset:%d" % (b, b + 1, 10 + t, n * 4096))
            a("ds_read_b64_tr_b16 v[%d:%d], v%d offset:%d" % (b + 2, b + 3, 10 + t, n * 4096 + 1024))
    a("s_waitcnt lgkmcnt(0)")
    for n in range(3):
        a("s_cmp_eq_u32 s%d, -1" % (82 + n))
        a("s_cbranch_scc1 L_s1_tr_skip%d" % n)
        for t in range(4):
            a("buffer_store_dwordx4 %s, v2, s[20:23], s%d offen offset:%d" % (vr(104 + 16 * n + 4 * t), 82 + n, t * 1024))
        a.label("L_s1_tr_skip%d" % n)
    for i in range(7):
        a("s_barrier")
    a("s_endpgm")


def stage1_lastarriver(a, T):
    a("""
    s_waitcnt vmcnt(0)
    s_barrier
    s_cmp_lg_u32 s35, 0
    s_cbranch_scc1 L_s1_la_wait_%s
    v_mov_b32 v4, 1
    s_lshl_b32 s63, s33, 2
    v_mov_b32 v5, s63
    s_mov_b64 s[72:73], exec
    s_mov_b64 exec, 1
    buffer_atomic_add v4, v5, s[4:7], 0 offen sc0 sc1
    s_waitcnt vmcnt(0)
    v_mov_b32 v5, 0x%x
    ds_write_b32 v5, v4
    s_waitcnt lgkmcnt(0)
    s_mov_b64 exec, s[72:73]
    """ % (T, 3 * S1_BUF + 12288))
    a.label("L_s1_la_wait_%s" % T)
    a("""
    s_barrier
    v_mov_b32 v5, 0x%x
    ds_read_b32 v4, v5
    s_waitcnt lgkmcnt(0)
    v_readfirstlane_b32 s63, v4
    s_nop 3
    s_cmp_lg_u32 s63, 15
    s_cbranch_scc1 L_s1_la_done_%s
    ; ---- reduce head h = 4jj + w : lane t<63: e=t/3, g'=t%%3
    v_mul_u32_u24 v4, 171, v1
    v_lshrrev_b32 v4, 9, v4                  ; e
    v_mul_u32_u24 v5, 3, v4
    v_sub_u32 v5, v1, v5                     ; g'
    v_mul_u32_u24 v6, 80, v4
    v_lshl_add_u32 v6, v5, 5, v6
    v_add_u32 v7, 16, v6
    v_mov_b32 v8, 0x7000000
    v_cmp_eq_u32 vcc, 2, v5
    s_lshl_b32 s64, s33, 2
    s_add_u32 s64, s64, s35                  ; head
    s_mul_i32 s66, s64, 1680
    s_add_u32 s66, s66, 0x%x
    v_cndmask_b32 v7, v7, v8, vcc
    v_cmp_gt_u32 vcc, 63, v1
    s_and_saveexec_b64 s[72:73], vcc
    """ % (3 * S1_BUF + 12288, T, WS_P))
    for rb in range(16):
        a("buffer_load_dwordx4 %s, v6, s[20:23], s66 offen sc1" % vr(16 + 8 * rb))
        a("buffer_load_dwordx4 %s, v7, s[20:23], s66 offen sc1" % vr(20 + 8 * rb))
        if rb < 15:
            a("s_add_u32 s66, s66, %d" % (32 * 1680))
    a("""
    s_lshl_b32 s67, s35, 2
    s_sub_u32 s68, s67, 16
    v_add_u32 v8, s68, v4                    ; 4w + e - 16
    v_and_b32 v8, 15, v8
    v_add_u32 v8, 48, v8                     ; +768/16
    v_cmp_gt_u32 vcc, 16, v4
    s_mul_i32 s66, s64, 1536
    s_add_u32 s66, s66, 0x%x
    v_cndmask_b32 v8, v8, v4, vcc
    v_lshlrev_b32 v8, 4, v8
    v_lshl_add_u32 v8, v5, 8, v8
    """ % WS_KVT)
    for rb in range(1, 16):
        a("s_waitcnt vmcnt(%d)" % (30 - 2 * rb))
        for i in range(0, 8, 2):
            a("v_pk_add_f32 v[%d:%d], v[%d:%d], v[%d:%d]" % (16 + i, 17 + i, 16 + i, 17 + i, 16 + 8 * rb + i, 17 + 8 * rb + i))
    for i in range(4):
        a("v_cvt_pk_bf16_f32 v%d, v%d, v%d" % (12 + i, 16 + 2 * i, 17 + 2 * i))
    a("buffer_store_dwordx4 v[12:15], v8, s[20:23], s66 offen")
    a("s_mov_b64 exec, s[72:73]")
    a.label("L_s1_la_done_%s" % T)


def stage1_gate(a):
    a("""
    s_lshl_b32 s60, s32, 7
    s_lshl_b32 s61, s33, 4
    s_add_u32 s60, s60, s61
    s_lshl_b32 s61, s35, 2
    s_add_u32 s60, s60, s61
    v_lshrrev_b32 v2, 5, v1
    v_add_u32 v2, s60, v2
    v_lshlrev_b32 v100, 2, v2
    v_add_u32 v100, 0x%x, v100
    v_mul_u32_u24 v2, 1280, v2
    v_and_b32 v3, 31, v1
    v_cmp_eq_u32 s[74:75], 0, v3
    v_mul_u32_u24 v3, 40, v3
    v_add_u32 v2, v2, v3
    buffer_load_dwordx4 v[20:23], v3, s[28:31], 0 offen
    buffer_load_dwordx4 v[24:27], v3, s[28:31], 0 offen offset:16
    buffer_load_dwordx2 v[28:29], v3, s[28:31], 0 offen offset:32
    """ % WS_G)
    for p in range(2):
        b = 32 + 12 * p
        a("buffer_load_dwordx4 %s, v2, s[8:11], 0 offen offset:%d" % (vr(b), p * 2560))
        a("buffer_load_dwordx4 %s, v2, s[8:11], 0 offen offset:%d" % (vr(b + 4), p * 2560 + 16))
        a("buffer_load_dwordx2 v[%d:%d], v2, s[8:11], 0 offen offset:%d" % (b + 8, b + 9, p * 2560 + 32))

def stage1_gate2(a, nst):
    a("s_waitcnt vmcnt(%d)" % nst)
    for i in range(10):
        a("v_lshlrev_b32 v%d, 16, v%d" % (60 + 2 * i, 20 + i))
        a("v_and_b32 v%d, 0xffff0000, v%d" % (61 + 2 * i, 20 + i))
    a("v_pk_mov_b32 v[96:97], 0, 0")
    for i in range(10):
        for p in range(2):
            b = 32 + 12 * p; t = 8 + 4 * p
            a("v_lshlrev_b32 v%d, 16, v%d" % (t, b + i))
            a("v_and_b32 v%d, 0xffff0000, v%d" % (t + 1, b + i))
        for p in range(2):
            t = 8 + 4 * p
            a("v_pk_mul_f32 v[%d:%d], v[%d:%d], v[%d:%d]" % (t, t + 1, t, t + 1, 60 + 2 * i, 61 + 2 * i))
        for p in range(2):
            t = 8 + 4 * p
            a("v_cvt_pk_bf16_f32 v%d, v%d, v%d" % (t, t, t + 1))
        for p in range(2):
            t = 8 + 4 * p
            a("v_lshlrev_b32 v%d, 16, v%d" % (t + 1, t))
            a("v_and_b32 v%d, 0xffff0000, v%d" % (t, t))
        for p in range(2):
            t = 8 + 4 * p
            a("v_add_f32 v%d, v%d, v%d" % (96 + p, 96 + p, t + 1))
        for p in range(2):
            t = 8 + 4 * p
            a("v_add_f32 v%d, v%d, v%d" % (96 + p, 96 + p, t))
    for mode in ("quad_perm:[1,0,3,2]", "quad_perm:[2,3,0,1]", "row_half_mirror", "row_mirror"):
        a("s_nop 1")
        for p in range(2):
            a("v_add_f32_dpp v%d, v%d, v%d %s row_mask:0xf bank_mask:0xf" % (96 + p, 96 + p, 96 + p, mode))
    for p in range(2):
        a("ds_swizzle_b32 v%d, v%d offset:0x401F" % (98 + p, 96 + p))
    a("s_waitcnt lgkmcnt(0)")
    for ins in ("v_add_f32 v{r}, v{r}, v{q}", "v_cvt_pk_bf16_f32 v{r}, v{r}, v{r}", "v_lshlrev_b32 v{r}, 16, v{r}", "v_mul_f32 v{r}, 0xbfb8aa3b, v{r}",
                "v_exp_f32 v{r}, v{r}", "NOP", "v_add_f32 v{r}, 1.0, v{r}", "v_rcp_f32 v{r}, v{r}", "NOP", "v_cvt_pk_bf16_f32 v{r}, v{r}, v{r}", "v_lshlrev_b32 v{r}, 16, v{r}"):
        if ins == "NOP":
            a("s_nop 0"); continue
        for p in range(2):
            a(ins.format(r=96 + p, q=98 + p))
    a("s_and_saveexec_b64 s[72:73], s[74:75]")
    for p in range(2):
        a("buffer_store_dword v%d, v100, s[20:23], 0 offen offset:%d" % (96 + p, p * 8))
    a("s_mov_b64 exec, s[72:73]")

def s1_warm(a):
    if int(os.environ.get("WARM", "1")):
        a("v_lshlrev_b32 v2, 4, v1")
        for (srdn, S, n) in ((8, 10240, 3), (12, 9600, 3), (16, 7680, 2)):
            a("s_mul_i32 s60, s2, %d" % S)
            a("s_mul_i32 s61, s35, %d" % (S // 4))
            a("s_add_u32 s60, s60, s61")
            for i in range(n):
                a("buffer_load_dwordx4 v[240:243], v2, s[%d:%d], s60 offen offset:%d" % (srdn, srdn + 3, i * 1024))

def s1_dma(typ):
    L = []
    if typ == 2:
        for i in range(16):
            L.append("s_add_u32 m0, s57, %d" % (i * 1024))
            L.append("s_add_u32 s64, s54, %d" % (i * 10240))
            L.append("buffer_load_dwordx4 v%d, s[8:11], s64 offen lds" % (96 + (i & 1)))
        L.append("s_add_u32 s54, s54, 128")
    elif typ == 0:
        for i in range(28):
            L.append("s_add_u32 m0, s57, %d" % (16384 + i * 1024))
            L.append("s_add_u32 s64, s55, %d" % ((i // 7) * 16 * 3840))
            L.append("buffer_load_dwordx4 v%d, s[12:15], s64 offen lds" % (98 + i % 7))
        L.append("s_add_u32 s55, s55, %d" % (64 * 3840))
    else:
        for i in range(24):
            L.append("s_add_u32 m0, s57, %d" % (16384 + i * 1024))
            L.append("s_add_u32 s64, s56, %d" % ((i // 6) * 16 * 3072))
            L.append("buffer_load_dwordx4 v%d, s[16:19], s64 offen lds" % (98 + i % 6))
        for i in range(2):
            L.append("s_add_u32 m0, s57, %d" % (16384 + 24576 + i * 1024))
            L.append("s_add_u32 s64, s55, %d" % (i * 32 * 3840))
            L.append("buffer_load_dwordx4 v104, s[12:15], s64 offen lds")
        L.append("s_add_u32 s55, s55, %d" % (64 * 3840))
        L.append("s_add_u32 s56, s56, %d" % (64 * 3072))
    L.append("s_add_u32 s57, s57, %d" % S1_BUF)
    L.append("s_cmp_eq_u32 s57, %d" % (3 * S1_BUF))
    L.append("s_cselect_b32 s57, 0, s57")
    return L

def stage1_loader(a, typ):
    T = "ABX"[typ]
    N = [28, 26, 16][typ]
    if typ == 2:
        a("""
        v_lshrrev_b32 v2, 3, v1
        v_mul_u32_u24 v2, 1280, v2
        v_and_b32 v3, 7, v1
        v_lshrrev_b32 v4, 4, v1
        v_xor_b32 v5, v3, v4
        v_lshlrev_b32 v6, 4, v5
        v_add_u32 v96, v2, v6
        v_xor_b32 v5, 4, v5
        v_lshlrev_b32 v6, 4, v5
        v_add_u32 v97, v2, v6
        s_lshl_b32 s60, s32, 7
        s_mul_i32 s54, s60, 1280
        """)
    else:
        a("s_mov_b32 s55, 0")
        a("s_mov_b32 s56, 0")
    if typ == 0:
        C = 28
        a("s_mov_b32 s67, %d" % ((2**32 + C - 1) // C))
        a("s_mul_i32 s68, s33, 160")
        a("s_add_u32 s69, s68, 1280")
        a("s_add_u32 s70, s68, %d" % (2560 - 160))
        a("s_lshl_b32 s71, s33, 7")
        a("s_sub_u32 s71, s71, 320")
        a("v_mov_b32 v8, s69")
        a("v_mov_b32 v9, s70")
        a("v_mov_b32 v10, s71")
        for i in range(7):
            a("v_add_u32 v2, %d, v1" % (64 * i))
            a("v_mul_hi_u32 v3, v2, s67")
            a("v_mul_u32_u24 v4, %d, v3" % C)
            a("v_sub_u32 v4, v2, v4")
            a("v_and_b32 v5, 4, v3")
            a("v_lshrrev_b32 v5, 1, v5")
            a("v_xor_b32 v4, v4, v5")
            a("v_cmp_gt_u32 vcc, 10, v4")
            a("v_cmp_gt_u32 s[72:73], 20, v4")
            swap23_v(a, 5, 3, 6)
            a("v_mul_u32_u24 v5, 3840, v5")
            a("v_cndmask_b32 v6, v9, v8, vcc")
            a("v_cndmask_b32 v6, v10, v6, s[72:73]")
            a("v_lshlrev_b32 v4, 4, v4")
            a("v_add3_u32 v%d, v5, v6, v4" % (98 + i))
    elif typ == 1:
        C = 24
        a("s_mov_b32 s67, %d" % ((2**32 + C - 1) // C))
        a("s_mul_i32 s68, s33, 384")
        for i in range(6):
            a("v_add_u32 v2, %d, v1" % (64 * i))
            a("v_mul_hi_u32 v3, v2, s67")
            a("v_mul_u32_u24 v4, %d, v3" % C)
            a("v_sub_u32 v4, v2, v4")
            a("v_and_b32 v5, 6, v3")
            a("v_xor_b32 v4, v4, v5")
            swap23_v(a, 5, 3, 6)
            a("v_mul_u32_u24 v5, 3072, v5")
            a("v_lshlrev_b32 v4, 4, v4")
            a("v_add3_u32 v%d, v5, s68, v4" % (98 + i))
        a("v_lshrrev_b32 v2, 1, v1")
        a("v_and_b32 v3, 15, v2")
        swap23_v(a, 5, 3, 6)
        a("v_and_b32 v3, 16, v2")
        a("v_add_u32 v5, v5, v3")
        a("v_mul_u32_u24 v5, 3840, v5")
        a("v_and_b32 v4, 1, v1")
        a("v_lshlrev_b32 v4, 4, v4")
        a("s_lshl_b32 s68, s33, 5")
        a("s_add_u32 s68, s68, 1024")
        a("v_add3_u32 v104, v5, s68, v4")
    stamp(a, 1)
    a.label("L_s1_ld_%s" % T)
    for s in s1_dma(typ):
        if int(os.environ.get("NODMA", "0")) and "buffer_load" in s: continue
        a(s)
    a("s_add_u32 s59, s59, 1")
    a("s_cmp_eq_u32 s59, 1")
    a("s_cbranch_scc1 L_s1_ld_%s" % T)
    if STAMP:
        a("s_cmp_lg_u32 s59, 2")
        a("s_cbranch_scc1 L_s1_ldst_%s" % T)
        stamp(a, 2)
        a("s_waitcnt vmcnt(%d)" % N)
        stamp(a, 3)
        a.label("L_s1_ldst_%s" % T)
    a("s_waitcnt vmcnt(%d)" % N)
    a("s_barrier")
    a("s_cmp_lt_u32 s59, 10")
    a("s_cbranch_scc1 L_s1_ld_%s" % T)
    a("s_waitcnt vmcnt(0)")
    a("s_barrier")
    a("s_barrier")
    stamp(a, 4)
    stamp_flush(a, 0, 20, 35)
    a("s_endpgm")

def stage1_type(a, typ):
    T = "AB"[typ]
    if typ == 0:
        a("""
        v_mul_u32_u24 v2, 448, v6
        v_add_u32 v2, v2, v5
        v_add_u32 v2, 16384, v2
        v_lshlrev_b32 v7, 5, v7
        v_add_u32 v107, v2, v7
        v_sub_u32 v108, v2, v7
        """)
        nb = 2
    else:
        a("""
        v_mul_u32_u24 v2, 384, v6
        v_add_u32 v2, v2, v5
        v_add_u32 v2, 16384, v2
        v_lshrrev_b32 v7, 1, v6
        v_and_b32 v7, 3, v7
        """)
        for j in range(4):
            a("v_xor_b32 v3, %d, v7" % j)
            a("v_subrev_u32 v3, %d, v3" % j)
            a("v_lshlrev_b32 v3, 5, v3")
            a("v_add_u32 v%d, v2, v3" % (107 + j))
        a("v_lshlrev_b32 v2, 5, v6")
        a("v_add_u32 v2, v2, v5")
        a("v_add_u32 v111, %d, v2" % (16384 + 24576))
        nb = 5
        a("s_mul_i32 s63, s33, 384")
        a("s_mul_i32 s64, s53, 192")
        a("s_add_u32 s63, s63, s64")
        a("v_lshrrev_b32 v3, 4, v1")
        a("v_lshlrev_b32 v4, 3, v3")
        for i in range(6):
            a("buffer_load_dwordx2 v[%d:%d], v4, s[24:27], s63 offen offset:%d" % (32 + 2 * i, 33 + 2 * i, 32 * i))
    a("s_cmp_eq_u32 s53, 1")
    a("s_cbranch_scc1 L_s1_%s1" % T)
    for wc in (0, 1):
        if wc == 1:
            a.label("L_s1_%s1" % T)
        stage1_wave(a, typ, wc, nb)

def s1_tiles(typ, wc):
    if typ == 0:
        return [("k", 0), ("k", 1), ("k", 2), ("v", 0), ("v", 1), ("q", 0), ("q", 1)] if wc == 0 else \
               [("k", 3), ("k", 4), ("v", 2), ("v", 3), ("v", 4), ("q", 2), ("q", 3)]
    else:
        return [("h", i) for i in range(6)] + [("q", 0)] if wc == 0 else [("h", i) for i in range(6, 12)] + [("g", 0)]

def s1_reads(typ, tiles, ks, aset, bset):
    L = []
    for ti, (kind, idx) in enumerate(tiles):
        if kind == "g":
            L.append("ds_read_b128 %s, v119 offset:%d" % (vr(bset + 4 * ti), 64 * ks))
            continue
        for hh in range(2):
            dst = bset + 4 * ti + 2 * hh
            if typ == 0:
                slot = {"k": 0, "v": 5, "q": 10}[kind] + idx
                base = 114 + (slot & 1)
                off = (32 * ks + 8 * hh) * 448 + slot * 32
            else:
                if kind == "q":
                    base = 118
                    off = (32 * ks + 8 * hh) * 32
                else:
                    base = 114 + (idx & 3)
                    off = (32 * ks + 8 * hh) * 384 + idx * 32
            L.append("ds_read_b64_tr_b16 v[%d:%d], v%d offset:%d" % (dst, dst + 1, base, off))
        if ti == 0:
            for rt in range(4):
                L.append("ds_read_b128 %s, v%d offset:%d" % (vr(aset + 4 * rt), 112 + ks, rt * 2048))
    return L

def s1_mfmas(tiles, aset, bset):
    L = []
    for ti, (kind, idx) in enumerate(tiles):
        for rt in range(4):
            acc = 128 + (ti * 4 + rt) * 4
            x = vr(aset + 4 * rt); w = vr(bset + 4 * ti)
            if kind in ("k", "v"):
                L.append("v_mfma_f32_16x16x32_bf16 %s, %s, %s, %s" % (vr(acc), x, w, vr(acc)))
            else:
                L.append("v_mfma_f32_16x16x32_bf16 %s, %s, %s, %s" % (vr(acc), w, x, vr(acc)))
    return L

def s1_setbase(nb):
    L = ["v_add_u32 v112, s58, v105", "v_add_u32 v113, s58, v106"]
    for j in range(nb):
        L.append("v_add_u32 v%d, s58, v%d" % (114 + j, 107 + j))
    return L

def stage1_wave(a, typ, wc, nb):
    T = "AB"[typ] + str(wc)
    tiles = s1_tiles(typ, wc)
    if typ == 1:
        a("s_waitcnt vmcnt(0)")
    for ti, (kind, idx) in enumerate(tiles):
        acc = 128 + (ti * 4) * 4
        if kind == "h":
            b = 32 + 2 * (idx % 6)
            a("v_lshlrev_b32 v%d, 16, v%d" % (acc, b))
            a("v_and_b32 v%d, 0xffff0000, v%d" % (acc + 1, b))
            a("v_lshlrev_b32 v%d, 16, v%d" % (acc + 2, b + 1))
            a("v_and_b32 v%d, 0xffff0000, v%d" % (acc + 3, b + 1))
            for rt in range(1, 4):
                for i in (0, 2):
                    a("v_pk_mov_b32 v[%d:%d], v[%d:%d], v[%d:%d] op_sel:[0,1]" % (acc + 4 * rt + i, acc + 4 * rt + i + 1, acc + i, acc + i + 1, acc + i, acc + i + 1))
        else:
            for r in range(0, 16, 2):
                a("v_pk_mov_b32 v[%d:%d], 0, 0" % (acc + r, acc + r + 1))
    for s in s1_setbase(nb):
        a(s)
    GT = (typ == 1 and wc == 1)
    if GT:
        a("v_lshrrev_b32 v119, 4, v1")
        a("v_lshlrev_b32 v119, 4, v119")
        a("v_add_u32 v119, %d, v119" % (3 * S1_BUF + 12288))
    s1_warm(a)
    stamp(a, 1)
    a("s_barrier")
    for s in s1_reads(typ, tiles, 0, 64, 8):
        a(s)
    a("s_waitcnt lgkmcnt(0)")
    stamp(a, 2)
    a.label("L_s1_loop_%s" % T)
    NOLDS = int(os.environ.get("NOLDS", "0"))
    interleave(a, s1_mfmas(tiles, 64, 8), [] if NOLDS else s1_reads(typ, tiles, 1, 80, 36))
    a("s_add_u32 s58, s58, %d" % S1_BUF)
    a("s_cmp_eq_u32 s58, %d" % (3 * S1_BUF))
    a("s_cselect_b32 s58, 0, s58")
    a("s_waitcnt lgkmcnt(0)")
    a("s_barrier")
    m = s1_mfmas(tiles, 80, 36)
    interleave(a, m, s1_setbase(nb) + (["v_add_u32 v119, 128, v119"] if GT else []) + ([] if NOLDS else s1_reads(typ, tiles, 0, 64, 8)))
    a("s_add_u32 s59, s59, 1")
    a("s_cmp_lt_u32 s59, 10")
    a("s_waitcnt lgkmcnt(0)")
    a("s_cbranch_scc1 L_s1_loop_%s" % T)
    stamp(a, 3)
    a("v_and_b32 v2, 15, v1")
    a("v_lshrrev_b32 v3, 4, v1")
    a("s_lshl_b32 s60, s32, 7")
    a("s_lshl_b32 s63, s52, 6")
    a("s_add_u32 s60, s60, s63")
    if typ == 1:
        a("s_lshl_b32 s63, s52, 8")
        a("v_lshl_add_u32 v6, v2, 2, s63")
        if wc == 1:
            gacc = 128 + 6 * 16
            a("s_nop 4")
            for ins in ("v_cvt_pk_bf16_f32 v{r}, v{g}, v{g}", "v_lshlrev_b32 v{r}, 16, v{r}", "v_mul_f32 v{r}, 0xbfb8aa3b, v{r}", "v_exp_f32 v{r}, v{r}", "NOP",
                        "v_add_f32 v{r}, 1.0, v{r}", "v_rcp_f32 v{r}, v{r}", "NOP", "v_cvt_pk_bf16_f32 v{r}, v{r}, v{r}", "v_lshlrev_b32 v{r}, 16, v{r}",
                        "v_sub_f32 v{o}, 1.0, v{r}", "v_cvt_pk_bf16_f32 v{o}, v{o}, v{o}", "v_lshlrev_b32 v{o}, 16, v{o}"):
                if ins == "NOP":
                    a("s_nop 0"); continue
                for rt in range(4):
                    a(ins.format(r=21 + 2 * rt, o=20 + 2 * rt, g=gacc + 4 * rt))
            a("v_add_u32 v4, s60, v2")
            a("v_lshlrev_b32 v4, 2, v4")
            a("v_add_u32 v4, 0x%x, v4" % WS_G)
            a("v_cmp_eq_u32 vcc, 0, v3")
            a("s_and_saveexec_b64 s[72:73], vcc")
            for rt in range(4):
                a("ds_write_b32 v6, v%d offset:%d" % (20 + 2 * rt, rt * 64))
                a("buffer_store_dword v%d, v4, s[20:23], 0 offen offset:%d" % (21 + 2 * rt, rt * 64))
            a("s_mov_b64 exec, s[72:73]")
            a("s_waitcnt lgkmcnt(0)")
            a("s_barrier")
        else:
            a("s_barrier")
            for rt in range(4):
                a("ds_read_b32 v%d, v6 offset:%d" % (20 + 2 * rt, rt * 64))
            a("s_waitcnt lgkmcnt(0)")
    first_h = True; first_kv = True
    for ti, (kind, idx) in enumerate(tiles):
        if kind == "g":
            continue
        if kind == "h":
            if first_h:
                a("v_and_b32 v4, 1, v3")
                a("v_mul_u32_u24 v4, 192, v4")
                a("v_lshrrev_b32 v5, 1, v3")
                a("v_add_u32 v4, v4, v5")
                a("v_lshlrev_b32 v4, 8, v4")
                a("v_lshl_add_u32 v5, v2, 4, v4")
                a("s_lshr_b32 s63, s60, 4")
                a("s_mul_i32 s63, s63, 192")
                a("s_mul_i32 s64, s33, 24")
                a("s_add_u32 s63, s63, s64")
                a("s_add_u32 s63, s63, %d" % (12 * wc))
                a("s_lshl_b32 s63, s63, 8")
                a("s_add_u32 s66, s63, %d" % (2 * 192 * 256))
                first_h = False
            for p in range(2):
                accA = 128 + (ti * 4 + 2 * p) * 4
                accB = accA + 4
                for i in range(8):
                    a("v_max_f32 v%d, 0, v%d" % (accA + i, accA + i))
                for i in range(0, 8, 2):
                    a("v_pk_mul_f32 v[%d:%d], v[%d:%d], v[%d:%d]" % (accA + i, accA + i + 1, accA + i, accA + i + 1, accA + i, accA + i + 1))
                for i in range(0, 8, 2):
                    om = 20 + 2 * (2 * p + (i >> 2))
                    a("v_pk_mul_f32 v[%d:%d], v[%d:%d], v[%d:%d] op_sel_hi:[1,0]" % (accA + i, accA + i + 1, accA + i, accA + i + 1, om, om + 1))
                a("v_cvt_pk_bf16_f32 v%d, v%d, v%d" % (accA, accA, accA + 1))
                a("v_cvt_pk_bf16_f32 v%d, v%d, v%d" % (accA + 1, accA + 2, accA + 3))
                a("v_cvt_pk_bf16_f32 v%d, v%d, v%d" % (accA + 2, accB, accB + 1))
                a("v_cvt_pk_bf16_f32 v%d, v%d, v%d" % (accA + 3, accB + 2, accB + 3))
                a("s_nop 1")
                a("v_permlane16_swap_b32 v%d, v%d" % (accA, accA + 2))
                a("v_permlane16_swap_b32 v%d, v%d" % (accA + 1, accA + 3))
                a("buffer_store_dwordx4 %s, v5, s[20:23], s%d offen offset:%d" % (vr(accA), [63, 66][p], (idx % 6) * 512))
        elif kind == "q":
            if typ == 0:
                a("s_lshl_b32 s63, s33, 4")
                a("s_add_u32 s63, s63, %d" % (4 * idx))
            else:
                a("s_lshl_b32 s63, s33, 2")
                a("s_add_u32 s63, s63, 128")
            a("s_lshr_b32 s64, s60, 4")
            a("s_mul_i32 s64, s64, 160")
            a("s_add_u32 s63, s63, s64")
            a("s_lshl_b32 s63, s63, 7")
            a("s_add_u32 s63, s63, 0x%x" % WS_PQF)
            a("v_lshlrev_b32 v7, 3, v1")
            for rt in range(4):
                acc = 128 + (ti * 4 + rt) * 4
                phi4(a, acc, 12, 78, 80)
                a("v_cvt_pk_bf16_f32 v%d, v%d, v%d" % (acc, acc, acc + 1))
                a("v_cvt_pk_bf16_f32 v%d, v%d, v%d" % (acc + 1, acc + 2, acc + 3))
                a("s_add_u32 s64, s63, %d" % (rt * 160 * 128))
                a("buffer_store_dwordx2 v[%d:%d], v7, s[20:23], s64 offen" % (acc, acc + 1))
        else:
            tc0 = 16 * idx + (80 if kind == "v" else 0)
            if first_kv:
                a("v_mul_u32_u24 v5, 272, v2")
                a("v_lshlrev_b32 v6, 3, v3")
                a("s_lshl_b32 s63, s52, 7")
                a("v_add3_u32 v5, v5, v6, s63")
                first_kv = False
            for rt in range(4):
                acc = 128 + (ti * 4 + rt) * 4
                if kind == "k":
                    phi4(a, acc, 12, 78, 80)
                a("v_cvt_pk_bf16_f32 v%d, v%d, v%d" % (acc, acc, acc + 1))
                a("v_cvt_pk_bf16_f32 v%d, v%d, v%d" % (acc + 1, acc + 2, acc + 3))
                a("ds_write_b64 v5, v[%d:%d] offset:%d" % (acc, acc + 1, tc0 * 272 + rt * 32))
            if ti == 4:
                a("s_waitcnt lgkmcnt(0)")
                a("s_barrier")
                a("s_mul_i32 s63, s35, %d" % (20 * 272))
                a("v_mul_u32_u24 v5, 272, v2")
                a("v_lshlrev_b32 v6, 4, v3")
                a("v_add3_u32 v5, v5, v6, s63")
                for ks in range(4):
                    b = 16 + 16 * ks
                    a("ds_read_b128 %s, v5 offset:%d" % (vr(b), ks * 64))
                    a("ds_read_b128 %s, v5 offset:%d" % (vr(b + 4), ks * 64 + 16 * 272))
                    a("ds_read_b128 %s, v5 offset:%d" % (vr(b + 8), ks * 64 + 80 * 272))
                    a("ds_read_b128 %s, v5 offset:%d" % (vr(b + 12), ks * 64 + 96 * 272))
                a("v_cmp_eq_u32 vcc, 4, v2")
                a("v_mov_b32 v6, 0x3f803f80")
                a("s_waitcnt lgkmcnt(0)")
                for ks in range(4):
                    b = 16 + 16 * ks
                    for i in range(4):
                        a("v_cndmask_b32 v%d, v%d, v6, vcc" % (b + 12 + i, b + 12 + i))
                a("s_nop 1")
                for ks in range(4):
                    b = 16 + 16 * ks
                    c = lambda r: ("0" if ks == 0 else vr(r))
                    a("v_mfma_f32_16x16x32_bf16 v[80:83], %s, %s, %s" % (vr(b), vr(b + 8), c(80)))
                    a("v_mfma_f32_16x16x32_bf16 v[84:87], %s, %s, %s" % (vr(b), vr(b + 12), c(84)))
                    a("v_mfma_f32_16x16x32_bf16 v[88:91], %s, %s, %s" % (vr(b + 4), vr(b + 8), c(88)))
                    a("v_mfma_f32_16x16x32_bf16 v[92:95], %s, %s, %s" % (vr(b + 4), vr(b + 12), c(92)))
                a("s_lshl_b32 s63, s32, 5")
                a("s_lshl_b32 s64, s33, 2")
                a("s_add_u32 s63, s63, s64")
                a("s_add_u32 s63, s63, s35")
                a("s_mul_i32 s63, s63, 1680")
                a("s_add_u32 s63, s63, 0x%x" % WS_P)
                a("v_mul_u32_u24 v5, 80, v2")
                a("v_lshlrev_b32 v6, 4, v3")
                a("v_add_u32 v5, v5, v6")
                a("v_cmp_eq_u32 s[74:75], 0, v3")
                a("v_cmp_gt_u32 s[76:77], 5, v2")
                a("s_nop 7")
                a("buffer_store_dwordx4 v[80:83], v5, s[20:23], s63 offen")
                a("s_and_saveexec_b64 s[72:73], s[74:75]")
                a("buffer_store_dwordx4 v[88:91], v5, s[20:23], s63 offen offset:64")
                a("s_mov_b64 exec, s[76:77]")
                a("buffer_store_dwordx4 v[84:87], v5, s[20:23], s63 offen offset:1280")
                a("s_and_b64 exec, exec, s[74:75]")
                a("buffer_store_dwordx4 v[92:95], v5, s[20:23], s63 offen offset:1344")
                a("s_mov_b64 exec, s[72:73]")

    stamp(a, 4)
    stamp_flush(a, 0, 20, 35)
    dbg_end1(a)
    a("s_endpgm")

def stage2(a):
    NRT, NT = 4, 5
    a.raw(".globl s2_kernel\n.p2align 8\n.type s2_kernel,@function")
    a.label("s2_kernel")
    a("""
    s_cmp_ge_u32 s2, 256
    s_cbranch_scc1 L_s2_end
    """)
    stamp_start(a)
    a("""
    s_load_dwordx2 s[42:43], s[0:1], 56      ; b2
    s_load_dwordx4 s[44:47], s[0:1], 72
    s_load_dwordx2 s[38:39], s[0:1], 88      ; ws
    s_and_b32 s48, s2, 7
    s_lshr_b32 s49, s2, 3
    s_lshr_b32 s50, s48, 1
    s_lshl_b32 s50, s50, 3
    s_and_b32 s51, s49, 7
    s_add_u32 s50, s50, s51                  ; rb2 (0..31)
    s_and_b32 s52, s48, 1
    s_lshl_b32 s52, s52, 2
    s_lshr_b32 s53, s49, 3
    s_add_u32 s33, s52, s53                  ; cb (0..7)
    s_lshl_b32 s32, s50, 6                   ; row0
    s_lshl_b32 s34, s50, 2                   ; rt0
    v_and_b32 v1, 63, v0
    v_lshrrev_b32 v2, 6, v0
    v_lshlrev_b32 v4, 4, v1                  ; lane*16
    v_readfirstlane_b32 s35, v2
    v_and_b32 v2, 15, v1
    v_lshrrev_b32 v3, 4, v1
    s_waitcnt lgkmcnt(0)
    """)
    srd(a, 8, 38, WS_SIZE)
    srd(a, 20, 42, 1280)
    srd(a, 24, 44, 2621440)
    srd(a, 28, 46, 256)
    a("""
    s_cmp_ge_u32 s35, 4
    s_cbranch_scc1 L_s2_awave
    """)
    vm = []
    def V(ins, tag):
        vm.append(tag); return ins
    def waitvm(tag):
        idx = max(i for i, t in enumerate(vm) if t == tag)
        n = len(vm) - 1 - idx
        assert n <= 63, n
        return "s_waitcnt vmcnt(%d)" % n
    a("""
    s_mul_i32 s55, s34, 192
    s_mul_i32 s60, s35, 48
    s_add_u32 s55, s55, s60
    s_lshl_b32 s55, s55, 8                   ; A soffset
    s_mul_i32 s56, s35, 480
    s_mul_i32 s60, s33, 5
    s_add_u32 s56, s56, s60
    s_lshl_b32 s56, s56, 10
    s_add_u32 s56, s56, 0x%x                 ; B soffset
    s_mul_i32 s57, s35, 200
    s_add_u32 s57, s57, s60
    s_lshl_b32 s57, s57, 10
    s_add_u32 s57, s57, 0x%x                 ; WOF soffset
    v_add_u32 v5, 4096, v4
    """ % (WS_W2F, WS_WOF))
    VA = 232
    for rt in range(NRT):
        a("v_add_u32 v%d, %d, v4" % (VA + rt, rt * 49152))
    ACC = 152
    def SET(st):
        b = 8 + 36 * (st % 4); return b, b + 16
    def bload(dst, t, sreg, tag):
        if t < 4:
            return ("buffer_load_dwordx4 %s, v4, s[8:11], s%d offen offset:%d" % (vr(dst), sreg, t * 1024), tag)
        return ("buffer_load_dwordx4 %s, v5, s[8:11], s%d offen" % (vr(dst), sreg), tag)
    def loads(st):
        A, B = SET(st); tag = "L%d" % st
        L = [bload(B, 0, 56, tag)]
        for rt in range(NRT):
            L.append(("buffer_load_dwordx4 %s, v%d, s[8:11], s55 offen" % (vr(A + 4 * rt), VA + rt), tag))
        for t in range(1, NT):
            L.append(bload(B + 4 * t, t, 56, tag))
        L.append(("s_add_u32 s55, s55, 1024", None))
        L.append(("s_add_u32 s56, s56, %d" % (40 * 1024), None))
        return L
    def wl(step):
        L = [bload(8 + 20 * step + 4 * t, t, 57, "W%d" % step) for t in range(NT)]
        L.append(("s_add_u32 s57, s57, %d" % (40 * 1024), None))
        return L
    def emit(items):
        for ins, tag in items:
            a(V(ins, tag) if tag else ins)
    def inter(main, items, every=2, start=0):
        items = list(items)
        for i, m in enumerate(main):
            a(m)
            if i >= start and (i - start) % every == 0 and items:
                ins, tag = items.pop(0); a(V(ins, tag) if tag else ins)
        emit(items)
    def mfmas(aset, bset):
        return ["v_mfma_f32_16x16x32_bf16 %s, %s, %s, %s" % (vr(ACC + (t * NRT + rt) * 4), vr(bset + 4 * t), vr(aset + 4 * rt), vr(ACC + (t * NRT + rt) * 4))
                for t in range(NT) for rt in range(NRT)]
    a("s_cmp_ge_u32 s2, 32")
    a("s_cbranch_scc1 L_s2_bgo")
    a("s_barrier")
    a.label("L_s2_bgo")
    emit(loads(0)); emit(loads(1)); emit(loads(2))
    a("s_lshl_b32 s60, s35, 4")
    a("s_add_u32 s60, s60, s32")
    a("v_add_u32 v6, s60, v2")
    a("v_lshlrev_b32 v7, 2, v6")
    a("v_add_u32 v7, 0x%x, v7" % WS_G)
    a(V("buffer_load_dword v236, v7, s[8:11], 0 offen", "G"))
    a("s_mul_i32 s58, s33, 160")
    a("v_lshlrev_b32 v7, 3, v3")
    for t in range(NT):
        a(V("buffer_load_dwordx2 v[%d:%d], v7, s[20:23], s58 offen offset:%d" % (238 + 2 * t, 239 + 2 * t, t * 32), "G"))
    stamp(a, 1)
    for r in range(0, 80, 2):
        a("v_pk_mov_b32 v[%d:%d], 0, 0" % (ACC + r, ACC + r + 1))
    stamp(a, 2)
    for st in range(12):
        a(waitvm("L%d" % st))
        if st + 3 < 12:
            side = loads(st + 3)
        elif st == 9:
            side = wl(0) [:]
        elif st == 10:
            side = wl(1) + wl(2)
        else:
            side = wl(3) + wl(4)
        inter(mfmas(*SET(st)), side, every=(2 if len(side) <= 11 else 1))
    stamp(a, 3)
    a("s_mul_i32 s60, s35, 20480")
    a("v_add_u32 v7, s60, v4")
    a("s_barrier")
    AB = [108, 124]
    def oreads(step):
        return [("ds_read_b128 %s, v7 offset:%d" % (vr(AB[step & 1] + 4 * rt), rt * 5120 + step * 1024), None) for rt in range(NRT)]
    emit(oreads(0))
    for step in range(5):
        a(waitvm("W%d" % step) + " lgkmcnt(0)")
        inter(mfmas(AB[step & 1], 8 + 20 * step), oreads(step + 1) if step < 4 else [], every=2, start=1)
    stamp(a, 4)
    a("v_sub_f32 v236, 1.0, v236")
    a("v_cvt_pk_bf16_f32 v236, v236, v236")
    a("v_lshlrev_b32 v236, 16, v236")
    a("s_barrier")
    for w in range(4):
        a("s_cmp_lg_u32 s35, %d" % w)
        a("s_cbranch_scc1 L_s2_fw%d" % w)
        for rt in range(NRT):
            if rt == w: continue
            si = w if w < rt else w - 1
            for t in range(NT):
                a("ds_write_b128 v4, %s offset:%d" % (vr(ACC + (t * NRT + rt) * 4), (rt * 3 + si) * 5120 + t * 1024))
        for t in range(NT):
            src = ACC + (t * NRT + w) * 4
            a("v_lshlrev_b32 v8, 16, v%d" % (238 + 2 * t))
            a("v_and_b32 v9, 0xffff0000, v%d" % (238 + 2 * t))
            a("v_lshlrev_b32 v10, 16, v%d" % (239 + 2 * t))
            a("v_and_b32 v11, 0xffff0000, v%d" % (239 + 2 * t))
            for i in (0, 2):
                a("v_pk_fma_f32 v[%d:%d], v[%d:%d], v[236:237], v[%d:%d] op_sel_hi:[1,0,1]" % (16 + 4 * t + i, 17 + 4 * t + i, 8 + i, 9 + i, src + i, src + i + 1))
        a.label("L_s2_fw%d" % w)
    a("s_mul_i32 s61, s35, %d" % (3 * 5120))
    a("v_add_u32 v7, s61, v4")
    a("s_waitcnt lgkmcnt(0)")
    a("s_barrier")
    for si in range(3):
        for t in range(NT):
            a("ds_read_b128 %s, v7 offset:%d" % (vr(40 + (si * NT + t) * 4), si * 5120 + t * 1024))
    a("v_mul_u32_u24 v6, 1280, v6")
    a("v_and_b32 v8, 1, v3")
    a("v_lshl_add_u32 v8, v8, 5, v6")
    a("v_lshrrev_b32 v9, 1, v3")
    a("v_lshl_add_u32 v8, v9, 4, v8")
    a("v_lshl_add_u32 v9, v3, 3, v6")
    for si in range(3):
        a("s_waitcnt lgkmcnt(%d)" % (10 - 5 * si))
        for t in range(NT):
            o = 16 + 4 * t; q = 40 + (si * NT + t) * 4
            for i in (0, 2):
                a("v_pk_add_f32 v[%d:%d], v[%d:%d], v[%d:%d]" % (o + i, o + i + 1, o + i, o + i + 1, q + i, q + i + 1))
    for p in range(2):
        A_, B_ = 16 + 8 * p, 20 + 8 * p
        a("v_cvt_pk_bf16_f32 v%d, v%d, v%d" % (A_, A_, A_ + 1))
        a("v_cvt_pk_bf16_f32 v%d, v%d, v%d" % (A_ + 1, A_ + 2, A_ + 3))
        a("v_cvt_pk_bf16_f32 v%d, v%d, v%d" % (A_ + 2, B_, B_ + 1))
        a("v_cvt_pk_bf16_f32 v%d, v%d, v%d" % (A_ + 3, B_ + 2, B_ + 3))
    a("v_cvt_pk_bf16_f32 v32, v32, v33")
    a("v_cvt_pk_bf16_f32 v33, v34, v35")
    for p in range(2):
        A_ = 16 + 8 * p
        a("v_permlane16_swap_b32 v%d, v%d" % (A_, A_ + 2))
        a("v_permlane16_swap_b32 v%d, v%d" % (A_ + 1, A_ + 3))
        a("buffer_store_dwordx4 %s, v8, s[24:27], s58 offen offset:%d" % (vr(A_), p * 64))
    a("buffer_store_dwordx2 v[32:33], v9, s[24:27], s58 offen offset:128")
    dbg_end2(a)
    stamp_flush(a, 2, 8, 35)
    a("s_endpgm")
    a.label("L_s2_awave")
    a("s_setprio 2")
    F, PQB, Z, OA, RY, T1 = 8, [40, 56], 72, 96, 112, 144
    G = [76, 77, 78, 79]
    DS = 80
    EPSR = 88
    a("""
    s_sub_u32 s58, s35, 4                    ; aw
    s_mul_i32 s54, s58, 20480
    s_mul_i32 s60, s34, 160
    s_mul_i32 s61, s58, 40
    s_add_u32 s60, s60, s61
    s_lshl_b32 s60, s60, 7
    s_add_u32 s60, s60, 0x%x
    v_add_u32 v5, s32, v2
    v_lshlrev_b32 v5, 2, v5
    v_add_u32 v5, 0x%x, v5
    ; reducer duty: wave 4 of workgroups 0..31 reduces head = id
    s_cmp_ge_u32 s2, 32
    s_cbranch_scc1 L_s2_nored
    s_cmp_eq_u32 s35, 4
    s_cbranch_scc1 L_s2_dored
    s_barrier
    s_branch L_s2_nored
L_s2_dored:
    v_mul_u32_u24 v8, 171, v1
    v_lshrrev_b32 v8, 9, v8                  ; e
    v_mul_u32_u24 v9, 3, v8
    v_sub_u32 v9, v1, v9                     ; g'
    v_mul_u32_u24 v6, 80, v8
    v_lshl_add_u32 v6, v9, 5, v6
    v_add_u32 v7, 16, v6
    v_mov_b32 v10, 0x7000000
    v_cmp_eq_u32 vcc, 2, v9
    s_mul_i32 s66, s2, 1680
    s_add_u32 s66, s66, 0x%x
    s_nop 0
    v_cndmask_b32 v7, v7, v10, vcc
    v_cmp_gt_u32 vcc, 63, v1
    s_and_saveexec_b64 s[72:73], vcc
    """ % (WS_PQF, WS_G, WS_P))
    for rb in range(16):
        a("buffer_load_dwordx4 %s, v6, s[8:11], s66 offen" % vr(16 + 8 * rb))
        a("buffer_load_dwordx4 %s, v7, s[8:11], s66 offen" % vr(20 + 8 * rb))
        if rb < 15:
            a("s_add_u32 s66, s66, %d" % (32 * 1680))
    a("""
    s_and_b32 s67, s2, 3
    s_lshl_b32 s67, s67, 2
    s_sub_u32 s68, s67, 16
    v_add_u32 v10, s68, v8
    v_and_b32 v10, 15, v10
    v_add_u32 v10, 48, v10
    v_cmp_gt_u32 vcc, 16, v8
    s_mul_i32 s66, s2, 1536
    s_add_u32 s66, s66, 0x%x
    v_cndmask_b32 v10, v10, v8, vcc
    v_lshlrev_b32 v10, 4, v10
    v_lshl_add_u32 v10, v9, 8, v10
    """ % WS_KVT)
    for rb in range(1, 16):
        a("s_waitcnt vmcnt(%d)" % (30 - 2 * rb))
        for i in range(0, 8, 2):
            a("v_pk_add_f32 v[%d:%d], v[%d:%d], v[%d:%d]" % (16 + i, 17 + i, 16 + i, 17 + i, 16 + 8 * rb + i, 17 + 8 * rb + i))
    for i in range(4):
        a("v_cvt_pk_bf16_f32 v%d, v%d, v%d" % (12 + i, 16 + 2 * i, 17 + 2 * i))
    a("""
    buffer_store_dwordx4 v[12:15], v10, s[8:11], s66 offen sc1
    s_barrier
    s_waitcnt vmcnt(0)
    s_mov_b64 exec, -1
    v_mov_b32 v8, 1
    s_lshr_b32 s66, s2, 3
    s_lshl_b32 s66, s66, 12
    s_add_u32 s66, s66, 0x%x
    v_lshlrev_b32 v9, 7, v1
    s_mov_b32 exec_hi, 0
    buffer_atomic_add v8, v9, s[8:11], s66 offen sc1
    s_mov_b64 exec, -1
    """ % WS_FLAG)
    a.label("L_s2_nored")
    for rt in range(NRT):
        a("buffer_load_dword v%d, v5, s[8:11], 0 offen offset:%d" % (G[rt], rt * 64))
    for i in range(5):
        for rt in range(NRT):
            a("s_add_u32 m0, s54, %d" % (rt * 5120 + i * 1024))
            a("s_add_u32 s64, s60, %d" % (rt * 160 * 128 + i * 1024))
            a("buffer_load_dwordx4 v4, s[8:11], s64 offen lds")
    stamp(a, 1)
    a("v_cmp_gt_u32 s[82:83], 48, v1")
    a("v_cmp_gt_u32 s[84:85], 32, v1")
    a("s_lshl_b32 s61, s58, 3")
    a("s_mul_i32 s61, s61, 1536")
    a("s_add_u32 s61, s61, 0x%x" % WS_KVT)
    a("v_lshrrev_b32 v0, 2, v2")
    for jj in range(4):
        a("v_cmp_ne_u32 s[%d:%d], %d, v0" % (66 + 2 * jj, 67 + 2 * jj, jj))
        a("v_cmp_eq_u32 s[%d:%d], %d, v3" % (74 + 2 * jj, 75 + 2 * jj, jj))
    a("v_lshlrev_b32 v6, 8, v3")
    a("v_lshl_add_u32 v6, v2, 3, v6")
    a("v_add_u32 v6, s54, v6")
    a("v_add_u32 v7, s54, v4")
    for r in list(range(8, 72, 2)) + list(range(DS, DS + 8, 2)) + list(range(T1, T1 + 32, 2)):
        a("v_pk_mov_b32 v[%d:%d], 0, 0" % (r, r + 1))
    for i in range(4):
        a("v_mov_b32 v%d, %s" % (EPSR + i, EPS))
    def pqreads(j):
        P = PQB[j & 1]
        a("s_mov_b64 exec, s[82:83]")
        for rt in range(NRT):
            a("ds_read_b64 v[%d:%d], v6 offset:%d" % (P + 4 * rt, P + 4 * rt + 1, rt * 5120 + j * 640))
        a("s_mov_b64 exec, s[84:85]")
        for rt in range(NRT):
            a("ds_read_b64 v[%d:%d], v6 offset:%d" % (P + 4 * rt + 2, P + 4 * rt + 3, rt * 5120 + j * 640 + 128))
        a("s_mov_b64 exec, -1")
    def fload(j):
        a("s_mov_b64 exec, s[82:83]")
        a("buffer_load_dwordx4 %s, v4, s[8:11], s61 offen sc1" % vr(F + 8 * (j & 3)))
        a("buffer_load_dwordx4 %s, v4, s[8:11], s61 offen offset:768 sc1" % vr(F + 8 * (j & 3) + 4))
        a("s_mov_b64 exec, -1")
        a("s_add_u32 s61, s61, 1536")
    a("s_lshl_b32 s62, s58, 12")
    a("s_lshl_b32 s63, s49, 7")
    a("s_add_u32 s62, s62, s63")
    a("s_add_u32 s62, s62, 0x%x" % WS_FLAG)
    a("v_mov_b32 v1, s62")
    a("s_mov_b32 s63, 0")
    a.label("L_s2_poll")
    a("buffer_load_dword v0, v1, s[8:11], 0 offen sc1")
    a("s_waitcnt vmcnt(0)")
    a("v_readfirstlane_b32 s62, v0")
    a("s_add_u32 s63, s63, 1")
    a("s_cmp_ge_u32 s62, 8")
    a("s_cbranch_scc1 L_s2_ready")
    a("s_cmp_ge_u32 s63, 100000")
    a("s_cbranch_scc1 L_s2_ready")
    a("s_sleep 8")
    a("s_branch L_s2_poll")
    a.label("L_s2_ready")
    stamp(a, 2)
    for j in range(4):
        fload(j)
    pqreads(0)
    for j in range(8):
        jj = j & 3
        f0, f1 = F + 8 * jj, F + 8 * jj + 4
        P = PQB[j & 1]
        a("s_waitcnt vmcnt(%d)" % [6, 6, 6, 6, 6, 4, 2, 0][j])
        for i in range(4):
            a("v_mov_b32_dpp v%d, v%d row_newbcast:%d row_mask:0xf bank_mask:0xf" % (Z + i, f1 + i, (4 * jj + 4) & 15))
        a("s_nop 0")
        for i in range(4):
            a("v_cndmask_b32 v%d, v%d, 0, s[%d:%d]" % (f1 + i, f1 + i, 66 + 2 * jj, 67 + 2 * jj))
        a("s_waitcnt lgkmcnt(0)")
        if j < 7:
            pqreads(j + 1)
        else:
            a("s_nop 0")
        for rt in range(NRT):
            a("v_mfma_f32_16x16x32_bf16 %s, %s, %s, %s" % (vr(RY + 8 * rt + 4), vr(Z), vr(P + 4 * rt), vr(EPSR)))
        for rt in range(NRT):
            a("v_mfma_f32_16x16x32_bf16 %s, %s, %s, 0" % (vr(RY + 8 * rt), vr(f0), vr(P + 4 * rt)))
        for rt in range(NRT):
            t1 = T1 + ((j >> 2) * NRT + rt) * 4
            a("v_mfma_f32_16x16x32_bf16 %s, %s, %s, %s" % (vr(t1), vr(f1), vr(P + 4 * rt), vr(t1)))
        for rt in range(NRT):
            a("v_rcp_f32 v%d, v%d" % (RY + 8 * rt + 4, RY + 8 * rt + 4))
        if j < 4:
            fload(j + 4)
        else:
            a("s_nop 0")
        for rt in range(NRT):
            a("v_mul_f32 v%d, v%d, v%d" % (RY + 8 * rt + 4, RY + 8 * rt + 4, G[rt]))
        for rt in range(NRT):
            t0 = RY + 8 * rt
            for i in (0, 2):
                a("v_pk_mul_f32 v[%d:%d], v[%d:%d], v[%d:%d] op_sel_hi:[1,0]" % (t0 + i, t0 + i + 1, t0 + i, t0 + i + 1, t0 + 4, t0 + 5))
        for rt in range(NRT):
            ds = DS + (j >> 2) * NRT + rt
            a("v_cndmask_b32 v%d, v%d, v%d, s[%d:%d]" % (ds, ds, RY + 8 * rt + 4, 74 + 2 * jj, 75 + 2 * jj))
        for rt in range(NRT):
            t0 = RY + 8 * rt
            oa = OA + 4 * rt + 2 * (j & 1)
            a("v_cvt_pk_bf16_f32 v%d, v%d, v%d" % (oa, t0, t0 + 1))
            a("v_cvt_pk_bf16_f32 v%d, v%d, v%d" % (oa + 1, t0 + 2, t0 + 3))
        if j & 1:
            a("s_waitcnt lgkmcnt(0)")
            for rt in range(NRT):
                a("ds_write_b128 v7, %s offset:%d" % (vr(OA + 4 * rt), rt * 5120 + (j >> 1) * 1024))
    for rt in range(NRT):
        for q in range(2):
            t1 = T1 + (q * NRT + rt) * 4
            ds = DS + q * NRT + rt
            for i in range(4):
                a("v_mul_f32 v%d, v%d, v%d" % (t1 + i, t1 + i, ds))
            oa = RY + 4 * rt + 2 * q
            a("v_cvt_pk_bf16_f32 v%d, v%d, v%d" % (oa, t1, t1 + 1))
            a("v_cvt_pk_bf16_f32 v%d, v%d, v%d" % (oa + 1, t1 + 2, t1 + 3))
        a("ds_write_b128 v7, %s offset:%d" % (vr(RY + 4 * rt), rt * 5120 + 4096))
    stamp(a, 3)
    stamp(a, 4)
    a("s_waitcnt lgkmcnt(0)")
    a("s_barrier")
    stamp_flush(a, 2, 8, 35)
    a.label("L_s2_end")
    a("s_endpgm")

def kd(name, vgpr, accum, sgpr=102):
    return """.amdhsa_kernel %s
  .amdhsa_next_free_vgpr %d
  .amdhsa_next_free_sgpr %d
  .amdhsa_accum_offset %d
  .amdhsa_group_segment_fixed_size 0
  .amdhsa_kernarg_size 96
  .amdhsa_user_sgpr_count 2
  .amdhsa_user_sgpr_kernarg_segment_ptr 1
  .amdhsa_system_sgpr_workgroup_id_x 1
.end_amdhsa_kernel
""" % (name, vgpr, sgpr, accum)

def main():
    a = Asm()
    hdr = open("cdna_kernels/%s.s.ref" % NAME).read().split("; Override launch")[0]
    out = hdr
    out += "; @launch kernel=s1_kernel grid=(256,1,1) block=(448,1,1) lds=%d\n" % (3 * S1_BUF + 16384)
    out += "; @launch kernel=s2_kernel grid=(256,1,1) block=(512,1,1) lds=81920\n"
    out += '.amdgcn_target "amdgcn-amd-amdhsa--gfx950"\n.text\n'
    stage1(a)
    stage2(a)
    out += a.text()
    out += '.section .rodata,"a"\n.p2align 6\n'
    out += kd("s1_kernel", 256, 256)
    out += ".p2align 6\n" + kd("s2_kernel", 256, 256)
    dst = sys.argv[1] if len(sys.argv) > 1 else "cdna_kernels/%s.s" % NAME
    open(dst, "w").write(out)

main()
```

```python
import sys, os

NAME = "gated_mix__linear_attn_block__dense_activation_squared_relu__prompt"

WS_H   = 0x000000
WS_PQF = 0x600000
WS_P   = 0x900000
WS_KVT = 0xA00000
WS_G   = 0xA10000
WS_FLAG = 0xA20000
WS_W2F = 0xC00000
WS_WOF = 0xE00000
WS_SIZE = 0x1000000
STAMP = int(os.environ.get("STAMP", "0"))
WS_STAMP = 0xB00000

class Asm:
    def __init__(self):
        self.L = []
    def __call__(self, s):
        for ln in s.strip("\n").split("\n"):
            if ln.strip():
                self.L.append("  " + ln.strip())
    def label(self, l):
        self.L.append(l + ":")
    def raw(self, s):
        self.L.append(s)
    def text(self):
        return "\n".join(self.L) + "\n"

def vr(b, n=4):
    return "v[%d:%d]" % (b, b + n - 1)

def srd(a, d, lo, size):
    a("s_mov_b32 s%d, s%d" % (d, lo))
    a("s_and_b32 s%d, s%d, 0xffff" % (d + 1, lo + 1))
    a("s_mov_b32 s%d, 0x%x" % (d + 2, size))
    a("s_mov_b32 s%d, 0x00020000" % (d + 3))

def interleave(a, main, side, start=1, every=1):
    side = list(side)
    for i, m in enumerate(main):
        a(m)
        if i >= start - 1 and (i - (start - 1)) % every == 0 and side:
            a(side.pop(0))
    for s in side:
        a(s)

DBG = int(os.environ.get("DBG", "0"))
def dbg_start(a):
    if DBG:
        a("s_memrealtime s[96:97]")
def dbg_end1(a):
    if DBG:
        a("s_waitcnt vmcnt(0)")
        a("s_memrealtime s[98:99]")
        a("s_waitcnt lgkmcnt(0)")
        a("s_or_b32 s97, s2, s35")
        a("s_cmp_lg_u32 s97, 0")
        a("s_cbranch_scc1 L_dbg1_%d" % len(a.L))
        lab = "L_dbg1_%d" % (len(a.L) - 1)
        a("v_mov_b32 v2, s96")
        a("v_mov_b32 v3, s98")
        a("v_mov_b32 v4, 0x%x" % WS_STAMP)
        a("s_mov_b64 exec, 1")
        a("buffer_store_dwordx2 v[2:3], v4, s[20:23], 0 offen")
        a("s_waitcnt vmcnt(0)")
        a.label(lab)
def dbg_end2(a):
    if DBG:
        a("s_waitcnt vmcnt(0)")
        a("s_memrealtime s[98:99]")
        a("s_waitcnt lgkmcnt(0)")
        a("s_or_b32 s97, s2, s35")
        a("s_cmp_lg_u32 s97, 0")
        a("s_cbranch_scc1 L_dbg2")
        a("v_mov_b32 v4, 0x%x" % WS_STAMP)
        a("s_mov_b64 exec, 1")
        a("buffer_load_dwordx2 v[8:9], v4, s[8:11], 0 offen")
        a("v_mov_b32 v10, s96")
        a("v_mov_b32 v11, s98")
        a("v_mov_b32 v4, 16")
        a("s_waitcnt vmcnt(0)")
        a("buffer_store_dwordx4 v[8:11], v4, s[28:31], 0 offen")
        a("s_waitcnt vmcnt(0)")
        a.label("L_dbg2")
def stamp_start(a):
    dbg_start(a)
    if STAMP:
        a("s_memrealtime s[86:87]")
        a("s_waitcnt lgkmcnt(0)")
        a("s_mov_b32 s94, s86")
        stamp(a, 0)
def stamp(a, idx):
    if STAMP:
        a("s_memtime s[86:87]")
        a("s_waitcnt lgkmcnt(0)")
        a("s_mov_b32 s%d, s86" % (88 + idx))
def stamp_flush(a, kern, srdreg, wavereg):
    if STAMP:
        a("s_waitcnt vmcnt(0)")
        stamp(a, 5)
        a("s_memrealtime s[86:87]")
        a("s_waitcnt lgkmcnt(0)")
        a("s_mov_b32 s95, s86")
        a("s_lshl_b32 s86, s2, 3")
        a("s_add_u32 s86, s86, s%d" % wavereg)
        a("s_lshl_b32 s86, s86, 5")
        a("s_add_u32 s86, s86, 0x%x" % (WS_STAMP + kern * 0x10000))
        a("s_mov_b64 exec, 1")
        for i in range(8):
            a("v_mov_b32 v2, s%d" % (88 + i))
            a("v_mov_b32 v3, %d" % (4 * i))
            a("buffer_store_dword v2, v3, s[%d:%d], s86 offen" % (srdreg, srdreg + 3))
        a("s_waitcnt vmcnt(0)")

LOG2E = "0x3fb8aa3b"
EPS = "0x358637bd"

def phi4(a, src, tmp, sl, se):
    for i in (0, 2):
        a("v_pk_mul_f32 v[%d:%d], v[%d:%d], s[%d:%d]" % (tmp + i, tmp + i + 1, src + i, src + i + 1, sl, sl + 1))
    for i in range(4):
        a("v_min_f32 v%d, 0, v%d" % (tmp + i, tmp + i))
    for i in range(4):
        a("v_exp_f32 v%d, v%d" % (tmp + i, tmp + i))
    for i in range(4):
        a("v_max_f32 v%d, 0, v%d" % (src + i, src + i))
    for i in (0, 2):
        a("v_pk_add_f32 v[%d:%d], v[%d:%d], v[%d:%d]" % (src + i, src + i + 1, src + i, src + i + 1, tmp + i, tmp + i + 1))
    for i in (0, 2):
        a("v_pk_add_f32 v[%d:%d], v[%d:%d], s[%d:%d]" % (src + i, src + i + 1, src + i, src + i + 1, se, se + 1))

def phi16(a, src, tmp, sl, se):
    n = 16
    for i in range(0, n, 2):
        a("v_pk_mul_f32 v[%d:%d], v[%d:%d], s[%d:%d]" % (tmp + i, tmp + i + 1, src + i, src + i + 1, sl, sl + 1))
    for i in range(n):
        a("v_min_f32 v%d, 0, v%d" % (tmp + i, tmp + i))
    for i in range(n):
        a("v_exp_f32 v%d, v%d" % (tmp + i, tmp + i))
        a("v_max_f32 v%d, 0, v%d" % (src + i, src + i))
    for i in range(0, n, 2):
        a("v_pk_add_f32 v[%d:%d], v[%d:%d], s[%d:%d]" % (src + i, src + i + 1, src + i, src + i + 1, se, se + 1))
    for i in range(0, n, 2):
        a("v_pk_add_f32 v[%d:%d], v[%d:%d], v[%d:%d]" % (src + i, src + i + 1, src + i, src + i + 1, tmp + i, tmp + i + 1))

def swap23_v(a, d, s, t):
    a("v_and_b32 v%d, 3, v%d" % (d, s))
    a("v_and_b32 v%d, 4, v%d" % (t, s))
    a("v_lshlrev_b32 v%d, 1, v%d" % (t, t))
    a("v_or_b32 v%d, v%d, v%d" % (d, d, t))
    a("v_and_b32 v%d, 8, v%d" % (t, s))
    a("v_lshrrev_b32 v%d, 1, v%d" % (t, t))
    a("v_or_b32 v%d, v%d, v%d" % (d, d, t))

S1_BUF = 45056
def stage1(a):
    a.raw(".globl s1_kernel\n.p2align 8\n.type s1_kernel,@function")
    a.label("s1_kernel")
    a("""
    s_cmp_ge_u32 s2, 256
    s_cbranch_scc1 L_s1_end
    """)
    stamp_start(a)
    a("""
    s_load_dwordx4 s[36:39], s[0:1], 0
    s_load_dwordx4 s[40:43], s[0:1], 32
    s_load_dwordx2 s[44:45], s[0:1], 64
    s_load_dwordx2 s[46:47], s[0:1], 88
    s_load_dwordx2 s[66:67], s[0:1], 16
    s_load_dwordx2 s[68:69], s[0:1], 48
    s_load_dwordx2 s[70:71], s[0:1], 80
    s_and_b32 s48, s2, 7
    s_lshr_b32 s49, s2, 3
    s_and_b32 s50, s48, 1
    s_lshl_b32 s50, s50, 3
    s_and_b32 s51, s49, 7
    s_add_u32 s32, s50, s51          ; rb
    s_lshr_b32 s50, s48, 1
    s_lshl_b32 s50, s50, 2
    s_lshr_b32 s51, s49, 3
    s_add_u32 s65, s50, s51          ; cg
    s_and_b32 s34, s65, 1            ; type
    s_lshr_b32 s33, s65, 1           ; jj
    v_and_b32 v1, 63, v0
    v_lshrrev_b32 v2, 6, v0
    s_nop 0
    v_readfirstlane_b32 s35, v2      ; wave
    s_nop 3
    s_lshr_b32 s52, s35, 1           ; wr
    s_and_b32 s53, s35, 1            ; wc
    s_mov_b32 s57, 0
    s_mov_b32 s58, 0
    s_mov_b32 s59, 0
    s_waitcnt lgkmcnt(0)
    """)
    srd(a, 8, 36, 2621440)
    srd(a, 12, 38, 2457600)
    srd(a, 16, 40, 1966080)
    srd(a, 20, 46, WS_SIZE)
    srd(a, 24, 42, 3072)
    srd(a, 28, 44, 1280)
    srd(a, 4, 70, 256)
    a("s_cmp_lt_u32 s35, 4")
    a("s_cbranch_scc1 L_s1_compute")
    a("s_cmp_eq_u32 s35, 4")
    a("s_cbranch_scc1 L_s1_loader")
    a("s_cmp_eq_u32 s35, 6")
    a("s_cbranch_scc1 L_s1_aux")
    stage1_loader(a, 2)
    a.label("L_s1_loader")
    a("s_cmp_eq_u32 s34, 1")
    a("s_cbranch_scc1 L_s1_loaderB")
    stage1_loader(a, 0)
    a.label("L_s1_loaderB")
    stage1_loader(a, 1)
    a.label("L_s1_aux")
    stage1_aux(a)
    a.label("L_s1_compute")
    a("""
    s_mov_b32 s78, %s
    s_mov_b32 s79, %s
    s_mov_b32 s80, %s
    s_mov_b32 s81, %s
    """ % (LOG2E, LOG2E, EPS, EPS))
    a("""
    v_and_b32 v2, 15, v1             ; m
    v_lshrrev_b32 v3, 4, v1          ; g
    s_lshl_b32 s60, s52, 6
    v_add_u32 v4, s60, v2
    v_lshlrev_b32 v4, 7, v4
    v_lshrrev_b32 v5, 1, v2
    v_xor_b32 v5, v5, v3
    v_lshlrev_b32 v6, 4, v5
    v_add_u32 v105, v4, v6
    v_xor_b32 v5, 4, v5
    v_lshlrev_b32 v6, 4, v5
    v_add_u32 v106, v4, v6
    v_lshrrev_b32 v4, 2, v1
    v_and_b32 v4, 3, v4              ; r
    v_and_b32 v5, 3, v1
    v_lshlrev_b32 v5, 3, v5          ; c*8
    v_lshrrev_b32 v6, 1, v3
    v_lshlrev_b32 v6, 4, v6
    v_and_b32 v7, 1, v3              ; g&1
    v_lshlrev_b32 v2, 2, v7
    v_add3_u32 v6, v6, v2, v4        ; pil
    s_cmp_eq_u32 s34, 1
    s_cbranch_scc1 L_s1_typeB
    """)
    for typ in (0, 1):
        if typ == 1:
            a.label("L_s1_typeB")
        stage1_type(a, typ)
    a.label("L_s1_end")
    a("s_endpgm")

def stage1_transposer_old(a):
    a("""
    s_lshl_b32 s60, s2, 2
    s_add_u32 s60, s60, s35
    s_cmp_ge_u32 s60, 720
    s_cbranch_scc1 L_s1_tr_done
    s_lshl_b32 s61, s35, 12
    s_add_u32 s61, s61, %d                   ; scratch base
    v_lshrrev_b32 v2, 3, v1                  ; lr
    v_and_b32 v4, 7, v1
    v_lshrrev_b32 v5, 4, v1
    v_lshlrev_b32 v5, 1, v5
    v_xor_b32 v6, v4, v5
    v_lshlrev_b32 v6, 4, v6                  ; colpart
    v_and_b32 v3, 3, v2
    v_lshrrev_b32 v4, 2, v2                  ; lr>>2
    s_cmp_ge_u32 s60, 480
    s_cbranch_scc1 L_s1_tr_wo
    """ % (3 * S1_BUF))
    srd(a, 72, 68, 1966080)
    a("""
    s_mul_i32 s62, s60, 6554
    s_lshr_b32 s62, s62, 16                  ; ks = u/10
    s_mul_i32 s63, s62, 10
    s_sub_u32 s63, s60, s63                  ; cb
    s_mul_i32 s70, s62, %d
    s_lshl_b32 s71, s63, 7
    s_add_u32 s70, s70, s71                  ; src soffset
    s_mul_i32 s71, s62, 40
    s_lshl_b32 s63, s63, 2
    s_add_u32 s71, s71, s63
    s_lshl_b32 s71, s71, 10
    s_add_u32 s71, s71, 0x%x                 ; dst offset
    v_lshlrev_b32 v5, 3, v4
    v_add_u32 v5, v5, v3
    v_mul_u32_u24 v5, 1280, v5
    v_add_u32 v7, v5, v6
    """ % (32 * 1280, WS_W2F))
    for i in range(4):
        a("s_add_u32 m0, s61, %d" % (i * 1024))
        a("s_add_u32 s64, s70, %d" % ((16 * (i >> 1) + 4 * (i & 1)) * 1280))
        a("buffer_load_dwordx4 v7, s[72:75], s64 offen lds")
    a("s_branch L_s1_tr_go")
    a.label("L_s1_tr_wo")
    srd(a, 72, 66, 819200)
    a("""
    s_sub_u32 s60, s60, 480
    s_mul_i32 s62, s60, 6554
    s_lshr_b32 s62, s62, 16                  ; st = u/10 (0..23)
    s_mul_i32 s63, s62, 10
    s_sub_u32 s63, s60, s63                  ; cb
    s_mul_i32 s71, s62, 40
    s_lshl_b32 s64, s63, 2
    s_add_u32 s71, s71, s64
    s_lshl_b32 s71, s71, 10
    s_add_u32 s71, s71, 0x%x                 ; dst offset
    s_mul_i32 s64, s62, 21846
    s_lshr_b32 s64, s64, 16                  ; wg8 = st/3
    s_mul_i32 s70, s64, 3
    s_sub_u32 s62, s62, s70                  ; step = st%%3
    s_mul_i32 s70, s64, %d                   ; 80*wg8 rows
    s_lshl_b32 s63, s63, 7
    s_add_u32 s70, s70, s63
    s_cmp_eq_u32 s62, 2
    s_cbranch_scc1 L_s1_tr_wo2
    s_mul_i32 s62, s62, %d                   ; 40 rows per pair step
    s_add_u32 s70, s70, s62
    v_mul_u32_u24 v5, 1280, v2
    v_add_u32 v7, v5, v6
    """ % (WS_WOF, 80 * 1280, 40 * 1280))
    for i in range(4):
        row = 20 * (i & 1) + 8 * ((i >> 1) & 1)
        a("s_add_u32 m0, s61, %d" % (i * 1024))
        a("s_add_u32 s64, s70, %d" % (row * 1280))
        a("buffer_load_dwordx4 v7, s[72:75], s64 offen lds")
    a("s_branch L_s1_tr_go")
    a.label("L_s1_tr_wo2")
    a("""
    v_mul_u32_u24 v5, 20, v4
    v_add_u32 v5, v5, v3
    v_mul_u32_u24 v5, 1280, v5
    v_add_u32 v7, v5, v6
    """)
    for i in range(4):
        row = 20 * (2 * ((i >> 1) & 1)) + 16
        a("s_add_u32 m0, s61, %d" % (i * 1024))
        a("s_add_u32 s64, s70, %d" % (row * 1280))
        a("buffer_load_dwordx4 v7, s[72:75], s64 offen lds")
    a.label("L_s1_tr_go")
    a("""
    v_lshrrev_b32 v3, 4, v1
    v_lshrrev_b32 v4, 2, v1
    v_and_b32 v4, 3, v4
    v_and_b32 v5, 3, v1
    v_lshlrev_b32 v5, 3, v5
    v_lshrrev_b32 v6, 1, v3
    v_lshlrev_b32 v6, 4, v6
    v_and_b32 v7, 1, v3
    v_lshlrev_b32 v7, 2, v7
    v_add3_u32 v6, v6, v7, v4
    v_lshrrev_b32 v7, 1, v6
    v_and_b32 v7, 3, v7
    v_lshlrev_b32 v6, 7, v6
    v_add3_u32 v6, v6, v5, s61
    v_lshlrev_b32 v2, 4, v1
    s_waitcnt vmcnt(0)
    """)
    for t in range(4):
        a("v_xor_b32 v4, %d, v7" % t)
        a("v_lshl_add_u32 v4, v4, 5, v6")
        a("ds_read_b64_tr_b16 v[%d:%d], v4" % (8 + 4 * t, 9 + 4 * t))
        a("ds_read_b64_tr_b16 v[%d:%d], v4 offset:1024" % (10 + 4 * t, 11 + 4 * t))
    a("s_waitcnt lgkmcnt(0)")
    for t in range(4):
        a("buffer_store_dwordx4 %s, v2, s[20:23], s71 offen offset:%d" % (vr(8 + 4 * t), t * 1024))
    a("s_nop 1")
    a.label("L_s1_tr_done")


def stage1_aux(a):
    SCR = 3 * S1_BUF
    a("v_lshlrev_b32 v2, 4, v1")
    a("s_getpc_b64 s[60:61]")
    a.label("L_s1_pc")
    a("s_sub_u32 s60, s60, L_s1_pc-s1_kernel")
    a("s_subb_u32 s61, s61, 0")
    a("s_lshl_b32 s62, s49, 10")
    a("v_add_u32 v3, s62, v2")
    a("global_load_dwordx4 v[100:103], v3, s[60:61]")
    a("s_add_u32 s62, s62, 32768")
    a("s_cmp_ge_u32 s62, L_code_end-s1_kernel-1024")
    a("s_cbranch_scc1 L_s1_nopf2")
    a("v_add_u32 v3, s62, v2")
    a("global_load_dwordx4 v[100:103], v3, s[60:61]")
    a.label("L_s1_nopf2")
    a("s_mov_b32 m0, %d" % (SCR + 12288))
    a("s_nop 0")
    a("buffer_load_dwordx4 v2, s[28:31], 0 offen lds")
    a("buffer_load_dwordx4 v2, s[28:31], 0 offen offset:1024 lds")
    a("s_cmp_ge_u32 s2, 16")
    a("s_cbranch_scc1 L_s1_noz")
    a("v_pk_mov_b32 v[8:9], 0, 0")
    a("v_pk_mov_b32 v[10:11], 0, 0")
    a("s_lshl_b32 s60, s2, 10")
    a("s_add_u32 s60, s60, 0x%x" % WS_FLAG)
    a("buffer_store_dwordx4 v[8:11], v2, s[20:23], s60 offen")
    a.label("L_s1_noz")
    a("s_waitcnt vmcnt(0)")
    a("s_barrier")
    srd(a, 72, 68, 1966080)
    srd(a, 76, 66, 819200)
    a("""
    v_lshrrev_b32 v2, 3, v1                  ; lr
    v_and_b32 v4, 7, v1
    v_lshrrev_b32 v5, 4, v1
    v_lshlrev_b32 v5, 1, v5
    v_xor_b32 v6, v4, v5
    v_lshlrev_b32 v6, 4, v6                  ; colpart
    v_and_b32 v3, 3, v2
    v_lshrrev_b32 v4, 2, v2                  ; lr>>2
    v_lshlrev_b32 v5, 3, v4
    v_add_u32 v5, v5, v3
    v_mul_u32_u24 v5, 1280, v5
    v_add_u32 v7, v5, v6                     ; voff w2
    v_mul_u32_u24 v5, 1280, v2
    v_add_u32 v8, v5, v6
    v_mul_u32_u24 v5, 20, v4
    v_add_u32 v5, v5, v3
    v_mul_u32_u24 v5, 1280, v5
    v_add_u32 v9, v5, v6
    """)
    for n in range(3):
        D = 82 + n
        a("s_mul_i32 s60, s2, 3")
        a("s_add_u32 s60, s60, %d" % n)
        a("s_mov_b32 s%d, -1" % D)
        a("s_cmp_ge_u32 s60, 680")
        a("s_cbranch_scc1 L_s1_tr_done%d" % n)
        a("s_cmp_ge_u32 s60, 480")
        a("s_cbranch_scc1 L_s1_tr_wo%d" % n)
        a("""
        s_mul_i32 s62, s60, 6554
        s_lshr_b32 s62, s62, 16
        s_mul_i32 s63, s62, 10
        s_sub_u32 s63, s60, s63
        s_mul_i32 s70, s62, %d
        s_lshl_b32 s71, s63, 7
        s_add_u32 s70, s70, s71
        s_mul_i32 s71, s62, 40
        s_lshl_b32 s63, s63, 2
        s_add_u32 s71, s71, s63
        s_lshl_b32 s71, s71, 10
        s_add_u32 s%d, s71, 0x%x
        """ % (32 * 1280, D, WS_W2F))
        for i in range(4):
            a("s_mov_b32 m0, %d" % (SCR + n * 4096 + i * 1024))
            a("s_add_u32 s64, s70, %d" % ((16 * (i >> 1) + 4 * (i & 1)) * 1280))
            a("buffer_load_dwordx4 v7, s[72:75], s64 offen lds")
        a("s_branch L_s1_tr_done%d" % n)
        a.label("L_s1_tr_wo%d" % n)
        a("""
        s_sub_u32 s60, s60, 480
        s_mul_i32 s62, s60, 6554
        s_lshr_b32 s62, s62, 16
        s_mul_i32 s63, s62, 10
        s_sub_u32 s63, s60, s63
        s_mul_i32 s71, s62, 40
        s_lshl_b32 s64, s63, 2
        s_add_u32 s71, s71, s64
        s_lshl_b32 s71, s71, 10
        s_add_u32 s%d, s71, 0x%x
        s_mul_i32 s64, s62, 13108
        s_lshr_b32 s64, s64, 16
        s_mul_i32 s70, s64, 5
        s_sub_u32 s62, s62, s70
        s_mul_i32 s70, s64, %d
        s_lshl_b32 s63, s63, 7
        s_add_u32 s70, s70, s63
        s_cmp_eq_u32 s62, 4
        s_cbranch_scc1 L_s1_tr_wl%d
        s_mul_i32 s62, s62, %d
        s_add_u32 s70, s70, s62
        """ % (D, WS_WOF, 160 * 1280, n, 40 * 1280))
        for i in range(4):
            row = 20 * (i & 1) + 8 * ((i >> 1) & 1)
            a("s_mov_b32 m0, %d" % (SCR + n * 4096 + i * 1024))
            a("s_add_u32 s64, s70, %d" % (row * 1280))
            a("buffer_load_dwordx4 v8, s[76:79], s64 offen lds")
        a("s_branch L_s1_tr_done%d" % n)
        a.label("L_s1_tr_wl%d" % n)
        for i in range(4):
            row = 20 * (4 * (i & 1) + 2 * ((i >> 1) & 1)) + 16
            a("s_mov_b32 m0, %d" % (SCR + n * 4096 + i * 1024))
            a("s_add_u32 s64, s70, %d" % (row * 1280))
            a("buffer_load_dwordx4 v9, s[76:79], s64 offen lds")
        a.label("L_s1_tr_done%d" % n)
    a("s_barrier")
    a("s_barrier")
    a("s_barrier")
    a("s_waitcnt vmcnt(0)")
    a("""
    v_lshrrev_b32 v3, 4, v1
    v_lshrrev_b32 v4, 2, v1
    v_and_b32 v4, 3, v4
    v_and_b32 v5, 3, v1
    v_lshlrev_b32 v5, 3, v5
    v_lshrrev_b32 v6, 1, v3
    v_lshlrev_b32 v6, 4, v6
    v_and_b32 v7, 1, v3
    v_lshlrev_b32 v7, 2, v7
    v_add3_u32 v6, v6, v7, v4
    v_lshrrev_b32 v7, 1, v6
    v_and_b32 v7, 3, v7
    v_lshlrev_b32 v6, 7, v6
    v_add_u32 v6, v6, v5
    v_add_u32 v6, %d, v6
    v_lshlrev_b32 v2, 4, v1
    """ % SCR)
    for t in range(4):
        a("v_xor_b32 v4, %d, v7" % t)
        a("v_lshl_add_u32 v%d, v4, 5, v6" % (10 + t))
    for n in range(3):
        for t in range(4):
            b = 104 + 16 * n + 4 * t
            a("ds_read_b64_tr_b16 v[%d:%d], v%d offset:%d" % (b, b + 1, 10 + t, n * 4096))
            a("ds_read_b64_tr_b16 v[%d:%d], v%d offset:%d" % (b + 2, b + 3, 10 + t, n * 4096 + 1024))
    a("s_waitcnt lgkmcnt(0)")
    for n in range(3):
        a("s_cmp_eq_u32 s%d, -1" % (82 + n))
        a("s_cbranch_scc1 L_s1_tr_skip%d" % n)
        for t in range(4):
            a("buffer_store_dwordx4 %s, v2, s[20:23], s%d offen offset:%d" % (vr(104 + 16 * n + 4 * t), 82 + n, t * 1024))
        a.label("L_s1_tr_skip%d" % n)
    for i in range(7):
        a("s_barrier")
    a("s_endpgm")


def stage1_lastarriver(a, T):
    a("""
    s_waitcnt vmcnt(0)
    s_barrier
    s_cmp_lg_u32 s35, 0
    s_cbranch_scc1 L_s1_la_wait_%s
    v_mov_b32 v4, 1
    s_lshl_b32 s63, s33, 2
    v_mov_b32 v5, s63
    s_mov_b64 s[72:73], exec
    s_mov_b64 exec, 1
    buffer_atomic_add v4, v5, s[4:7], 0 offen sc0 sc1
    s_waitcnt vmcnt(0)
    v_mov_b32 v5, 0x%x
    ds_write_b32 v5, v4
    s_waitcnt lgkmcnt(0)
    s_mov_b64 exec, s[72:73]
    """ % (T, 3 * S1_BUF + 12288))
    a.label("L_s1_la_wait_%s" % T)
    a("""
    s_barrier
    v_mov_b32 v5, 0x%x
    ds_read_b32 v4, v5
    s_waitcnt lgkmcnt(0)
    v_readfirstlane_b32 s63, v4
    s_nop 3
    s_cmp_lg_u32 s63, 15
    s_cbranch_scc1 L_s1_la_done_%s
    ; ---- reduce head h = 4jj + w : lane t<63: e=t/3, g'=t%%3
    v_mul_u32_u24 v4, 171, v1
    v_lshrrev_b32 v4, 9, v4                  ; e
    v_mul_u32_u24 v5, 3, v4
    v_sub_u32 v5, v1, v5                     ; g'
    v_mul_u32_u24 v6, 80, v4
    v_lshl_add_u32 v6, v5, 5, v6
    v_add_u32 v7, 16, v6
    v_mov_b32 v8, 0x7000000
    v_cmp_eq_u32 vcc, 2, v5
    s_lshl_b32 s64, s33, 2
    s_add_u32 s64, s64, s35                  ; head
    s_mul_i32 s66, s64, 1680
    s_add_u32 s66, s66, 0x%x
    v_cndmask_b32 v7, v7, v8, vcc
    v_cmp_gt_u32 vcc, 63, v1
    s_and_saveexec_b64 s[72:73], vcc
    """ % (3 * S1_BUF + 12288, T, WS_P))
    for rb in range(16):
        a("buffer_load_dwordx4 %s, v6, s[20:23], s66 offen sc1" % vr(16 + 8 * rb))
        a("buffer_load_dwordx4 %s, v7, s[20:23], s66 offen sc1" % vr(20 + 8 * rb))
        if rb < 15:
            a("s_add_u32 s66, s66, %d" % (32 * 1680))
    a("""
    s_lshl_b32 s67, s35, 2
    s_sub_u32 s68, s67, 16
    v_add_u32 v8, s68, v4                    ; 4w + e - 16
    v_and_b32 v8, 15, v8
    v_add_u32 v8, 48, v8                     ; +768/16
    v_cmp_gt_u32 vcc, 16, v4
    s_mul_i32 s66, s64, 1536
    s_add_u32 s66, s66, 0x%x
    v_cndmask_b32 v8, v8, v4, vcc
    v_lshlrev_b32 v8, 4, v8
    v_lshl_add_u32 v8, v5, 8, v8
    """ % WS_KVT)
    for rb in range(1, 16):
        a("s_waitcnt vmcnt(%d)" % (30 - 2 * rb))
        for i in range(0, 8, 2):
            a("v_pk_add_f32 v[%d:%d], v[%d:%d], v[%d:%d]" % (16 + i, 17 + i, 16 + i, 17 + i, 16 + 8 * rb + i, 17 + 8 * rb + i))
    for i in range(4):
        a("v_cvt_pk_bf16_f32 v%d, v%d, v%d" % (12 + i, 16 + 2 * i, 17 + 2 * i))
    a("buffer_store_dwordx4 v[12:15], v8, s[20:23], s66 offen")
    a("s_mov_b64 exec, s[72:73]")
    a.label("L_s1_la_done_%s" % T)


def stage1_gate(a):
    a("""
    s_lshl_b32 s60, s32, 7
    s_lshl_b32 s61, s33, 4
    s_add_u32 s60, s60, s61
    s_lshl_b32 s61, s35, 2
    s_add_u32 s60, s60, s61
    v_lshrrev_b32 v2, 5, v1
    v_add_u32 v2, s60, v2
    v_lshlrev_b32 v100, 2, v2
    v_add_u32 v100, 0x%x, v100
    v_mul_u32_u24 v2, 1280, v2
    v_and_b32 v3, 31, v1
    v_cmp_eq_u32 s[74:75], 0, v3
    v_mul_u32_u24 v3, 40, v3
    v_add_u32 v2, v2, v3
    buffer_load_dwordx4 v[20:23], v3, s[28:31], 0 offen
    buffer_load_dwordx4 v[24:27], v3, s[28:31], 0 offen offset:16
    buffer_load_dwordx2 v[28:29], v3, s[28:31], 0 offen offset:32
    """ % WS_G)
    for p in range(2):
        b = 32 + 12 * p
        a("buffer_load_dwordx4 %s, v2, s[8:11], 0 offen offset:%d" % (vr(b), p * 2560))
        a("buffer_load_dwordx4 %s, v2, s[8:11], 0 offen offset:%d" % (vr(b + 4), p * 2560 + 16))
        a("buffer_load_dwordx2 v[%d:%d], v2, s[8:11], 0 offen offset:%d" % (b + 8, b + 9, p * 2560 + 32))

def stage1_gate2(a, nst):
    a("s_waitcnt vmcnt(%d)" % nst)
    for i in range(10):
        a("v_lshlrev_b32 v%d, 16, v%d" % (60 + 2 * i, 20 + i))
        a("v_and_b32 v%d, 0xffff0000, v%d" % (61 + 2 * i, 20 + i))
    a("v_pk_mov_b32 v[96:97], 0, 0")
    for i in range(10):
        for p in range(2):
            b = 32 + 12 * p; t = 8 + 4 * p
            a("v_lshlrev_b32 v%d, 16, v%d" % (t, b + i))
            a("v_and_b32 v%d, 0xffff0000, v%d" % (t + 1, b + i))
        for p in range(2):
            t = 8 + 4 * p
            a("v_pk_mul_f32 v[%d:%d], v[%d:%d], v[%d:%d]" % (t, t + 1, t, t + 1, 60 + 2 * i, 61 + 2 * i))
        for p in range(2):
            t = 8 + 4 * p
            a("v_cvt_pk_bf16_f32 v%d, v%d, v%d" % (t, t, t + 1))
        for p in range(2):
            t = 8 + 4 * p
            a("v_lshlrev_b32 v%d, 16, v%d" % (t + 1, t))
            a("v_and_b32 v%d, 0xffff0000, v%d" % (t, t))
        for p in range(2):
            t = 8 + 4 * p
            a("v_add_f32 v%d, v%d, v%d" % (96 + p, 96 + p, t + 1))
        for p in range(2):
            t = 8 + 4 * p
            a("v_add_f32 v%d, v%d, v%d" % (96 + p, 96 + p, t))
    for mode in ("quad_perm:[1,0,3,2]", "quad_perm:[2,3,0,1]", "row_half_mirror", "row_mirror"):
        a("s_nop 1")
        for p in range(2):
            a("v_add_f32_dpp v%d, v%d, v%d %s row_mask:0xf bank_mask:0xf" % (96 + p, 96 + p, 96 + p, mode))
    for p in range(2):
        a("ds_swizzle_b32 v%d, v%d offset:0x401F" % (98 + p, 96 + p))
    a("s_waitcnt lgkmcnt(0)")
    for ins in ("v_add_f32 v{r}, v{r}, v{q}", "v_cvt_pk_bf16_f32 v{r}, v{r}, v{r}", "v_lshlrev_b32 v{r}, 16, v{r}", "v_mul_f32 v{r}, 0xbfb8aa3b, v{r}",
                "v_exp_f32 v{r}, v{r}", "NOP", "v_add_f32 v{r}, 1.0, v{r}", "v_rcp_f32 v{r}, v{r}", "NOP", "v_cvt_pk_bf16_f32 v{r}, v{r}, v{r}", "v_lshlrev_b32 v{r}, 16, v{r}"):
        if ins == "NOP":
            a("s_nop 0"); continue
        for p in range(2):
            a(ins.format(r=96 + p, q=98 + p))
    a("s_and_saveexec_b64 s[72:73], s[74:75]")
    for p in range(2):
        a("buffer_store_dword v%d, v100, s[20:23], 0 offen offset:%d" % (96 + p, p * 8))
    a("s_mov_b64 exec, s[72:73]")

def s1_warm(a):
    if int(os.environ.get("WARM", "1")):
        a("v_lshlrev_b32 v2, 4, v1")
        for (srdn, S, n) in ((8, 10240, 3), (12, 9600, 3), (16, 7680, 2)):
            a("s_mul_i32 s60, s2, %d" % S)
            a("s_mul_i32 s61, s35, %d" % (S // 4))
            a("s_add_u32 s60, s60, s61")
            for i in range(n):
                a("buffer_load_dwordx4 v[240:243], v2, s[%d:%d], s60 offen offset:%d" % (srdn, srdn + 3, i * 1024))

def s1_dma(typ):
    L = []
    if typ == 2:
        for i in range(16):
            L.append("s_add_u32 m0, s57, %d" % (i * 1024))
            L.append("s_add_u32 s64, s54, %d" % (i * 10240))
            L.append("buffer_load_dwordx4 v%d, s[8:11], s64 offen lds" % (96 + (i & 1)))
        L.append("s_add_u32 s54, s54, 128")
    elif typ == 0:
        for i in range(28):
            L.append("s_add_u32 m0, s57, %d" % (16384 + i * 1024))
            L.append("s_add_u32 s64, s55, %d" % ((i // 7) * 16 * 3840))
            L.append("buffer_load_dwordx4 v%d, s[12:15], s64 offen lds" % (98 + i % 7))
        L.append("s_add_u32 s55, s55, %d" % (64 * 3840))
    else:
        for i in range(24):
            L.append("s_add_u32 m0, s57, %d" % (16384 + i * 1024))
            L.append("s_add_u32 s64, s56, %d" % ((i // 6) * 16 * 3072))
            L.append("buffer_load_dwordx4 v%d, s[16:19], s64 offen lds" % (98 + i % 6))
        for i in range(2):
            L.append("s_add_u32 m0, s57, %d" % (16384 + 24576 + i * 1024))
            L.append("s_add_u32 s64, s55, %d" % (i * 32 * 3840))
            L.append("buffer_load_dwordx4 v104, s[12:15], s64 offen lds")
        L.append("s_add_u32 s55, s55, %d" % (64 * 3840))
        L.append("s_add_u32 s56, s56, %d" % (64 * 3072))
    L.append("s_add_u32 s57, s57, %d" % S1_BUF)
    L.append("s_cmp_eq_u32 s57, %d" % (3 * S1_BUF))
    L.append("s_cselect_b32 s57, 0, s57")
    return L

def stage1_loader(a, typ):
    T = "ABX"[typ]
    N = [28, 26, 16][typ]
    if typ == 2:
        a("""
        v_lshrrev_b32 v2, 3, v1
        v_mul_u32_u24 v2, 1280, v2
        v_and_b32 v3, 7, v1
        v_lshrrev_b32 v4, 4, v1
        v_xor_b32 v5, v3, v4
        v_lshlrev_b32 v6, 4, v5
        v_add_u32 v96, v2, v6
        v_xor_b32 v5, 4, v5
        v_lshlrev_b32 v6, 4, v5
        v_add_u32 v97, v2, v6
        s_lshl_b32 s60, s32, 7
        s_mul_i32 s54, s60, 1280
        """)
    else:
        a("s_mov_b32 s55, 0")
        a("s_mov_b32 s56, 0")
    if typ == 0:
        C = 28
        a("s_mov_b32 s67, %d" % ((2**32 + C - 1) // C))
        a("s_mul_i32 s68, s33, 160")
        a("s_add_u32 s69, s68, 1280")
        a("s_add_u32 s70, s68, %d" % (2560 - 160))
        a("s_lshl_b32 s71, s33, 7")
        a("s_sub_u32 s71, s71, 320")
        a("v_mov_b32 v8, s69")
        a("v_mov_b32 v9, s70")
        a("v_mov_b32 v10, s71")
        for i in range(7):
            a("v_add_u32 v2, %d, v1" % (64 * i))
            a("v_mul_hi_u32 v3, v2, s67")
            a("v_mul_u32_u24 v4, %d, v3" % C)
            a("v_sub_u32 v4, v2, v4")
            a("v_and_b32 v5, 4, v3")
            a("v_lshrrev_b32 v5, 1, v5")
            a("v_xor_b32 v4, v4, v5")
            a("v_cmp_gt_u32 vcc, 10, v4")
            a("v_cmp_gt_u32 s[72:73], 20, v4")
            swap23_v(a, 5, 3, 6)
            a("v_mul_u32_u24 v5, 3840, v5")
            a("v_cndmask_b32 v6, v9, v8, vcc")
            a("v_cndmask_b32 v6, v10, v6, s[72:73]")
            a("v_lshlrev_b32 v4, 4, v4")
            a("v_add3_u32 v%d, v5, v6, v4" % (98 + i))
    elif typ == 1:
        C = 24
        a("s_mov_b32 s67, %d" % ((2**32 + C - 1) // C))
        a("s_mul_i32 s68, s33, 384")
        for i in range(6):
            a("v_add_u32 v2, %d, v1" % (64 * i))
            a("v_mul_hi_u32 v3, v2, s67")
            a("v_mul_u32_u24 v4, %d, v3" % C)
            a("v_sub_u32 v4, v2, v4")
            a("v_and_b32 v5, 6, v3")
            a("v_xor_b32 v4, v4, v5")
            swap23_v(a, 5, 3, 6)
            a("v_mul_u32_u24 v5, 3072, v5")
            a("v_lshlrev_b32 v4, 4, v4")
            a("v_add3_u32 v%d, v5, s68, v4" % (98 + i))
        a("v_lshrrev_b32 v2, 1, v1")
        a("v_and_b32 v3, 15, v2")
        swap23_v(a, 5, 3, 6)
        a("v_and_b32 v3, 16, v2")
        a("v_add_u32 v5, v5, v3")
        a("v_mul_u32_u24 v5, 3840, v5")
        a("v_and_b32 v4, 1, v1")
        a("v_lshlrev_b32 v4, 4, v4")
        a("s_lshl_b32 s68, s33, 5")
        a("s_add_u32 s68, s68, 1024")
        a("v_add3_u32 v104, v5, s68, v4")
    stamp(a, 1)
    a.label("L_s1_ld_%s" % T)
    for s in s1_dma(typ):
        if int(os.environ.get("NODMA", "0")) and "buffer_load" in s: continue
        a(s)
    a("s_add_u32 s59, s59, 1")
    a("s_cmp_eq_u32 s59, 1")
    a("s_cbranch_scc1 L_s1_ld_%s" % T)
    if STAMP:
        a("s_cmp_lg_u32 s59, 2")
        a("s_cbranch_scc1 L_s1_ldst_%s" % T)
        stamp(a, 2)
        a("s_waitcnt vmcnt(%d)" % N)
        stamp(a, 3)
        a.label("L_s1_ldst_%s" % T)
    a("s_waitcnt vmcnt(%d)" % N)
    a("s_barrier")
    a("s_cmp_lt_u32 s59, 10")
    a("s_cbranch_scc1 L_s1_ld_%s" % T)
    a("s_waitcnt vmcnt(0)")
    a("s_barrier")
    a("s_barrier")
    stamp(a, 4)
    stamp_flush(a, 0, 20, 35)
    a("s_endpgm")

def stage1_type(a, typ):
    T = "AB"[typ]
    if typ == 0:
        a("""
        v_mul_u32_u24 v2, 448, v6
        v_add_u32 v2, v2, v5
        v_add_u32 v2, 16384, v2
        v_lshlrev_b32 v7, 5, v7
        v_add_u32 v107, v2, v7
        v_sub_u32 v108, v2, v7
        """)
        nb = 2
    else:
        a("""
        v_mul_u32_u24 v2, 384, v6
        v_add_u32 v2, v2, v5
        v_add_u32 v2, 16384, v2
        v_lshrrev_b32 v7, 1, v6
        v_and_b32 v7, 3, v7
        """)
        for j in range(4):
            a("v_xor_b32 v3, %d, v7" % j)
            a("v_subrev_u32 v3, %d, v3" % j)
            a("v_lshlrev_b32 v3, 5, v3")
            a("v_add_u32 v%d, v2, v3" % (107 + j))
        a("v_lshlrev_b32 v2, 5, v6")
        a("v_add_u32 v2, v2, v5")
        a("v_add_u32 v111, %d, v2" % (16384 + 24576))
        nb = 5
        a("s_mul_i32 s63, s33, 384")
        a("s_mul_i32 s64, s53, 192")
        a("s_add_u32 s63, s63, s64")
        a("v_lshrrev_b32 v3, 4, v1")
        a("v_lshlrev_b32 v4, 3, v3")
        for i in range(6):
            a("buffer_load_dwordx2 v[%d:%d], v4, s[24:27], s63 offen offset:%d" % (32 + 2 * i, 33 + 2 * i, 32 * i))
    a("s_cmp_eq_u32 s53, 1")
    a("s_cbranch_scc1 L_s1_%s1" % T)
    for wc in (0, 1):
        if wc == 1:
            a.label("L_s1_%s1" % T)
        stage1_wave(a, typ, wc, nb)

def s1_tiles(typ, wc):
    if typ == 0:
        return [("k", 0), ("k", 1), ("k", 2), ("v", 0), ("v", 1), ("q", 0), ("q", 1)] if wc == 0 else \
               [("k", 3), ("k", 4), ("v", 2), ("v", 3), ("v", 4), ("q", 2), ("q", 3)]
    else:
        return [("h", i) for i in range(6)] + [("q", 0)] if wc == 0 else [("h", i) for i in range(6, 12)] + [("g", 0)]

def s1_reads(typ, tiles, ks, aset, bset):
    L = []
    for ti, (kind, idx) in enumerate(tiles):
        if kind == "g":
            L.append("ds_read_b128 %s, v119 offset:%d" % (vr(bset + 4 * ti), 64 * ks))
            continue
        for hh in range(2):
            dst = bset + 4 * ti + 2 * hh
            if typ == 0:
                slot = {"k": 0, "v": 5, "q": 10}[kind] + idx
                base = 114 + (slot & 1)
                off = (32 * ks + 8 * hh) * 448 + slot * 32
            else:
                if kind == "q":
                    base = 118
                    off = (32 * ks + 8 * hh) * 32
                else:
                    base = 114 + (idx & 3)
                    off = (32 * ks + 8 * hh) * 384 + idx * 32
            L.append("ds_read_b64_tr_b16 v[%d:%d], v%d offset:%d" % (dst, dst + 1, base, off))
        if ti == 0:
            for rt in range(4):
                L.append("ds_read_b128 %s, v%d offset:%d" % (vr(aset + 4 * rt), 112 + ks, rt * 2048))
    return L

def s1_mfmas(tiles, aset, bset):
    L = []
    for ti, (kind, idx) in enumerate(tiles):
        for rt in range(4):
            acc = 128 + (ti * 4 + rt) * 4
            x = vr(aset + 4 * rt); w = vr(bset + 4 * ti)
            if kind in ("k", "v"):
                L.append("v_mfma_f32_16x16x32_bf16 %s, %s, %s, %s" % (vr(acc), x, w, vr(acc)))
            else:
                L.append("v_mfma_f32_16x16x32_bf16 %s, %s, %s, %s" % (vr(acc), w, x, vr(acc)))
    return L

def s1_setbase(nb):
    L = ["v_add_u32 v112, s58, v105", "v_add_u32 v113, s58, v106"]
    for j in range(nb):
        L.append("v_add_u32 v%d, s58, v%d" % (114 + j, 107 + j))
    return L

def stage1_wave(a, typ, wc, nb):
    T = "AB"[typ] + str(wc)
    tiles = s1_tiles(typ, wc)
    if typ == 1:
        a("s_waitcnt vmcnt(0)")
    for ti, (kind, idx) in enumerate(tiles):
        acc = 128 + (ti * 4) * 4
        if kind == "h":
            b = 32 + 2 * (idx % 6)
            a("v_lshlrev_b32 v%d, 16, v%d" % (acc, b))
            a("v_and_b32 v%d, 0xffff0000, v%d" % (acc + 1, b))
            a("v_lshlrev_b32 v%d, 16, v%d" % (acc + 2, b + 1))
            a("v_and_b32 v%d, 0xffff0000, v%d" % (acc + 3, b + 1))
            for rt in range(1, 4):
                for i in (0, 2):
                    a("v_pk_mov_b32 v[%d:%d], v[%d:%d], v[%d:%d] op_sel:[0,1]" % (acc + 4 * rt + i, acc + 4 * rt + i + 1, acc + i, acc + i + 1, acc + i, acc + i + 1))
        else:
            for r in range(0, 16, 2):
                a("v_pk_mov_b32 v[%d:%d], 0, 0" % (acc + r, acc + r + 1))
    for s in s1_setbase(nb):
        a(s)
    GT = (typ == 1 and wc == 1)
    if GT:
        a("v_lshrrev_b32 v119, 4, v1")
        a("v_lshlrev_b32 v119, 4, v119")
        a("v_add_u32 v119, %d, v119" % (3 * S1_BUF + 12288))
    s1_warm(a)
    stamp(a, 1)
    a("s_barrier")
    for s in s1_reads(typ, tiles, 0, 64, 8):
        a(s)
    a("s_waitcnt lgkmcnt(0)")
    stamp(a, 2)
    a.label("L_s1_loop_%s" % T)
    NOLDS = int(os.environ.get("NOLDS", "0"))
    interleave(a, s1_mfmas(tiles, 64, 8), [] if NOLDS else s1_reads(typ, tiles, 1, 80, 36))
    a("s_add_u32 s58, s58, %d" % S1_BUF)
    a("s_cmp_eq_u32 s58, %d" % (3 * S1_BUF))
    a("s_cselect_b32 s58, 0, s58")
    a("s_waitcnt lgkmcnt(0)")
    a("s_barrier")
    m = s1_mfmas(tiles, 80, 36)
    interleave(a, m, s1_setbase(nb) + (["v_add_u32 v119, 128, v119"] if GT else []) + ([] if NOLDS else s1_reads(typ, tiles, 0, 64, 8)))
    a("s_add_u32 s59, s59, 1")
    a("s_cmp_lt_u32 s59, 10")
    a("s_waitcnt lgkmcnt(0)")
    a("s_cbranch_scc1 L_s1_loop_%s" % T)
    stamp(a, 3)
    a("v_and_b32 v2, 15, v1")
    a("v_lshrrev_b32 v3, 4, v1")
    a("s_lshl_b32 s60, s32, 7")
    a("s_lshl_b32 s63, s52, 6")
    a("s_add_u32 s60, s60, s63")
    if typ == 1:
        a("s_lshl_b32 s63, s52, 8")
        a("v_lshl_add_u32 v6, v2, 2, s63")
        if wc == 1:
            gacc = 128 + 6 * 16
            a("s_nop 4")
            for ins in ("v_cvt_pk_bf16_f32 v{r}, v{g}, v{g}", "v_lshlrev_b32 v{r}, 16, v{r}", "v_mul_f32 v{r}, 0xbfb8aa3b, v{r}", "v_exp_f32 v{r}, v{r}", "NOP",
                        "v_add_f32 v{r}, 1.0, v{r}", "v_rcp_f32 v{r}, v{r}", "NOP", "v_cvt_pk_bf16_f32 v{r}, v{r}, v{r}", "v_lshlrev_b32 v{r}, 16, v{r}",
                        "v_sub_f32 v{o}, 1.0, v{r}", "v_cvt_pk_bf16_f32 v{o}, v{o}, v{o}", "v_lshlrev_b32 v{o}, 16, v{o}"):
                if ins == "NOP":
                    a("s_nop 0"); continue
                for rt in range(4):
                    a(ins.format(r=21 + 2 * rt, o=20 + 2 * rt, g=gacc + 4 * rt))
            a("v_add_u32 v4, s60, v2")
            a("v_lshlrev_b32 v4, 2, v4")
            a("v_add_u32 v4, 0x%x, v4" % WS_G)
            a("v_cmp_eq_u32 vcc, 0, v3")
            a("s_and_saveexec_b64 s[72:73], vcc")
            for rt in range(4):
                a("ds_write_b32 v6, v%d offset:%d" % (20 + 2 * rt, rt * 64))
                a("buffer_store_dword v%d, v4, s[20:23], 0 offen offset:%d" % (21 + 2 * rt, rt * 64))
            a("s_mov_b64 exec, s[72:73]")
            a("s_waitcnt lgkmcnt(0)")
            a("s_barrier")
        else:
            a("s_barrier")
            for rt in range(4):
                a("ds_read_b32 v%d, v6 offset:%d" % (20 + 2 * rt, rt * 64))
            a("s_waitcnt lgkmcnt(0)")
    first_h = True; first_kv = True
    for ti, (kind, idx) in enumerate(tiles):
        if kind == "g":
            continue
        if kind == "h":
            if first_h:
                a("v_and_b32 v4, 1, v3")
                a("v_mul_u32_u24 v4, 192, v4")
                a("v_lshrrev_b32 v5, 1, v3")
                a("v_add_u32 v4, v4, v5")
                a("v_lshlrev_b32 v4, 8, v4")
                a("v_lshl_add_u32 v5, v2, 4, v4")
                a("s_lshr_b32 s63, s60, 4")
                a("s_mul_i32 s63, s63, 192")
                a("s_mul_i32 s64, s33, 24")
                a("s_add_u32 s63, s63, s64")
                a("s_add_u32 s63, s63, %d" % (12 * wc))
                a("s_lshl_b32 s63, s63, 8")
                a("s_add_u32 s66, s63, %d" % (2 * 192 * 256))
                first_h = False
            for p in range(2):
                accA = 128 + (ti * 4 + 2 * p) * 4
                accB = accA + 4
                for i in range(8):
                    a("v_max_f32 v%d, 0, v%d" % (accA + i, accA + i))
                for i in range(0, 8, 2):
                    a("v_pk_mul_f32 v[%d:%d], v[%d:%d], v[%d:%d]" % (accA + i, accA + i + 1, accA + i, accA + i + 1, accA + i, accA + i + 1))
                for i in range(0, 8, 2):
                    om = 20 + 2 * (2 * p + (i >> 2))
                    a("v_pk_mul_f32 v[%d:%d], v[%d:%d], v[%d:%d] op_sel_hi:[1,0]" % (accA + i, accA + i + 1, accA + i, accA + i + 1, om, om + 1))
                a("v_cvt_pk_bf16_f32 v%d, v%d, v%d" % (accA, accA, accA + 1))
                a("v_cvt_pk_bf16_f32 v%d, v%d, v%d" % (accA + 1, accA + 2, accA + 3))
                a("v_cvt_pk_bf16_f32 v%d, v%d, v%d" % (accA + 2, accB, accB + 1))
                a("v_cvt_pk_bf16_f32 v%d, v%d, v%d" % (accA + 3, accB + 2, accB + 3))
                a("s_nop 1")
                a("v_permlane16_swap_b32 v%d, v%d" % (accA, accA + 2))
                a("v_permlane16_swap_b32 v%d, v%d" % (accA + 1, accA + 3))
                a("buffer_store_dwordx4 %s, v5, s[20:23], s%d offen offset:%d" % (vr(accA), [63, 66][p], (idx % 6) * 512))
        elif kind == "q":
            if typ == 0:
                a("s_lshl_b32 s63, s33, 4")
                a("s_add_u32 s63, s63, %d" % (4 * idx))
            else:
                a("s_lshl_b32 s63, s33, 2")
                a("s_add_u32 s63, s63, 128")
            a("s_lshr_b32 s64, s60, 4")
            a("s_mul_i32 s64, s64, 160")
            a("s_add_u32 s63, s63, s64")
            a("s_lshl_b32 s63, s63, 7")
            a("s_add_u32 s63, s63, 0x%x" % WS_PQF)
            a("v_lshlrev_b32 v7, 3, v1")
            phi16(a, 128 + ti * 16, 96, 78, 80)
            for rt in range(4):
                acc = 128 + (ti * 4 + rt) * 4
                a("v_cvt_pk_bf16_f32 v%d, v%d, v%d" % (acc, acc, acc + 1))
                a("v_cvt_pk_bf16_f32 v%d, v%d, v%d" % (acc + 1, acc + 2, acc + 3))
                a("s_add_u32 s64, s63, %d" % (rt * 160 * 128))
                a("buffer_store_dwordx2 v[%d:%d], v7, s[20:23], s64 offen" % (acc, acc + 1))
        else:
            tc0 = 16 * idx + (80 if kind == "v" else 0)
            if first_kv:
                a("v_mul_u32_u24 v5, 272, v2")
                a("v_lshlrev_b32 v6, 3, v3")
                a("s_lshl_b32 s63, s52, 7")
                a("v_add3_u32 v5, v5, v6, s63")
                first_kv = False
            if kind == "k":
                phi16(a, 128 + ti * 16, 96, 78, 80)
            for rt in range(4):
                acc = 128 + (ti * 4 + rt) * 4
                a("v_cvt_pk_bf16_f32 v%d, v%d, v%d" % (acc, acc, acc + 1))
                a("v_cvt_pk_bf16_f32 v%d, v%d, v%d" % (acc + 1, acc + 2, acc + 3))
                a("ds_write_b64 v5, v[%d:%d] offset:%d" % (acc, acc + 1, tc0 * 272 + rt * 32))
            if ti == 4:
                a("s_waitcnt lgkmcnt(0)")
                a("s_barrier")
                a("s_mul_i32 s63, s35, %d" % (20 * 272))
                a("v_mul_u32_u24 v5, 272, v2")
                a("v_lshlrev_b32 v6, 4, v3")
                a("v_add3_u32 v5, v5, v6, s63")
                for ks in range(4):
                    b = 16 + 16 * ks
                    a("ds_read_b128 %s, v5 offset:%d" % (vr(b), ks * 64))
                    a("ds_read_b128 %s, v5 offset:%d" % (vr(b + 4), ks * 64 + 16 * 272))
                    a("ds_read_b128 %s, v5 offset:%d" % (vr(b + 8), ks * 64 + 80 * 272))
                    a("ds_read_b128 %s, v5 offset:%d" % (vr(b + 12), ks * 64 + 96 * 272))
                a("v_cmp_eq_u32 vcc, 4, v2")
                a("v_mov_b32 v6, 0x3f803f80")
                a("s_waitcnt lgkmcnt(0)")
                for ks in range(4):
                    b = 16 + 16 * ks
                    for i in range(4):
                        a("v_cndmask_b32 v%d, v%d, v6, vcc" % (b + 12 + i, b + 12 + i))
                a("s_nop 1")
                for ks in range(4):
                    b = 16 + 16 * ks
                    c = lambda r: ("0" if ks == 0 else vr(r))
                    a("v_mfma_f32_16x16x32_bf16 v[80:83], %s, %s, %s" % (vr(b), vr(b + 8), c(80)))
                    a("v_mfma_f32_16x16x32_bf16 v[84:87], %s, %s, %s" % (vr(b), vr(b + 12), c(84)))
                    a("v_mfma_f32_16x16x32_bf16 v[88:91], %s, %s, %s" % (vr(b + 4), vr(b + 8), c(88)))
                    a("v_mfma_f32_16x16x32_bf16 v[92:95], %s, %s, %s" % (vr(b + 4), vr(b + 12), c(92)))
                a("s_lshl_b32 s63, s32, 5")
                a("s_lshl_b32 s64, s33, 2")
                a("s_add_u32 s63, s63, s64")
                a("s_add_u32 s63, s63, s35")
                a("s_mul_i32 s63, s63, 1680")
                a("s_add_u32 s63, s63, 0x%x" % WS_P)
                a("v_mul_u32_u24 v5, 80, v2")
                a("v_lshlrev_b32 v6, 4, v3")
                a("v_add_u32 v5, v5, v6")
                a("v_cmp_eq_u32 s[74:75], 0, v3")
                a("v_cmp_gt_u32 s[76:77], 5, v2")
                a("s_nop 7")
                a("buffer_store_dwordx4 v[80:83], v5, s[20:23], s63 offen")
                a("s_and_saveexec_b64 s[72:73], s[74:75]")
                a("buffer_store_dwordx4 v[88:91], v5, s[20:23], s63 offen offset:64")
                a("s_mov_b64 exec, s[76:77]")
                a("buffer_store_dwordx4 v[84:87], v5, s[20:23], s63 offen offset:1280")
                a("s_and_b64 exec, exec, s[74:75]")
                a("buffer_store_dwordx4 v[92:95], v5, s[20:23], s63 offen offset:1344")
                a("s_mov_b64 exec, s[72:73]")

    stamp(a, 4)
    stamp_flush(a, 0, 20, 35)
    dbg_end1(a)
    a("s_endpgm")

def stage2(a):
    NRT, NT = 4, 5
    a.raw(".globl s2_kernel\n.p2align 8\n.type s2_kernel,@function")
    a.label("s2_kernel")
    a("""
    s_cmp_ge_u32 s2, 256
    s_cbranch_scc1 L_s2_end
    """)
    stamp_start(a)
    a("""
    s_load_dwordx2 s[42:43], s[0:1], 56      ; b2
    s_load_dwordx4 s[44:47], s[0:1], 72
    s_load_dwordx2 s[38:39], s[0:1], 88      ; ws
    s_and_b32 s48, s2, 7
    s_lshr_b32 s49, s2, 3
    s_lshr_b32 s50, s48, 1
    s_lshl_b32 s50, s50, 3
    s_and_b32 s51, s49, 7
    s_add_u32 s50, s50, s51                  ; rb2 (0..31)
    s_and_b32 s52, s48, 1
    s_lshl_b32 s52, s52, 2
    s_lshr_b32 s53, s49, 3
    s_add_u32 s33, s52, s53                  ; cb (0..7)
    s_lshl_b32 s32, s50, 6                   ; row0
    s_lshl_b32 s34, s50, 2                   ; rt0
    v_and_b32 v1, 63, v0
    v_lshrrev_b32 v2, 6, v0
    v_lshlrev_b32 v4, 4, v1                  ; lane*16
    v_readfirstlane_b32 s35, v2
    v_and_b32 v2, 15, v1
    v_lshrrev_b32 v3, 4, v1
    s_waitcnt lgkmcnt(0)
    """)
    srd(a, 8, 38, WS_SIZE)
    srd(a, 20, 42, 1280)
    srd(a, 24, 44, 2621440)
    srd(a, 28, 46, 256)
    a("""
    s_cmp_ge_u32 s35, 4
    s_cbranch_scc1 L_s2_awave
    """)
    vm = []
    def V(ins, tag):
        vm.append(tag); return ins
    def waitvm(tag):
        idx = max(i for i, t in enumerate(vm) if t == tag)
        n = len(vm) - 1 - idx
        assert n <= 63, n
        return "s_waitcnt vmcnt(%d)" % n
    a("""
    s_mul_i32 s55, s34, 192
    s_mul_i32 s60, s35, 48
    s_add_u32 s55, s55, s60
    s_lshl_b32 s55, s55, 8                   ; A soffset
    s_mul_i32 s56, s35, 480
    s_mul_i32 s60, s33, 5
    s_add_u32 s56, s56, s60
    s_lshl_b32 s56, s56, 10
    s_add_u32 s56, s56, 0x%x                 ; B soffset
    s_mul_i32 s57, s35, 200
    s_add_u32 s57, s57, s60
    s_lshl_b32 s57, s57, 10
    s_add_u32 s57, s57, 0x%x                 ; WOF soffset
    v_add_u32 v5, 4096, v4
    """ % (WS_W2F, WS_WOF))
    VA = 232
    for rt in range(NRT):
        a("v_add_u32 v%d, %d, v4" % (VA + rt, rt * 49152))
    ACC = 152
    def SET(st):
        b = 8 + 36 * (st % 4); return b, b + 16
    def bload(dst, t, sreg, tag):
        if t < 4:
            return ("buffer_load_dwordx4 %s, v4, s[8:11], s%d offen offset:%d" % (vr(dst), sreg, t * 1024), tag)
        return ("buffer_load_dwordx4 %s, v5, s[8:11], s%d offen" % (vr(dst), sreg), tag)
    def loads(st):
        A, B = SET(st); tag = "L%d" % st
        L = [bload(B, 0, 56, tag)]
        for rt in range(NRT):
            L.append(("buffer_load_dwordx4 %s, v%d, s[8:11], s55 offen" % (vr(A + 4 * rt), VA + rt), tag))
        for t in range(1, NT):
            L.append(bload(B + 4 * t, t, 56, tag))
        L.append(("s_add_u32 s55, s55, 1024", None))
        L.append(("s_add_u32 s56, s56, %d" % (40 * 1024), None))
        return L
    def wl(step):
        L = [bload(8 + 20 * step + 4 * t, t, 57, "W%d" % step) for t in range(NT)]
        L.append(("s_add_u32 s57, s57, %d" % (40 * 1024), None))
        return L
    def emit(items):
        for ins, tag in items:
            a(V(ins, tag) if tag else ins)
    def inter(main, items, every=2, start=0):
        items = list(items)
        for i, m in enumerate(main):
            a(m)
            if i >= start and (i - start) % every == 0 and items:
                ins, tag = items.pop(0); a(V(ins, tag) if tag else ins)
        emit(items)
    def mfmas(aset, bset):
        return ["v_mfma_f32_16x16x32_bf16 %s, %s, %s, %s" % (vr(ACC + (t * NRT + rt) * 4), vr(bset + 4 * t), vr(aset + 4 * rt), vr(ACC + (t * NRT + rt) * 4))
                for t in range(NT) for rt in range(NRT)]
    a("s_cmp_ge_u32 s2, 32")
    a("s_cbranch_scc1 L_s2_bgo")
    a("s_barrier")
    a.label("L_s2_bgo")
    emit(loads(0)); emit(loads(1)); emit(loads(2))
    a("s_lshl_b32 s60, s35, 4")
    a("s_add_u32 s60, s60, s32")
    a("v_add_u32 v6, s60, v2")
    a("v_lshlrev_b32 v7, 2, v6")
    a("v_add_u32 v7, 0x%x, v7" % WS_G)
    a(V("buffer_load_dword v236, v7, s[8:11], 0 offen", "G"))
    a("s_mul_i32 s58, s33, 160")
    a("v_lshlrev_b32 v7, 3, v3")
    for t in range(NT):
        a(V("buffer_load_dwordx2 v[%d:%d], v7, s[20:23], s58 offen offset:%d" % (238 + 2 * t, 239 + 2 * t, t * 32), "G"))
    stamp(a, 1)
    for r in range(0, 80, 2):
        a("v_pk_mov_b32 v[%d:%d], 0, 0" % (ACC + r, ACC + r + 1))
    stamp(a, 2)
    for st in range(12):
        a(waitvm("L%d" % st))
        if st + 3 < 12:
            side = loads(st + 3)
        elif st == 9:
            side = wl(0) [:]
        elif st == 10:
            side = wl(1) + wl(2)
        else:
            side = wl(3) + wl(4)
        inter(mfmas(*SET(st)), side, every=(2 if len(side) <= 11 else 1))
    stamp(a, 3)
    a("s_mul_i32 s60, s35, 20480")
    a("v_add_u32 v7, s60, v4")
    a("s_barrier")
    AB = [108, 124]
    def oreads(step):
        return [("ds_read_b128 %s, v7 offset:%d" % (vr(AB[step & 1] + 4 * rt), rt * 5120 + step * 1024), None) for rt in range(NRT)]
    emit(oreads(0))
    for step in range(5):
        a(waitvm("W%d" % step) + " lgkmcnt(0)")
        inter(mfmas(AB[step & 1], 8 + 20 * step), oreads(step + 1) if step < 4 else [], every=2, start=1)
    stamp(a, 4)
    a("v_sub_f32 v236, 1.0, v236")
    a("v_cvt_pk_bf16_f32 v236, v236, v236")
    a("v_lshlrev_b32 v236, 16, v236")
    a("s_barrier")
    for w in range(4):
        a("s_cmp_lg_u32 s35, %d" % w)
        a("s_cbranch_scc1 L_s2_fw%d" % w)
        for rt in range(NRT):
            if rt == w: continue
            si = w if w < rt else w - 1
            for t in range(NT):
                a("ds_write_b128 v4, %s offset:%d" % (vr(ACC + (t * NRT + rt) * 4), (rt * 3 + si) * 5120 + t * 1024))
        for t in range(NT):
            src = ACC + (t * NRT + w) * 4
            a("v_lshlrev_b32 v8, 16, v%d" % (238 + 2 * t))
            a("v_and_b32 v9, 0xffff0000, v%d" % (238 + 2 * t))
            a("v_lshlrev_b32 v10, 16, v%d" % (239 + 2 * t))
            a("v_and_b32 v11, 0xffff0000, v%d" % (239 + 2 * t))
            for i in (0, 2):
                a("v_pk_fma_f32 v[%d:%d], v[%d:%d], v[236:237], v[%d:%d] op_sel_hi:[1,0,1]" % (16 + 4 * t + i, 17 + 4 * t + i, 8 + i, 9 + i, src + i, src + i + 1))
        a.label("L_s2_fw%d" % w)
    a("s_mul_i32 s61, s35, %d" % (3 * 5120))
    a("v_add_u32 v7, s61, v4")
    a("s_waitcnt lgkmcnt(0)")
    a("s_barrier")
    for si in range(3):
        for t in range(NT):
            a("ds_read_b128 %s, v7 offset:%d" % (vr(40 + (si * NT + t) * 4), si * 5120 + t * 1024))
    a("v_mul_u32_u24 v6, 1280, v6")
    a("v_and_b32 v8, 1, v3")
    a("v_lshl_add_u32 v8, v8, 5, v6")
    a("v_lshrrev_b32 v9, 1, v3")
    a("v_lshl_add_u32 v8, v9, 4, v8")
    a("v_lshl_add_u32 v9, v3, 3, v6")
    for si in range(3):
        a("s_waitcnt lgkmcnt(%d)" % (10 - 5 * si))
        for t in range(NT):
            o = 16 + 4 * t; q = 40 + (si * NT + t) * 4
            for i in (0, 2):
                a("v_pk_add_f32 v[%d:%d], v[%d:%d], v[%d:%d]" % (o + i, o + i + 1, o + i, o + i + 1, q + i, q + i + 1))
    for p in range(2):
        A_, B_ = 16 + 8 * p, 20 + 8 * p
        a("v_cvt_pk_bf16_f32 v%d, v%d, v%d" % (A_, A_, A_ + 1))
        a("v_cvt_pk_bf16_f32 v%d, v%d, v%d" % (A_ + 1, A_ + 2, A_ + 3))
        a("v_cvt_pk_bf16_f32 v%d, v%d, v%d" % (A_ + 2, B_, B_ + 1))
        a("v_cvt_pk_bf16_f32 v%d, v%d, v%d" % (A_ + 3, B_ + 2, B_ + 3))
    a("v_cvt_pk_bf16_f32 v32, v32, v33")
    a("v_cvt_pk_bf16_f32 v33, v34, v35")
    for p in range(2):
        A_ = 16 + 8 * p
        a("v_permlane16_swap_b32 v%d, v%d" % (A_, A_ + 2))
        a("v_permlane16_swap_b32 v%d, v%d" % (A_ + 1, A_ + 3))
        a("buffer_store_dwordx4 %s, v8, s[24:27], s58 offen offset:%d" % (vr(A_), p * 64))
    a("buffer_store_dwordx2 v[32:33], v9, s[24:27], s58 offen offset:128")
    dbg_end2(a)
    stamp_flush(a, 2, 8, 35)
    a("s_endpgm")
    a.label("L_s2_awave")
    a("s_setprio 2")
    F, PQB, Z, OA, RY, T1 = 8, [40, 56], 72, 96, 112, 144
    G = [76, 77, 78, 79]
    DS = 80
    EPSR = 88
    a("""
    s_sub_u32 s58, s35, 4                    ; aw
    s_mul_i32 s54, s58, 20480
    s_mul_i32 s60, s34, 160
    s_mul_i32 s61, s58, 40
    s_add_u32 s60, s60, s61
    s_lshl_b32 s60, s60, 7
    s_add_u32 s60, s60, 0x%x
    v_add_u32 v5, s32, v2
    v_lshlrev_b32 v5, 2, v5
    v_add_u32 v5, 0x%x, v5
    ; reducer duty: wave 4 of workgroups 0..31 reduces head = id
    s_cmp_ge_u32 s2, 32
    s_cbranch_scc1 L_s2_nored
    s_cmp_eq_u32 s35, 4
    s_cbranch_scc1 L_s2_dored
    s_barrier
    s_branch L_s2_nored
L_s2_dored:
    v_mul_u32_u24 v8, 171, v1
    v_lshrrev_b32 v8, 9, v8                  ; e
    v_mul_u32_u24 v9, 3, v8
    v_sub_u32 v9, v1, v9                     ; g'
    v_mul_u32_u24 v6, 80, v8
    v_lshl_add_u32 v6, v9, 5, v6
    v_add_u32 v7, 16, v6
    v_mov_b32 v10, 0x7000000
    v_cmp_eq_u32 vcc, 2, v9
    s_mul_i32 s66, s2, 1680
    s_add_u32 s66, s66, 0x%x
    s_nop 0
    v_cndmask_b32 v7, v7, v10, vcc
    v_cmp_gt_u32 vcc, 63, v1
    s_and_saveexec_b64 s[72:73], vcc
    """ % (WS_PQF, WS_G, WS_P))
    for rb in range(16):
        a("buffer_load_dwordx4 %s, v6, s[8:11], s66 offen" % vr(16 + 8 * rb))
        a("buffer_load_dwordx4 %s, v7, s[8:11], s66 offen" % vr(20 + 8 * rb))
        if rb < 15:
            a("s_add_u32 s66, s66, %d" % (32 * 1680))
    a("""
    s_and_b32 s67, s2, 3
    s_lshl_b32 s67, s67, 2
    s_sub_u32 s68, s67, 16
    v_add_u32 v10, s68, v8
    v_and_b32 v10, 15, v10
    v_add_u32 v10, 48, v10
    v_cmp_gt_u32 vcc, 16, v8
    s_mul_i32 s66, s2, 1536
    s_add_u32 s66, s66, 0x%x
    v_cndmask_b32 v10, v10, v8, vcc
    v_lshlrev_b32 v10, 4, v10
    v_lshl_add_u32 v10, v9, 8, v10
    """ % WS_KVT)
    for rb in range(1, 16):
        a("s_waitcnt vmcnt(%d)" % (30 - 2 * rb))
        for i in range(0, 8, 2):
            a("v_pk_add_f32 v[%d:%d], v[%d:%d], v[%d:%d]" % (16 + i, 17 + i, 16 + i, 17 + i, 16 + 8 * rb + i, 17 + 8 * rb + i))
    for i in range(4):
        a("v_cvt_pk_bf16_f32 v%d, v%d, v%d" % (12 + i, 16 + 2 * i, 17 + 2 * i))
    a("""
    buffer_store_dwordx4 v[12:15], v10, s[8:11], s66 offen sc1
    s_barrier
    s_waitcnt vmcnt(0)
    s_mov_b64 exec, -1
    v_mov_b32 v8, 1
    s_lshr_b32 s66, s2, 3
    s_lshl_b32 s66, s66, 12
    s_add_u32 s66, s66, 0x%x
    v_lshlrev_b32 v9, 7, v1
    s_mov_b32 exec_hi, 0
    buffer_atomic_add v8, v9, s[8:11], s66 offen sc1
    s_mov_b64 exec, -1
    """ % WS_FLAG)
    a.label("L_s2_nored")
    for rt in range(NRT):
        a("buffer_load_dword v%d, v5, s[8:11], 0 offen offset:%d" % (G[rt], rt * 64))
    for i in range(5):
        for rt in range(NRT):
            a("s_add_u32 m0, s54, %d" % (rt * 5120 + i * 1024))
            a("s_add_u32 s64, s60, %d" % (rt * 160 * 128 + i * 1024))
            a("buffer_load_dwordx4 v4, s[8:11], s64 offen lds")
    stamp(a, 1)
    a("v_cmp_gt_u32 s[82:83], 48, v1")
    a("v_cmp_gt_u32 s[84:85], 32, v1")
    a("s_lshl_b32 s61, s58, 3")
    a("s_mul_i32 s61, s61, 1536")
    a("s_add_u32 s61, s61, 0x%x" % WS_KVT)
    a("v_lshrrev_b32 v0, 2, v2")
    for jj in range(4):
        a("v_cmp_ne_u32 s[%d:%d], %d, v0" % (66 + 2 * jj, 67 + 2 * jj, jj))
        a("v_cmp_eq_u32 s[%d:%d], %d, v3" % (74 + 2 * jj, 75 + 2 * jj, jj))
    a("v_lshlrev_b32 v6, 8, v3")
    a("v_lshl_add_u32 v6, v2, 3, v6")
    a("v_add_u32 v6, s54, v6")
    a("v_add_u32 v7, s54, v4")
    for r in list(range(8, 72, 2)) + list(range(DS, DS + 8, 2)) + list(range(T1, T1 + 32, 2)):
        a("v_pk_mov_b32 v[%d:%d], 0, 0" % (r, r + 1))
    for i in range(4):
        a("v_mov_b32 v%d, %s" % (EPSR + i, EPS))
    def pqreads(j):
        P = PQB[j & 1]
        a("s_mov_b64 exec, s[82:83]")
        for rt in range(NRT):
            a("ds_read_b64 v[%d:%d], v6 offset:%d" % (P + 4 * rt, P + 4 * rt + 1, rt * 5120 + j * 640))
        a("s_mov_b64 exec, s[84:85]")
        for rt in range(NRT):
            a("ds_read_b64 v[%d:%d], v6 offset:%d" % (P + 4 * rt + 2, P + 4 * rt + 3, rt * 5120 + j * 640 + 128))
        a("s_mov_b64 exec, -1")
    def fload(j):
        a("s_mov_b64 exec, s[82:83]")
        a("buffer_load_dwordx4 %s, v4, s[8:11], s61 offen sc1" % vr(F + 8 * (j & 3)))
        a("buffer_load_dwordx4 %s, v4, s[8:11], s61 offen offset:768 sc1" % vr(F + 8 * (j & 3) + 4))
        a("s_mov_b64 exec, -1")
        a("s_add_u32 s61, s61, 1536")
    a("s_lshl_b32 s62, s58, 12")
    a("s_lshl_b32 s63, s49, 7")
    a("s_add_u32 s62, s62, s63")
    a("s_add_u32 s62, s62, 0x%x" % WS_FLAG)
    a("v_mov_b32 v1, s62")
    a("s_mov_b32 s63, 0")
    a.label("L_s2_poll")
    a("buffer_load_dword v0, v1, s[8:11], 0 offen sc1")
    a("s_waitcnt vmcnt(0)")
    a("v_readfirstlane_b32 s62, v0")
    a("s_add_u32 s63, s63, 1")
    a("s_cmp_ge_u32 s62, 8")
    a("s_cbranch_scc1 L_s2_ready")
    a("s_cmp_ge_u32 s63, 100000")
    a("s_cbranch_scc1 L_s2_ready")
    a("s_sleep 8")
    a("s_branch L_s2_poll")
    a.label("L_s2_ready")
    stamp(a, 2)
    for j in range(4):
        fload(j)
    pqreads(0)
    for j in range(8):
        jj = j & 3
        f0, f1 = F + 8 * jj, F + 8 * jj + 4
        P = PQB[j & 1]
        a("s_waitcnt vmcnt(%d)" % [6, 6, 6, 6, 6, 4, 2, 0][j])
        for i in range(4):
            a("v_mov_b32_dpp v%d, v%d row_newbcast:%d row_mask:0xf bank_mask:0xf" % (Z + i, f1 + i, (4 * jj + 4) & 15))
        a("s_nop 0")
        for i in range(4):
            a("v_cndmask_b32 v%d, v%d, 0, s[%d:%d]" % (f1 + i, f1 + i, 66 + 2 * jj, 67 + 2 * jj))
        a("s_waitcnt lgkmcnt(0)")
        if j < 7:
            pqreads(j + 1)
        else:
            a("s_nop 0")
        for rt in range(NRT):
            a("v_mfma_f32_16x16x32_bf16 %s, %s, %s, %s" % (vr(RY + 8 * rt + 4), vr(Z), vr(P + 4 * rt), vr(EPSR)))
        for rt in range(NRT):
            a("v_mfma_f32_16x16x32_bf16 %s, %s, %s, 0" % (vr(RY + 8 * rt), vr(f0), vr(P + 4 * rt)))
        for rt in range(NRT):
            t1 = T1 + ((j >> 2) * NRT + rt) * 4
            a("v_mfma_f32_16x16x32_bf16 %s, %s, %s, %s" % (vr(t1), vr(f1), vr(P + 4 * rt), vr(t1)))
        for rt in range(NRT):
            a("v_rcp_f32 v%d, v%d" % (RY + 8 * rt + 4, RY + 8 * rt + 4))
        if j < 4:
            fload(j + 4)
        else:
            a("s_nop 0")
        for rt in range(NRT):
            a("v_mul_f32 v%d, v%d, v%d" % (RY + 8 * rt + 4, RY + 8 * rt + 4, G[rt]))
        for rt in range(NRT):
            t0 = RY + 8 * rt
            for i in (0, 2):
                a("v_pk_mul_f32 v[%d:%d], v[%d:%d], v[%d:%d] op_sel_hi:[1,0]" % (t0 + i, t0 + i + 1, t0 + i, t0 + i + 1, t0 + 4, t0 + 5))
        for rt in range(NRT):
            ds = DS + (j >> 2) * NRT + rt
            a("v_cndmask_b32 v%d, v%d, v%d, s[%d:%d]" % (ds, ds, RY + 8 * rt + 4, 74 + 2 * jj, 75 + 2 * jj))
        for rt in range(NRT):
            t0 = RY + 8 * rt
            oa = OA + 4 * rt + 2 * (j & 1)
            a("v_cvt_pk_bf16_f32 v%d, v%d, v%d" % (oa, t0, t0 + 1))
            a("v_cvt_pk_bf16_f32 v%d, v%d, v%d" % (oa + 1, t0 + 2, t0 + 3))
        if j & 1:
            a("s_waitcnt lgkmcnt(0)")
            for rt in range(NRT):
                a("ds_write_b128 v7, %s offset:%d" % (vr(OA + 4 * rt), rt * 5120 + (j >> 1) * 1024))
    for rt in range(NRT):
        for q in range(2):
            t1 = T1 + (q * NRT + rt) * 4
            ds = DS + q * NRT + rt
            for i in range(4):
                a("v_mul_f32 v%d, v%d, v%d" % (t1 + i, t1 + i, ds))
            oa = RY + 4 * rt + 2 * q
            a("v_cvt_pk_bf16_f32 v%d, v%d, v%d" % (oa, t1, t1 + 1))
            a("v_cvt_pk_bf16_f32 v%d, v%d, v%d" % (oa + 1, t1 + 2, t1 + 3))
        a("ds_write_b128 v7, %s offset:%d" % (vr(RY + 4 * rt), rt * 5120 + 4096))
    stamp(a, 3)
    stamp(a, 4)
    a("s_waitcnt lgkmcnt(0)")
    a("s_barrier")
    stamp_flush(a, 2, 8, 35)
    a.label("L_s2_end")
    a("s_endpgm")
    a.label("L_code_end")

def kd(name, vgpr, accum, sgpr=102):
    return """.amdhsa_kernel %s
  .amdhsa_next_free_vgpr %d
  .amdhsa_next_free_sgpr %d
  .amdhsa_accum_offset %d
  .amdhsa_group_segment_fixed_size 0
  .amdhsa_kernarg_size 96
  .amdhsa_user_sgpr_count 2
  .amdhsa_user_sgpr_kernarg_segment_ptr 1
  .amdhsa_system_sgpr_workgroup_id_x 1
.end_amdhsa_kernel
""" % (name, vgpr, sgpr, accum)

def main():
    a = Asm()
    hdr = open("cdna_kernels/%s.s.ref" % NAME).read().split("; Override launch")[0]
    out = hdr
    out += "; @launch kernel=s1_kernel grid=(256,1,1) block=(448,1,1) lds=%d\n" % (3 * S1_BUF + 16384)
    out += "; @launch kernel=s2_kernel grid=(256,1,1) block=(512,1,1) lds=81920\n"
    out += '.amdgcn_target "amdgcn-amd-amdhsa--gfx950"\n.text\n'
    stage1(a)
    stage2(a)
    out += a.text()
    out += '.section .rodata,"a"\n.p2align 6\n'
    out += kd("s1_kernel", 256, 256)
    out += ".p2align 6\n" + kd("s2_kernel", 256, 256)
    dst = sys.argv[1] if len(sys.argv) > 1 else "cdna_kernels/%s.s" % NAME
    open(dst, "w").write(out)

main()
```

```python
import sys, os

NAME = "gated_mix__linear_attn_block__dense_activation_squared_relu__prompt"

HS = int(os.environ.get("HS", "192"))
WS_H   = 0x1000000
WS_PQF = 0x600000
WS_P   = 0x900000
WS_KVT = 0xA00000
WS_G   = 0xA10000
WS_FLAG = 0xA20000
WS_W2F = 0xC00000
WS_WOF = 0xE00000
WS_SIZE = 0x1800000
STAMP = int(os.environ.get("STAMP", "0"))
WS_STAMP = 0xB00000

class Asm:
    def __init__(self):
        self.L = []
    def __call__(self, s):
        for ln in s.strip("\n").split("\n"):
            if ln.strip():
                self.L.append("  " + ln.strip())
    def label(self, l):
        self.L.append(l + ":")
    def raw(self, s):
        self.L.append(s)
    def text(self):
        return "\n".join(self.L) + "\n"

def vr(b, n=4):
    return "v[%d:%d]" % (b, b + n - 1)

def srd(a, d, lo, size):
    a("s_mov_b32 s%d, s%d" % (d, lo))
    a("s_and_b32 s%d, s%d, 0xffff" % (d + 1, lo + 1))
    a("s_mov_b32 s%d, 0x%x" % (d + 2, size))
    a("s_mov_b32 s%d, 0x00020000" % (d + 3))

def interleave(a, main, side, start=1, every=1):
    side = list(side)
    for i, m in enumerate(main):
        a(m)
        if i >= start - 1 and (i - (start - 1)) % every == 0 and side:
            a(side.pop(0))
    for s in side:
        a(s)

DBG = int(os.environ.get("DBG", "0"))
def dbg_start(a):
    if DBG:
        a("s_memrealtime s[96:97]")
def dbg_end1(a):
    if DBG:
        a("s_waitcnt vmcnt(0)")
        a("s_memrealtime s[98:99]")
        a("s_waitcnt lgkmcnt(0)")
        a("s_or_b32 s97, s2, s35")
        a("s_cmp_lg_u32 s97, 0")
        a("s_cbranch_scc1 L_dbg1_%d" % len(a.L))
        lab = "L_dbg1_%d" % (len(a.L) - 1)
        a("v_mov_b32 v2, s96")
        a("v_mov_b32 v3, s98")
        a("v_mov_b32 v4, 0x%x" % WS_STAMP)
        a("s_mov_b64 exec, 1")
        a("buffer_store_dwordx2 v[2:3], v4, s[20:23], 0 offen")
        a("s_waitcnt vmcnt(0)")
        a.label(lab)
def dbg_end2(a):
    if DBG:
        a("s_waitcnt vmcnt(0)")
        a("s_memrealtime s[98:99]")
        a("s_waitcnt lgkmcnt(0)")
        a("s_or_b32 s97, s2, s35")
        a("s_cmp_lg_u32 s97, 0")
        a("s_cbranch_scc1 L_dbg2")
        a("v_mov_b32 v4, 0x%x" % WS_STAMP)
        a("s_mov_b64 exec, 1")
        a("buffer_load_dwordx2 v[8:9], v4, s[8:11], 0 offen")
        a("v_mov_b32 v10, s96")
        a("v_mov_b32 v11, s98")
        a("v_mov_b32 v4, 16")
        a("s_waitcnt vmcnt(0)")
        a("buffer_store_dwordx4 v[8:11], v4, s[28:31], 0 offen")
        a("s_waitcnt vmcnt(0)")
        a.label("L_dbg2")
def stamp_start(a):
    dbg_start(a)
    if STAMP:
        a("s_memrealtime s[86:87]")
        a("s_waitcnt lgkmcnt(0)")
        a("s_mov_b32 s94, s86")
        stamp(a, 0)
def stamp(a, idx):
    if STAMP:
        a("s_memtime s[86:87]")
        a("s_waitcnt lgkmcnt(0)")
        a("s_mov_b32 s%d, s86" % (88 + idx))
def stamp_flush(a, kern, srdreg, wavereg):
    if STAMP:
        a("s_waitcnt vmcnt(0)")
        stamp(a, 5)
        a("s_memrealtime s[86:87]")
        a("s_waitcnt lgkmcnt(0)")
        a("s_mov_b32 s95, s86")
        a("s_lshl_b32 s86, s2, 3")
        a("s_add_u32 s86, s86, s%d" % wavereg)
        a("s_lshl_b32 s86, s86, 5")
        a("s_add_u32 s86, s86, 0x%x" % (WS_STAMP + kern * 0x10000))
        a("s_mov_b64 exec, 1")
        for i in range(8):
            a("v_mov_b32 v2, s%d" % (88 + i))
            a("v_mov_b32 v3, %d" % (4 * i))
            a("buffer_store_dword v2, v3, s[%d:%d], s86 offen" % (srdreg, srdreg + 3))
        a("s_waitcnt vmcnt(0)")

LOG2E = "0x3fb8aa3b"
EPS = "0x358637bd"

def phi4(a, src, tmp, sl, se):
    for i in (0, 2):
        a("v_pk_mul_f32 v[%d:%d], v[%d:%d], s[%d:%d]" % (tmp + i, tmp + i + 1, src + i, src + i + 1, sl, sl + 1))
    for i in range(4):
        a("v_min_f32 v%d, 0, v%d" % (tmp + i, tmp + i))
    for i in range(4):
        a("v_exp_f32 v%d, v%d" % (tmp + i, tmp + i))
    for i in range(4):
        a("v_max_f32 v%d, 0, v%d" % (src + i, src + i))
    for i in (0, 2):
        a("v_pk_add_f32 v[%d:%d], v[%d:%d], v[%d:%d]" % (src + i, src + i + 1, src + i, src + i + 1, tmp + i, tmp + i + 1))
    for i in (0, 2):
        a("v_pk_add_f32 v[%d:%d], v[%d:%d], s[%d:%d]" % (src + i, src + i + 1, src + i, src + i + 1, se, se + 1))

def phi16(a, src, tmp, sl, se):
    n = 16
    for i in range(0, n, 2):
        a("v_pk_mul_f32 v[%d:%d], v[%d:%d], s[%d:%d]" % (tmp + i, tmp + i + 1, src + i, src + i + 1, sl, sl + 1))
    for i in range(n):
        a("v_exp_f32_e64 v%d, v%d clamp" % (tmp + i, tmp + i))
        a("v_max_f32 v%d, s%d, v%d" % (src + i, se, src + i))
    for i in range(0, n, 2):
        a("v_pk_add_f32 v[%d:%d], v[%d:%d], v[%d:%d]" % (src + i, src + i + 1, src + i, src + i + 1, tmp + i, tmp + i + 1))

def swap23_v(a, d, s, t):
    a("v_and_b32 v%d, 3, v%d" % (d, s))
    a("v_and_b32 v%d, 4, v%d" % (t, s))
    a("v_lshlrev_b32 v%d, 1, v%d" % (t, t))
    a("v_or_b32 v%d, v%d, v%d" % (d, d, t))
    a("v_and_b32 v%d, 8, v%d" % (t, s))
    a("v_lshrrev_b32 v%d, 1, v%d" % (t, t))
    a("v_or_b32 v%d, v%d, v%d" % (d, d, t))

S1_BUF = 45056
def stage1(a):
    a.raw(".globl s1_kernel\n.p2align 8\n.type s1_kernel,@function")
    a.label("s1_kernel")
    a("""
    s_cmp_ge_u32 s2, 256
    s_cbranch_scc1 L_s1_end
    """)
    stamp_start(a)
    a("""
    s_load_dwordx4 s[36:39], s[0:1], 0
    s_load_dwordx4 s[40:43], s[0:1], 32
    s_load_dwordx2 s[44:45], s[0:1], 64
    s_load_dwordx2 s[46:47], s[0:1], 88
    s_load_dwordx2 s[66:67], s[0:1], 16
    s_load_dwordx2 s[68:69], s[0:1], 48
    s_load_dwordx2 s[70:71], s[0:1], 80
    s_and_b32 s48, s2, 7
    s_lshr_b32 s49, s2, 3
    s_and_b32 s50, s48, 1
    s_lshl_b32 s50, s50, 3
    s_and_b32 s51, s49, 7
    s_add_u32 s32, s50, s51          ; rb
    s_lshr_b32 s50, s48, 1
    s_lshl_b32 s50, s50, 2
    s_lshr_b32 s51, s49, 3
    s_add_u32 s65, s50, s51          ; cg
    s_and_b32 s34, s65, 1            ; type
    s_lshr_b32 s33, s65, 1           ; jj
    v_and_b32 v1, 63, v0
    v_lshrrev_b32 v2, 6, v0
    s_nop 0
    v_readfirstlane_b32 s35, v2      ; wave
    s_nop 3
    s_lshr_b32 s52, s35, 1           ; wr
    s_and_b32 s53, s35, 1            ; wc
    s_mov_b32 s57, 0
    s_mov_b32 s58, 0
    s_mov_b32 s59, 0
    s_waitcnt lgkmcnt(0)
    """)
    srd(a, 8, 36, 2621440)
    srd(a, 12, 38, 2457600)
    srd(a, 16, 40, 1966080)
    srd(a, 20, 46, WS_SIZE)
    srd(a, 24, 42, 3072)
    srd(a, 28, 44, 1280)
    srd(a, 4, 70, 256)
    a("s_cmp_lt_u32 s35, 4")
    a("s_cbranch_scc1 L_s1_compute")
    a("s_cmp_eq_u32 s35, 4")
    a("s_cbranch_scc1 L_s1_loader")
    a("s_cmp_eq_u32 s35, 6")
    a("s_cbranch_scc1 L_s1_aux")
    stage1_loader(a, 2)
    a.label("L_s1_loader")
    a("s_cmp_eq_u32 s34, 1")
    a("s_cbranch_scc1 L_s1_loaderB")
    stage1_loader(a, 0)
    a.label("L_s1_loaderB")
    stage1_loader(a, 1)
    a.label("L_s1_aux")
    stage1_aux(a)
    a.label("L_s1_compute")
    a("""
    s_mov_b32 s78, %s
    s_mov_b32 s79, %s
    s_mov_b32 s80, %s
    s_mov_b32 s81, %s
    """ % (LOG2E, LOG2E, EPS, EPS))
    a("""
    v_and_b32 v2, 15, v1             ; m
    v_lshrrev_b32 v3, 4, v1          ; g
    s_lshl_b32 s60, s52, 6
    v_add_u32 v4, s60, v2
    v_lshlrev_b32 v4, 7, v4
    v_lshrrev_b32 v5, 1, v2
    v_xor_b32 v5, v5, v3
    v_lshlrev_b32 v6, 4, v5
    v_add_u32 v105, v4, v6
    v_xor_b32 v5, 4, v5
    v_lshlrev_b32 v6, 4, v5
    v_add_u32 v106, v4, v6
    v_lshrrev_b32 v4, 2, v1
    v_and_b32 v4, 3, v4              ; r
    v_and_b32 v5, 3, v1
    v_lshlrev_b32 v5, 3, v5          ; c*8
    v_lshrrev_b32 v6, 1, v3
    v_lshlrev_b32 v6, 4, v6
    v_and_b32 v7, 1, v3              ; g&1
    v_lshlrev_b32 v2, 2, v7
    v_add3_u32 v6, v6, v2, v4        ; pil
    s_cmp_eq_u32 s34, 1
    s_cbranch_scc1 L_s1_typeB
    """)
    for typ in (0, 1):
        if typ == 1:
            a.label("L_s1_typeB")
        stage1_type(a, typ)
    a.label("L_s1_end")
    a("s_endpgm")

def stage1_transposer_old(a):
    a("""
    s_lshl_b32 s60, s2, 2
    s_add_u32 s60, s60, s35
    s_cmp_ge_u32 s60, 720
    s_cbranch_scc1 L_s1_tr_done
    s_lshl_b32 s61, s35, 12
    s_add_u32 s61, s61, %d                   ; scratch base
    v_lshrrev_b32 v2, 3, v1                  ; lr
    v_and_b32 v4, 7, v1
    v_lshrrev_b32 v5, 4, v1
    v_lshlrev_b32 v5, 1, v5
    v_xor_b32 v6, v4, v5
    v_lshlrev_b32 v6, 4, v6                  ; colpart
    v_and_b32 v3, 3, v2
    v_lshrrev_b32 v4, 2, v2                  ; lr>>2
    s_cmp_ge_u32 s60, 480
    s_cbranch_scc1 L_s1_tr_wo
    """ % (3 * S1_BUF))
    srd(a, 72, 68, 1966080)
    a("""
    s_mul_i32 s62, s60, 6554
    s_lshr_b32 s62, s62, 16                  ; ks = u/10
    s_mul_i32 s63, s62, 10
    s_sub_u32 s63, s60, s63                  ; cb
    s_mul_i32 s70, s62, %d
    s_lshl_b32 s71, s63, 7
    s_add_u32 s70, s70, s71                  ; src soffset
    s_mul_i32 s71, s62, 40
    s_lshl_b32 s63, s63, 2
    s_add_u32 s71, s71, s63
    s_lshl_b32 s71, s71, 10
    s_add_u32 s71, s71, 0x%x                 ; dst offset
    v_lshlrev_b32 v5, 3, v4
    v_add_u32 v5, v5, v3
    v_mul_u32_u24 v5, 1280, v5
    v_add_u32 v7, v5, v6
    """ % (32 * 1280, WS_W2F))
    for i in range(4):
        a("s_add_u32 m0, s61, %d" % (i * 1024))
        a("s_add_u32 s64, s70, %d" % ((16 * (i >> 1) + 4 * (i & 1)) * 1280))
        a("buffer_load_dwordx4 v7, s[72:75], s64 offen lds")
    a("s_branch L_s1_tr_go")
    a.label("L_s1_tr_wo")
    srd(a, 72, 66, 819200)
    a("""
    s_sub_u32 s60, s60, 480
    s_mul_i32 s62, s60, 6554
    s_lshr_b32 s62, s62, 16                  ; st = u/10 (0..23)
    s_mul_i32 s63, s62, 10
    s_sub_u32 s63, s60, s63                  ; cb
    s_mul_i32 s71, s62, 40
    s_lshl_b32 s64, s63, 2
    s_add_u32 s71, s71, s64
    s_lshl_b32 s71, s71, 10
    s_add_u32 s71, s71, 0x%x                 ; dst offset
    s_mul_i32 s64, s62, 21846
    s_lshr_b32 s64, s64, 16                  ; wg8 = st/3
    s_mul_i32 s70, s64, 3
    s_sub_u32 s62, s62, s70                  ; step = st%%3
    s_mul_i32 s70, s64, %d                   ; 80*wg8 rows
    s_lshl_b32 s63, s63, 7
    s_add_u32 s70, s70, s63
    s_cmp_eq_u32 s62, 2
    s_cbranch_scc1 L_s1_tr_wo2
    s_mul_i32 s62, s62, %d                   ; 40 rows per pair step
    s_add_u32 s70, s70, s62
    v_mul_u32_u24 v5, 1280, v2
    v_add_u32 v7, v5, v6
    """ % (WS_WOF, 80 * 1280, 40 * 1280))
    for i in range(4):
        row = 20 * (i & 1) + 8 * ((i >> 1) & 1)
        a("s_add_u32 m0, s61, %d" % (i * 1024))
        a("s_add_u32 s64, s70, %d" % (row * 1280))
        a("buffer_load_dwordx4 v7, s[72:75], s64 offen lds")
    a("s_branch L_s1_tr_go")
    a.label("L_s1_tr_wo2")
    a("""
    v_mul_u32_u24 v5, 20, v4
    v_add_u32 v5, v5, v3
    v_mul_u32_u24 v5, 1280, v5
    v_add_u32 v7, v5, v6
    """)
    for i in range(4):
        row = 20 * (2 * ((i >> 1) & 1)) + 16
        a("s_add_u32 m0, s61, %d" % (i * 1024))
        a("s_add_u32 s64, s70, %d" % (row * 1280))
        a("buffer_load_dwordx4 v7, s[72:75], s64 offen lds")
    a.label("L_s1_tr_go")
    a("""
    v_lshrrev_b32 v3, 4, v1
    v_lshrrev_b32 v4, 2, v1
    v_and_b32 v4, 3, v4
    v_and_b32 v5, 3, v1
    v_lshlrev_b32 v5, 3, v5
    v_lshrrev_b32 v6, 1, v3
    v_lshlrev_b32 v6, 4, v6
    v_and_b32 v7, 1, v3
    v_lshlrev_b32 v7, 2, v7
    v_add3_u32 v6, v6, v7, v4
    v_lshrrev_b32 v7, 1, v6
    v_and_b32 v7, 3, v7
    v_lshlrev_b32 v6, 7, v6
    v_add3_u32 v6, v6, v5, s61
    v_lshlrev_b32 v2, 4, v1
    s_waitcnt vmcnt(0)
    """)
    for t in range(4):
        a("v_xor_b32 v4, %d, v7" % t)
        a("v_lshl_add_u32 v4, v4, 5, v6")
        a("ds_read_b64_tr_b16 v[%d:%d], v4" % (8 + 4 * t, 9 + 4 * t))
        a("ds_read_b64_tr_b16 v[%d:%d], v4 offset:1024" % (10 + 4 * t, 11 + 4 * t))
    a("s_waitcnt lgkmcnt(0)")
    for t in range(4):
        a("buffer_store_dwordx4 %s, v2, s[20:23], s71 offen offset:%d" % (vr(8 + 4 * t), t * 1024))
    a("s_nop 1")
    a.label("L_s1_tr_done")


def stage1_aux(a):
    SCR = 3 * S1_BUF
    a("v_lshlrev_b32 v2, 4, v1")
    a("s_getpc_b64 s[60:61]")
    a.label("L_s1_pc")
    a("s_sub_u32 s60, s60, L_s1_pc-s1_kernel")
    a("s_subb_u32 s61, s61, 0")
    a("s_lshl_b32 s62, s49, 10")
    a("v_add_u32 v3, s62, v2")
    a("global_load_dwordx4 v[100:103], v3, s[60:61]")
    a("s_add_u32 s62, s62, 32768")
    a("s_cmp_ge_u32 s62, L_code_end-s1_kernel-1024")
    a("s_cbranch_scc1 L_s1_nopf2")
    a("v_add_u32 v3, s62, v2")
    a("global_load_dwordx4 v[100:103], v3, s[60:61]")
    a.label("L_s1_nopf2")
    a("s_mov_b32 m0, %d" % (SCR + 12288))
    a("s_nop 0")
    a("buffer_load_dwordx4 v2, s[28:31], 0 offen lds")
    a("buffer_load_dwordx4 v2, s[28:31], 0 offen offset:1024 lds")
    a("s_cmp_ge_u32 s2, 48")
    a("s_cbranch_scc1 L_s1_noz")
    a("v_pk_mov_b32 v[8:9], -1, -1")
    a("v_pk_mov_b32 v[10:11], -1, -1")
    a("s_lshl_b32 s60, s2, 10")
    a("s_add_u32 s60, s60, 0x%x" % WS_KVT)
    a("buffer_store_dwordx4 v[8:11], v2, s[20:23], s60 offen")
    a.label("L_s1_noz")
    a("s_waitcnt vmcnt(0)")
    a("s_barrier")
    srd(a, 72, 68, 1966080)
    srd(a, 76, 66, 819200)
    a("""
    v_lshrrev_b32 v2, 3, v1                  ; lr
    v_and_b32 v4, 7, v1
    v_lshrrev_b32 v5, 4, v1
    v_lshlrev_b32 v5, 1, v5
    v_xor_b32 v6, v4, v5
    v_lshlrev_b32 v6, 4, v6                  ; colpart
    v_and_b32 v3, 3, v2
    v_lshrrev_b32 v4, 2, v2                  ; lr>>2
    v_lshlrev_b32 v5, 3, v4
    v_add_u32 v5, v5, v3
    v_mul_u32_u24 v5, 1280, v5
    v_add_u32 v7, v5, v6                     ; voff w2
    v_mul_u32_u24 v5, 1280, v2
    v_add_u32 v8, v5, v6
    v_mul_u32_u24 v5, 20, v4
    v_add_u32 v5, v5, v3
    v_mul_u32_u24 v5, 1280, v5
    v_add_u32 v9, v5, v6
    """)
    for n in range(3):
        D = 82 + n
        a("s_mul_i32 s60, s2, 3")
        a("s_add_u32 s60, s60, %d" % n)
        a("s_mov_b32 s%d, -1" % D)
        a("s_cmp_ge_u32 s60, 680")
        a("s_cbranch_scc1 L_s1_tr_done%d" % n)
        a("s_cmp_ge_u32 s60, 480")
        a("s_cbranch_scc1 L_s1_tr_wo%d" % n)
        a("""
        s_mul_i32 s62, s60, 6554
        s_lshr_b32 s62, s62, 16
        s_mul_i32 s63, s62, 10
        s_sub_u32 s63, s60, s63
        s_mul_i32 s70, s62, %d
        s_lshl_b32 s71, s63, 7
        s_add_u32 s70, s70, s71
        s_mul_i32 s71, s62, 40
        s_lshl_b32 s63, s63, 2
        s_add_u32 s71, s71, s63
        s_lshl_b32 s71, s71, 10
        s_add_u32 s%d, s71, 0x%x
        """ % (32 * 1280, D, WS_W2F))
        for i in range(4):
            a("s_mov_b32 m0, %d" % (SCR + n * 4096 + i * 1024))
            a("s_add_u32 s64, s70, %d" % ((16 * (i >> 1) + 4 * (i & 1)) * 1280))
            a("buffer_load_dwordx4 v7, s[72:75], s64 offen lds")
        a("s_branch L_s1_tr_done%d" % n)
        a.label("L_s1_tr_wo%d" % n)
        a("""
        s_sub_u32 s60, s60, 480
        s_mul_i32 s62, s60, 6554
        s_lshr_b32 s62, s62, 16
        s_mul_i32 s63, s62, 10
        s_sub_u32 s63, s60, s63
        s_mul_i32 s71, s62, 40
        s_lshl_b32 s64, s63, 2
        s_add_u32 s71, s71, s64
        s_lshl_b32 s71, s71, 10
        s_add_u32 s%d, s71, 0x%x
        s_mul_i32 s64, s62, 13108
        s_lshr_b32 s64, s64, 16
        s_mul_i32 s70, s64, 5
        s_sub_u32 s62, s62, s70
        s_mul_i32 s70, s64, %d
        s_lshl_b32 s63, s63, 7
        s_add_u32 s70, s70, s63
        s_cmp_eq_u32 s62, 4
        s_cbranch_scc1 L_s1_tr_wl%d
        s_mul_i32 s62, s62, %d
        s_add_u32 s70, s70, s62
        """ % (D, WS_WOF, 160 * 1280, n, 40 * 1280))
        for i in range(4):
            row = 20 * (i & 1) + 8 * ((i >> 1) & 1)
            a("s_mov_b32 m0, %d" % (SCR + n * 4096 + i * 1024))
            a("s_add_u32 s64, s70, %d" % (row * 1280))
            a("buffer_load_dwordx4 v8, s[76:79], s64 offen lds")
        a("s_branch L_s1_tr_done%d" % n)
        a.label("L_s1_tr_wl%d" % n)
        for i in range(4):
            row = 20 * (4 * (i & 1) + 2 * ((i >> 1) & 1)) + 16
            a("s_mov_b32 m0, %d" % (SCR + n * 4096 + i * 1024))
            a("s_add_u32 s64, s70, %d" % (row * 1280))
            a("buffer_load_dwordx4 v9, s[76:79], s64 offen lds")
        a.label("L_s1_tr_done%d" % n)
    a("s_barrier")
    a("s_barrier")
    a("s_barrier")
    a("s_waitcnt vmcnt(0)")
    a("""
    v_lshrrev_b32 v3, 4, v1
    v_lshrrev_b32 v4, 2, v1
    v_and_b32 v4, 3, v4
    v_and_b32 v5, 3, v1
    v_lshlrev_b32 v5, 3, v5
    v_lshrrev_b32 v6, 1, v3
    v_lshlrev_b32 v6, 4, v6
    v_and_b32 v7, 1, v3
    v_lshlrev_b32 v7, 2, v7
    v_add3_u32 v6, v6, v7, v4
    v_lshrrev_b32 v7, 1, v6
    v_and_b32 v7, 3, v7
    v_lshlrev_b32 v6, 7, v6
    v_add_u32 v6, v6, v5
    v_add_u32 v6, %d, v6
    v_lshlrev_b32 v2, 4, v1
    """ % SCR)
    for t in range(4):
        a("v_xor_b32 v4, %d, v7" % t)
        a("v_lshl_add_u32 v%d, v4, 5, v6" % (10 + t))
    for n in range(3):
        for t in range(4):
            b = 104 + 16 * n + 4 * t
            a("ds_read_b64_tr_b16 v[%d:%d], v%d offset:%d" % (b, b + 1, 10 + t, n * 4096))
            a("ds_read_b64_tr_b16 v[%d:%d], v%d offset:%d" % (b + 2, b + 3, 10 + t, n * 4096 + 1024))
    a("s_waitcnt lgkmcnt(0)")
    for n in range(3):
        a("s_cmp_eq_u32 s%d, -1" % (82 + n))
        a("s_cbranch_scc1 L_s1_tr_skip%d" % n)
        for t in range(4):
            a("buffer_store_dwordx4 %s, v2, s[20:23], s%d offen offset:%d" % (vr(104 + 16 * n + 4 * t), 82 + n, t * 1024))
        a.label("L_s1_tr_skip%d" % n)
    for i in range(7):
        a("s_barrier")
    a("s_endpgm")


def stage1_lastarriver(a, T):
    a("""
    s_waitcnt vmcnt(0)
    s_barrier
    s_cmp_lg_u32 s35, 0
    s_cbranch_scc1 L_s1_la_wait_%s
    v_mov_b32 v4, 1
    s_lshl_b32 s63, s33, 2
    v_mov_b32 v5, s63
    s_mov_b64 s[72:73], exec
    s_mov_b64 exec, 1
    buffer_atomic_add v4, v5, s[4:7], 0 offen sc0 sc1
    s_waitcnt vmcnt(0)
    v_mov_b32 v5, 0x%x
    ds_write_b32 v5, v4
    s_waitcnt lgkmcnt(0)
    s_mov_b64 exec, s[72:73]
    """ % (T, 3 * S1_BUF + 12288))
    a.label("L_s1_la_wait_%s" % T)
    a("""
    s_barrier
    v_mov_b32 v5, 0x%x
    ds_read_b32 v4, v5
    s_waitcnt lgkmcnt(0)
    v_readfirstlane_b32 s63, v4
    s_nop 3
    s_cmp_lg_u32 s63, 15
    s_cbranch_scc1 L_s1_la_done_%s
    ; ---- reduce head h = 4jj + w : lane t<63: e=t/3, g'=t%%3
    v_mul_u32_u24 v4, 171, v1
    v_lshrrev_b32 v4, 9, v4                  ; e
    v_mul_u32_u24 v5, 3, v4
    v_sub_u32 v5, v1, v5                     ; g'
    v_mul_u32_u24 v6, 80, v4
    v_lshl_add_u32 v6, v5, 5, v6
    v_add_u32 v7, 16, v6
    v_mov_b32 v8, 0x7000000
    v_cmp_eq_u32 vcc, 2, v5
    s_lshl_b32 s64, s33, 2
    s_add_u32 s64, s64, s35                  ; head
    s_mul_i32 s66, s64, 1680
    s_add_u32 s66, s66, 0x%x
    v_cndmask_b32 v7, v7, v8, vcc
    v_cmp_gt_u32 vcc, 63, v1
    s_and_saveexec_b64 s[72:73], vcc
    """ % (3 * S1_BUF + 12288, T, WS_P))
    for rb in range(16):
        a("buffer_load_dwordx4 %s, v6, s[20:23], s66 offen sc1" % vr(16 + 8 * rb))
        a("buffer_load_dwordx4 %s, v7, s[20:23], s66 offen sc1" % vr(20 + 8 * rb))
        if rb < 15:
            a("s_add_u32 s66, s66, %d" % (32 * 1680))
    a("""
    s_lshl_b32 s67, s35, 2
    s_sub_u32 s68, s67, 16
    v_add_u32 v8, s68, v4                    ; 4w + e - 16
    v_and_b32 v8, 15, v8
    v_add_u32 v8, 48, v8                     ; +768/16
    v_cmp_gt_u32 vcc, 16, v4
    s_mul_i32 s66, s64, 1536
    s_add_u32 s66, s66, 0x%x
    v_cndmask_b32 v8, v8, v4, vcc
    v_lshlrev_b32 v8, 4, v8
    v_lshl_add_u32 v8, v5, 8, v8
    """ % WS_KVT)
    for rb in range(1, 16):
        a("s_waitcnt vmcnt(%d)" % (30 - 2 * rb))
        for i in range(0, 8, 2):
            a("v_pk_add_f32 v[%d:%d], v[%d:%d], v[%d:%d]" % (16 + i, 17 + i, 16 + i, 17 + i, 16 + 8 * rb + i, 17 + 8 * rb + i))
    for i in range(4):
        a("v_cvt_pk_bf16_f32 v%d, v%d, v%d" % (12 + i, 16 + 2 * i, 17 + 2 * i))
    a("buffer_store_dwordx4 v[12:15], v8, s[20:23], s66 offen")
    a("s_mov_b64 exec, s[72:73]")
    a.label("L_s1_la_done_%s" % T)


def stage1_gate(a):
    a("""
    s_lshl_b32 s60, s32, 7
    s_lshl_b32 s61, s33, 4
    s_add_u32 s60, s60, s61
    s_lshl_b32 s61, s35, 2
    s_add_u32 s60, s60, s61
    v_lshrrev_b32 v2, 5, v1
    v_add_u32 v2, s60, v2
    v_lshlrev_b32 v100, 2, v2
    v_add_u32 v100, 0x%x, v100
    v_mul_u32_u24 v2, 1280, v2
    v_and_b32 v3, 31, v1
    v_cmp_eq_u32 s[74:75], 0, v3
    v_mul_u32_u24 v3, 40, v3
    v_add_u32 v2, v2, v3
    buffer_load_dwordx4 v[20:23], v3, s[28:31], 0 offen
    buffer_load_dwordx4 v[24:27], v3, s[28:31], 0 offen offset:16
    buffer_load_dwordx2 v[28:29], v3, s[28:31], 0 offen offset:32
    """ % WS_G)
    for p in range(2):
        b = 32 + 12 * p
        a("buffer_load_dwordx4 %s, v2, s[8:11], 0 offen offset:%d" % (vr(b), p * 2560))
        a("buffer_load_dwordx4 %s, v2, s[8:11], 0 offen offset:%d" % (vr(b + 4), p * 2560 + 16))
        a("buffer_load_dwordx2 v[%d:%d], v2, s[8:11], 0 offen offset:%d" % (b + 8, b + 9, p * 2560 + 32))

def stage1_gate2(a, nst):
    a("s_waitcnt vmcnt(%d)" % nst)
    for i in range(10):
        a("v_lshlrev_b32 v%d, 16, v%d" % (60 + 2 * i, 20 + i))
        a("v_and_b32 v%d, 0xffff0000, v%d" % (61 + 2 * i, 20 + i))
    a("v_pk_mov_b32 v[96:97], 0, 0")
    for i in range(10):
        for p in range(2):
            b = 32 + 12 * p; t = 8 + 4 * p
            a("v_lshlrev_b32 v%d, 16, v%d" % (t, b + i))
            a("v_and_b32 v%d, 0xffff0000, v%d" % (t + 1, b + i))
        for p in range(2):
            t = 8 + 4 * p
            a("v_pk_mul_f32 v[%d:%d], v[%d:%d], v[%d:%d]" % (t, t + 1, t, t + 1, 60 + 2 * i, 61 + 2 * i))
        for p in range(2):
            t = 8 + 4 * p
            a("v_cvt_pk_bf16_f32 v%d, v%d, v%d" % (t, t, t + 1))
        for p in range(2):
            t = 8 + 4 * p
            a("v_lshlrev_b32 v%d, 16, v%d" % (t + 1, t))
            a("v_and_b32 v%d, 0xffff0000, v%d" % (t, t))
        for p in range(2):
            t = 8 + 4 * p
            a("v_add_f32 v%d, v%d, v%d" % (96 + p, 96 + p, t + 1))
        for p in range(2):
            t = 8 + 4 * p
            a("v_add_f32 v%d, v%d, v%d" % (96 + p, 96 + p, t))
    for mode in ("quad_perm:[1,0,3,2]", "quad_perm:[2,3,0,1]", "row_half_mirror", "row_mirror"):
        a("s_nop 1")
        for p in range(2):
            a("v_add_f32_dpp v%d, v%d, v%d %s row_mask:0xf bank_mask:0xf" % (96 + p, 96 + p, 96 + p, mode))
    for p in range(2):
        a("ds_swizzle_b32 v%d, v%d offset:0x401F" % (98 + p, 96 + p))
    a("s_waitcnt lgkmcnt(0)")
    for ins in ("v_add_f32 v{r}, v{r}, v{q}", "v_cvt_pk_bf16_f32 v{r}, v{r}, v{r}", "v_lshlrev_b32 v{r}, 16, v{r}", "v_mul_f32 v{r}, 0xbfb8aa3b, v{r}",
                "v_exp_f32 v{r}, v{r}", "NOP", "v_add_f32 v{r}, 1.0, v{r}", "v_rcp_f32 v{r}, v{r}", "NOP", "v_cvt_pk_bf16_f32 v{r}, v{r}, v{r}", "v_lshlrev_b32 v{r}, 16, v{r}"):
        if ins == "NOP":
            a("s_nop 0"); continue
        for p in range(2):
            a(ins.format(r=96 + p, q=98 + p))
    a("s_and_saveexec_b64 s[72:73], s[74:75]")
    for p in range(2):
        a("buffer_store_dword v%d, v100, s[20:23], 0 offen offset:%d" % (96 + p, p * 8))
    a("s_mov_b64 exec, s[72:73]")

def s1_warm(a):
    if int(os.environ.get("WARM", "1")):
        a("v_lshlrev_b32 v2, 4, v1")
        for (srdn, S, n) in ((8, 10240, 3), (12, 9600, 3), (16, 7680, 2)):
            a("s_mul_i32 s60, s2, %d" % S)
            a("s_mul_i32 s61, s35, %d" % (S // 4))
            a("s_add_u32 s60, s60, s61")
            for i in range(n):
                a("buffer_load_dwordx4 v[240:243], v2, s[%d:%d], s60 offen offset:%d" % (srdn, srdn + 3, i * 1024))

def s1_dma(typ):
    L = []
    if typ == 2:
        for i in range(16):
            L.append("s_add_u32 m0, s57, %d" % (i * 1024))
            L.append("s_add_u32 s64, s54, %d" % (i * 10240))
            L.append("buffer_load_dwordx4 v%d, s[8:11], s64 offen lds" % (96 + (i & 1)))
        L.append("s_add_u32 s54, s54, 128")
    elif typ == 0:
        for i in range(28):
            L.append("s_add_u32 m0, s57, %d" % (16384 + i * 1024))
            L.append("s_add_u32 s64, s55, %d" % ((i // 7) * 16 * 3840))
            L.append("buffer_load_dwordx4 v%d, s[12:15], s64 offen lds" % (98 + i % 7))
        L.append("s_add_u32 s55, s55, %d" % (64 * 3840))
    else:
        for i in range(24):
            L.append("s_add_u32 m0, s57, %d" % (16384 + i * 1024))
            L.append("s_add_u32 s64, s56, %d" % ((i // 6) * 16 * 3072))
            L.append("buffer_load_dwordx4 v%d, s[16:19], s64 offen lds" % (98 + i % 6))
        for i in range(2):
            L.append("s_add_u32 m0, s57, %d" % (16384 + 24576 + i * 1024))
            L.append("s_add_u32 s64, s55, %d" % (i * 32 * 3840))
            L.append("buffer_load_dwordx4 v104, s[12:15], s64 offen lds")
        L.append("s_add_u32 s55, s55, %d" % (64 * 3840))
        L.append("s_add_u32 s56, s56, %d" % (64 * 3072))
    L.append("s_add_u32 s57, s57, %d" % S1_BUF)
    L.append("s_cmp_eq_u32 s57, %d" % (3 * S1_BUF))
    L.append("s_cselect_b32 s57, 0, s57")
    return L

def stage1_loader(a, typ):
    T = "ABX"[typ]
    N = [28, 26, 16][typ]
    if typ == 2:
        a("""
        v_lshrrev_b32 v2, 3, v1
        v_mul_u32_u24 v2, 1280, v2
        v_and_b32 v3, 7, v1
        v_lshrrev_b32 v4, 4, v1
        v_xor_b32 v5, v3, v4
        v_lshlrev_b32 v6, 4, v5
        v_add_u32 v96, v2, v6
        v_xor_b32 v5, 4, v5
        v_lshlrev_b32 v6, 4, v5
        v_add_u32 v97, v2, v6
        s_lshl_b32 s60, s32, 7
        s_mul_i32 s54, s60, 1280
        """)
    else:
        a("s_mov_b32 s55, 0")
        a("s_mov_b32 s56, 0")
    if typ == 0:
        C = 28
        a("s_mov_b32 s67, %d" % ((2**32 + C - 1) // C))
        a("s_mul_i32 s68, s33, 160")
        a("s_add_u32 s69, s68, 1280")
        a("s_add_u32 s70, s68, %d" % (2560 - 160))
        a("s_lshl_b32 s71, s33, 7")
        a("s_sub_u32 s71, s71, 320")
        a("v_mov_b32 v8, s69")
        a("v_mov_b32 v9, s70")
        a("v_mov_b32 v10, s71")
        for i in range(7):
            a("v_add_u32 v2, %d, v1" % (64 * i))
            a("v_mul_hi_u32 v3, v2, s67")
            a("v_mul_u32_u24 v4, %d, v3" % C)
            a("v_sub_u32 v4, v2, v4")
            a("v_and_b32 v5, 4, v3")
            a("v_lshrrev_b32 v5, 1, v5")
            a("v_xor_b32 v4, v4, v5")
            a("v_cmp_gt_u32 vcc, 10, v4")
            a("v_cmp_gt_u32 s[72:73], 20, v4")
            swap23_v(a, 5, 3, 6)
            a("v_mul_u32_u24 v5, 3840, v5")
            a("v_cndmask_b32 v6, v9, v8, vcc")
            a("v_cndmask_b32 v6, v10, v6, s[72:73]")
            a("v_lshlrev_b32 v4, 4, v4")
            a("v_add3_u32 v%d, v5, v6, v4" % (98 + i))
    elif typ == 1:
        C = 24
        a("s_mov_b32 s67, %d" % ((2**32 + C - 1) // C))
        a("s_mul_i32 s68, s33, 384")
        for i in range(6):
            a("v_add_u32 v2, %d, v1" % (64 * i))
            a("v_mul_hi_u32 v3, v2, s67")
            a("v_mul_u32_u24 v4, %d, v3" % C)
            a("v_sub_u32 v4, v2, v4")
            a("v_and_b32 v5, 6, v3")
            a("v_xor_b32 v4, v4, v5")
            swap23_v(a, 5, 3, 6)
            a("v_mul_u32_u24 v5, 3072, v5")
            a("v_lshlrev_b32 v4, 4, v4")
            a("v_add3_u32 v%d, v5, s68, v4" % (98 + i))
        a("v_lshrrev_b32 v2, 1, v1")
        a("v_and_b32 v3, 15, v2")
        swap23_v(a, 5, 3, 6)
        a("v_and_b32 v3, 16, v2")
        a("v_add_u32 v5, v5, v3")
        a("v_mul_u32_u24 v5, 3840, v5")
        a("v_and_b32 v4, 1, v1")
        a("v_lshlrev_b32 v4, 4, v4")
        a("s_lshl_b32 s68, s33, 5")
        a("s_add_u32 s68, s68, 1024")
        a("v_add3_u32 v104, v5, s68, v4")
    stamp(a, 1)
    a.label("L_s1_ld_%s" % T)
    for s in s1_dma(typ):
        if int(os.environ.get("NODMA", "0")) and "buffer_load" in s: continue
        a(s)
    a("s_add_u32 s59, s59, 1")
    a("s_cmp_eq_u32 s59, 1")
    a("s_cbranch_scc1 L_s1_ld_%s" % T)
    if STAMP:
        a("s_cmp_lg_u32 s59, 2")
        a("s_cbranch_scc1 L_s1_ldst_%s" % T)
        stamp(a, 2)
        a("s_waitcnt vmcnt(%d)" % N)
        stamp(a, 3)
        a.label("L_s1_ldst_%s" % T)
    a("s_waitcnt vmcnt(%d)" % N)
    a("s_barrier")
    a("s_cmp_lt_u32 s59, 10")
    a("s_cbranch_scc1 L_s1_ld_%s" % T)
    a("s_waitcnt vmcnt(0)")
    a("s_barrier")
    a("s_barrier")
    stamp(a, 4)
    stamp_flush(a, 0, 20, 35)
    a("s_endpgm")

def stage1_type(a, typ):
    T = "AB"[typ]
    if typ == 0:
        a("""
        v_mul_u32_u24 v2, 448, v6
        v_add_u32 v2, v2, v5
        v_add_u32 v2, 16384, v2
        v_lshlrev_b32 v7, 5, v7
        v_add_u32 v107, v2, v7
        v_sub_u32 v108, v2, v7
        """)
        nb = 2
    else:
        a("""
        v_mul_u32_u24 v2, 384, v6
        v_add_u32 v2, v2, v5
        v_add_u32 v2, 16384, v2
        v_lshrrev_b32 v7, 1, v6
        v_and_b32 v7, 3, v7
        """)
        for j in range(4):
            a("v_xor_b32 v3, %d, v7" % j)
            a("v_subrev_u32 v3, %d, v3" % j)
            a("v_lshlrev_b32 v3, 5, v3")
            a("v_add_u32 v%d, v2, v3" % (107 + j))
        a("v_lshlrev_b32 v2, 5, v6")
        a("v_add_u32 v2, v2, v5")
        a("v_add_u32 v111, %d, v2" % (16384 + 24576))
        nb = 5
        a("s_mul_i32 s63, s33, 384")
        a("s_mul_i32 s64, s53, 192")
        a("s_add_u32 s63, s63, s64")
        a("v_lshrrev_b32 v3, 4, v1")
        a("v_lshlrev_b32 v4, 3, v3")
        for i in range(6):
            a("buffer_load_dwordx2 v[%d:%d], v4, s[24:27], s63 offen offset:%d" % (32 + 2 * i, 33 + 2 * i, 32 * i))
    a("s_cmp_eq_u32 s53, 1")
    a("s_cbranch_scc1 L_s1_%s1" % T)
    for wc in (0, 1):
        if wc == 1:
            a.label("L_s1_%s1" % T)
        stage1_wave(a, typ, wc, nb)

def s1_tiles(typ, wc):
    if typ == 0:
        return [("k", 0), ("k", 1), ("k", 2), ("v", 0), ("v", 1), ("q", 0), ("q", 1)] if wc == 0 else \
               [("k", 3), ("k", 4), ("v", 2), ("v", 3), ("v", 4), ("q", 2), ("q", 3)]
    else:
        return [("h", i) for i in range(6)] + [("q", 0)] if wc == 0 else [("h", i) for i in range(6, 12)] + [("g", 0)]

def s1_reads(typ, tiles, ks, aset, bset):
    L = []
    for ti, (kind, idx) in enumerate(tiles):
        if kind == "g":
            L.append("ds_read_b128 %s, v119 offset:%d" % (vr(bset + 4 * ti), 64 * ks))
            continue
        for hh in range(2):
            dst = bset + 4 * ti + 2 * hh
            if typ == 0:
                slot = {"k": 0, "v": 5, "q": 10}[kind] + idx
                base = 114 + (slot & 1)
                off = (32 * ks + 8 * hh) * 448 + slot * 32
            else:
                if kind == "q":
                    base = 118
                    off = (32 * ks + 8 * hh) * 32
                else:
                    base = 114 + (idx & 3)
                    off = (32 * ks + 8 * hh) * 384 + idx * 32
            L.append("ds_read_b64_tr_b16 v[%d:%d], v%d offset:%d" % (dst, dst + 1, base, off))
        if ti == 0:
            for rt in range(4):
                L.append("ds_read_b128 %s, v%d offset:%d" % (vr(aset + 4 * rt), 112 + ks, rt * 2048))
    return L

def s1_mfmas(tiles, aset, bset):
    L = []
    for ti, (kind, idx) in enumerate(tiles):
        for rt in range(4):
            acc = 128 + (ti * 4 + rt) * 4
            x = vr(aset + 4 * rt); w = vr(bset + 4 * ti)
            if kind in ("k", "v"):
                L.append("v_mfma_f32_16x16x32_bf16 %s, %s, %s, %s" % (vr(acc), x, w, vr(acc)))
            else:
                L.append("v_mfma_f32_16x16x32_bf16 %s, %s, %s, %s" % (vr(acc), w, x, vr(acc)))
    return L

def s1_setbase(nb):
    L = ["v_add_u32 v112, s58, v105", "v_add_u32 v113, s58, v106"]
    for j in range(nb):
        L.append("v_add_u32 v%d, s58, v%d" % (114 + j, 107 + j))
    return L

def stage1_wave(a, typ, wc, nb):
    T = "AB"[typ] + str(wc)
    tiles = s1_tiles(typ, wc)
    if typ == 1:
        a("s_waitcnt vmcnt(0)")
    for ti, (kind, idx) in enumerate(tiles):
        acc = 128 + (ti * 4) * 4
        if kind == "h":
            b = 32 + 2 * (idx % 6)
            a("v_lshlrev_b32 v%d, 16, v%d" % (acc, b))
            a("v_and_b32 v%d, 0xffff0000, v%d" % (acc + 1, b))
            a("v_lshlrev_b32 v%d, 16, v%d" % (acc + 2, b + 1))
            a("v_and_b32 v%d, 0xffff0000, v%d" % (acc + 3, b + 1))
            for rt in range(1, 4):
                for i in (0, 2):
                    a("v_pk_mov_b32 v[%d:%d], v[%d:%d], v[%d:%d] op_sel:[0,1]" % (acc + 4 * rt + i, acc + 4 * rt + i + 1, acc + i, acc + i + 1, acc + i, acc + i + 1))
        elif kind in ("k", "q"):
            for r in range(0, 16, 2):
                a("v_pk_mov_b32 v[%d:%d], s[80:81], s[80:81] op_sel:[0,1]" % (acc + r, acc + r + 1))
        else:
            for r in range(0, 16, 2):
                a("v_pk_mov_b32 v[%d:%d], 0, 0" % (acc + r, acc + r + 1))
    for s in s1_setbase(nb):
        a(s)
    GT = (typ == 1 and wc == 1)
    if GT:
        a("v_lshrrev_b32 v119, 4, v1")
        a("v_lshlrev_b32 v119, 4, v119")
        a("v_add_u32 v119, %d, v119" % (3 * S1_BUF + 12288))
    s1_warm(a)
    stamp(a, 1)
    a("s_barrier")
    for s in s1_reads(typ, tiles, 0, 64, 8):
        a(s)
    a("s_waitcnt lgkmcnt(0)")
    stamp(a, 2)
    a.label("L_s1_loop_%s" % T)
    NOLDS = int(os.environ.get("NOLDS", "0"))
    interleave(a, s1_mfmas(tiles, 64, 8), [] if NOLDS else s1_reads(typ, tiles, 1, 80, 36))
    a("s_add_u32 s58, s58, %d" % S1_BUF)
    a("s_cmp_eq_u32 s58, %d" % (3 * S1_BUF))
    a("s_cselect_b32 s58, 0, s58")
    a("s_waitcnt lgkmcnt(0)")
    a("s_barrier")
    m = s1_mfmas(tiles, 80, 36)
    interleave(a, m, s1_setbase(nb) + (["v_add_u32 v119, 128, v119"] if GT else []) + ([] if NOLDS else s1_reads(typ, tiles, 0, 64, 8)))
    a("s_add_u32 s59, s59, 1")
    a("s_cmp_lt_u32 s59, 10")
    a("s_waitcnt lgkmcnt(0)")
    a("s_cbranch_scc1 L_s1_loop_%s" % T)
    stamp(a, 3)
    a("v_and_b32 v2, 15, v1")
    a("v_lshrrev_b32 v3, 4, v1")
    a("s_lshl_b32 s60, s32, 7")
    a("s_lshl_b32 s63, s52, 6")
    a("s_add_u32 s60, s60, s63")
    if typ == 1:
        a("s_lshl_b32 s63, s52, 8")
        a("v_lshl_add_u32 v6, v2, 2, s63")
        if wc == 1:
            gacc = 128 + 6 * 16
            a("s_nop 4")
            for ins in ("v_cvt_pk_bf16_f32 v{r}, v{g}, v{g}", "v_lshlrev_b32 v{r}, 16, v{r}", "v_mul_f32 v{r}, 0xbfb8aa3b, v{r}", "v_exp_f32 v{r}, v{r}", "NOP",
                        "v_add_f32 v{r}, 1.0, v{r}", "v_rcp_f32 v{r}, v{r}", "NOP", "v_cvt_pk_bf16_f32 v{r}, v{r}, v{r}", "v_lshlrev_b32 v{r}, 16, v{r}",
                        "v_sub_f32 v{o}, 1.0, v{r}", "v_cvt_pk_bf16_f32 v{o}, v{o}, v{o}", "v_lshlrev_b32 v{o}, 16, v{o}"):
                if ins == "NOP":
                    a("s_nop 0"); continue
                for rt in range(4):
                    a(ins.format(r=21 + 2 * rt, o=20 + 2 * rt, g=gacc + 4 * rt))
            a("v_add_u32 v4, s60, v2")
            a("v_lshlrev_b32 v4, 2, v4")
            a("v_add_u32 v4, 0x%x, v4" % WS_G)
            a("v_cmp_eq_u32 vcc, 0, v3")
            a("s_and_saveexec_b64 s[72:73], vcc")
            for rt in range(4):
                a("ds_write_b32 v6, v%d offset:%d" % (20 + 2 * rt, rt * 64))
                a("buffer_store_dword v%d, v4, s[20:23], 0 offen offset:%d" % (21 + 2 * rt, rt * 64))
            a("s_mov_b64 exec, s[72:73]")
            a("s_waitcnt lgkmcnt(0)")
            a("s_barrier")
        else:
            a("s_barrier")
            for rt in range(4):
                a("ds_read_b32 v%d, v6 offset:%d" % (20 + 2 * rt, rt * 64))
            a("s_waitcnt lgkmcnt(0)")
    first_h = True; first_kv = True
    for ti, (kind, idx) in enumerate(tiles):
        if kind == "g":
            continue
        if kind == "h":
            if first_h:
                a("v_and_b32 v4, 1, v3")
                a("v_mul_u32_u24 v4, %d, v4" % HS)
                a("v_lshrrev_b32 v5, 1, v3")
                a("v_add_u32 v4, v4, v5")
                a("v_lshlrev_b32 v4, 8, v4")
                a("v_lshl_add_u32 v5, v2, 4, v4")
                a("s_lshr_b32 s63, s60, 4")
                a("s_mul_i32 s63, s63, %d" % HS)
                a("s_mul_i32 s64, s33, 24")
                a("s_add_u32 s63, s63, s64")
                a("s_add_u32 s63, s63, %d" % (12 * wc))
                a("s_lshl_b32 s63, s63, 8")
                a("s_add_u32 s63, s63, 0x%x" % WS_H)
                a("s_add_u32 s66, s63, %d" % (2 * HS * 256))
                first_h = False
            for p in range(2):
                accA = 128 + (ti * 4 + 2 * p) * 4
                accB = accA + 4
                for i in range(8):
                    a("v_max_f32 v%d, 0, v%d" % (accA + i, accA + i))
                for i in range(0, 8, 2):
                    a("v_pk_mul_f32 v[%d:%d], v[%d:%d], v[%d:%d]" % (accA + i, accA + i + 1, accA + i, accA + i + 1, accA + i, accA + i + 1))
                for i in range(0, 8, 2):
                    om = 20 + 2 * (2 * p + (i >> 2))
                    a("v_pk_mul_f32 v[%d:%d], v[%d:%d], v[%d:%d] op_sel_hi:[1,0]" % (accA + i, accA + i + 1, accA + i, accA + i + 1, om, om + 1))
                a("v_cvt_pk_bf16_f32 v%d, v%d, v%d" % (accA, accA, accA + 1))
                a("v_cvt_pk_bf16_f32 v%d, v%d, v%d" % (accA + 1, accA + 2, accA + 3))
                a("v_cvt_pk_bf16_f32 v%d, v%d, v%d" % (accA + 2, accB, accB + 1))
                a("v_cvt_pk_bf16_f32 v%d, v%d, v%d" % (accA + 3, accB + 2, accB + 3))
                a("s_nop 1")
                a("v_permlane16_swap_b32 v%d, v%d" % (accA, accA + 2))
                a("v_permlane16_swap_b32 v%d, v%d" % (accA + 1, accA + 3))
                a("buffer_store_dwordx4 %s, v5, s[20:23], s%d offen offset:%d" % (vr(accA), [63, 66][p], (idx % 6) * 512))
        elif kind == "q":
            if typ == 0:
                a("s_lshl_b32 s63, s33, 4")
                a("s_add_u32 s63, s63, %d" % (4 * idx))
            else:
                a("s_lshl_b32 s63, s33, 2")
                a("s_add_u32 s63, s63, 128")
            a("s_lshr_b32 s64, s60, 4")
            a("s_mul_i32 s64, s64, 160")
            a("s_add_u32 s63, s63, s64")
            a("s_lshl_b32 s63, s63, 7")
            a("s_add_u32 s63, s63, 0x%x" % WS_PQF)
            a("v_lshlrev_b32 v7, 3, v1")
            phi16(a, 128 + ti * 16, 96, 78, 80)
            for rt in range(4):
                acc = 128 + (ti * 4 + rt) * 4
                a("v_cvt_pk_bf16_f32 v%d, v%d, v%d" % (acc, acc, acc + 1))
                a("v_cvt_pk_bf16_f32 v%d, v%d, v%d" % (acc + 1, acc + 2, acc + 3))
                a("s_add_u32 s64, s63, %d" % (rt * 160 * 128))
                a("buffer_store_dwordx2 v[%d:%d], v7, s[20:23], s64 offen" % (acc, acc + 1))
        else:
            tc0 = 16 * idx + (80 if kind == "v" else 0)
            if first_kv:
                a("v_mul_u32_u24 v5, 272, v2")
                a("v_lshlrev_b32 v6, 3, v3")
                a("s_lshl_b32 s63, s52, 7")
                a("v_add3_u32 v5, v5, v6, s63")
                first_kv = False
            if kind == "k":
                phi16(a, 128 + ti * 16, 96, 78, 80)
            for rt in range(4):
                acc = 128 + (ti * 4 + rt) * 4
                a("v_cvt_pk_bf16_f32 v%d, v%d, v%d" % (acc, acc, acc + 1))
                a("v_cvt_pk_bf16_f32 v%d, v%d, v%d" % (acc + 1, acc + 2, acc + 3))
                a("ds_write_b64 v5, v[%d:%d] offset:%d" % (acc, acc + 1, tc0 * 272 + rt * 32))
            if ti == 4:
                a("s_waitcnt lgkmcnt(0)")
                a("s_barrier")
                a("s_mul_i32 s63, s35, %d" % (20 * 272))
                a("v_mul_u32_u24 v5, 272, v2")
                a("v_lshlrev_b32 v6, 4, v3")
                a("v_add3_u32 v5, v5, v6, s63")
                for ks in range(4):
                    b = 16 + 16 * ks
                    a("ds_read_b128 %s, v5 offset:%d" % (vr(b), ks * 64))
                    a("ds_read_b128 %s, v5 offset:%d" % (vr(b + 4), ks * 64 + 16 * 272))
                    a("ds_read_b128 %s, v5 offset:%d" % (vr(b + 8), ks * 64 + 80 * 272))
                    a("ds_read_b128 %s, v5 offset:%d" % (vr(b + 12), ks * 64 + 96 * 272))
                a("v_cmp_eq_u32 vcc, 4, v2")
                a("v_mov_b32 v6, 0x3f803f80")
                a("s_waitcnt lgkmcnt(0)")
                for ks in range(4):
                    b = 16 + 16 * ks
                    for i in range(4):
                        a("v_cndmask_b32 v%d, v%d, v6, vcc" % (b + 12 + i, b + 12 + i))
                a("s_nop 1")
                for ks in range(4):
                    b = 16 + 16 * ks
                    c = lambda r: ("0" if ks == 0 else vr(r))
                    a("v_mfma_f32_16x16x32_bf16 v[80:83], %s, %s, %s" % (vr(b), vr(b + 8), c(80)))
                    a("v_mfma_f32_16x16x32_bf16 v[84:87], %s, %s, %s" % (vr(b), vr(b + 12), c(84)))
                    a("v_mfma_f32_16x16x32_bf16 v[88:91], %s, %s, %s" % (vr(b + 4), vr(b + 8), c(88)))
                    a("v_mfma_f32_16x16x32_bf16 v[92:95], %s, %s, %s" % (vr(b + 4), vr(b + 12), c(92)))
                a("s_lshl_b32 s63, s32, 5")
                a("s_lshl_b32 s64, s33, 2")
                a("s_add_u32 s63, s63, s64")
                a("s_add_u32 s63, s63, s35")
                a("s_mul_i32 s63, s63, 1680")
                a("s_add_u32 s63, s63, 0x%x" % WS_P)
                a("v_mul_u32_u24 v5, 80, v2")
                a("v_lshlrev_b32 v6, 4, v3")
                a("v_add_u32 v5, v5, v6")
                a("v_cmp_eq_u32 s[74:75], 0, v3")
                a("v_cmp_gt_u32 s[76:77], 5, v2")
                a("s_nop 7")
                a("buffer_store_dwordx4 v[80:83], v5, s[20:23], s63 offen")
                a("s_and_saveexec_b64 s[72:73], s[74:75]")
                a("buffer_store_dwordx4 v[88:91], v5, s[20:23], s63 offen offset:64")
                a("s_mov_b64 exec, s[76:77]")
                a("buffer_store_dwordx4 v[84:87], v5, s[20:23], s63 offen offset:1280")
                a("s_and_b64 exec, exec, s[74:75]")
                a("buffer_store_dwordx4 v[92:95], v5, s[20:23], s63 offen offset:1344")
                a("s_mov_b64 exec, s[72:73]")

    stamp(a, 4)
    stamp_flush(a, 0, 20, 35)
    dbg_end1(a)
    a("s_endpgm")

def stage2(a):
    NRT, NT = 4, 5
    a.raw(".globl s2_kernel\n.p2align 8\n.type s2_kernel,@function")
    a.label("s2_kernel")
    a("""
    s_cmp_ge_u32 s2, 256
    s_cbranch_scc1 L_s2_end
    """)
    stamp_start(a)
    a("""
    s_load_dwordx2 s[42:43], s[0:1], 56      ; b2
    s_load_dwordx4 s[44:47], s[0:1], 72
    s_load_dwordx2 s[38:39], s[0:1], 88      ; ws
    s_and_b32 s48, s2, 7
    s_lshr_b32 s49, s2, 3
    s_lshr_b32 s50, s48, 1
    s_lshl_b32 s50, s50, 3
    s_and_b32 s51, s49, 7
    s_add_u32 s50, s50, s51                  ; rb2 (0..31)
    s_and_b32 s52, s48, 1
    s_lshl_b32 s52, s52, 2
    s_lshr_b32 s53, s49, 3
    s_add_u32 s33, s52, s53                  ; cb (0..7)
    s_lshl_b32 s32, s50, 6                   ; row0
    s_lshl_b32 s34, s50, 2                   ; rt0
    v_and_b32 v1, 63, v0
    v_lshrrev_b32 v2, 6, v0
    v_lshlrev_b32 v4, 4, v1                  ; lane*16
    v_readfirstlane_b32 s35, v2
    v_and_b32 v2, 15, v1
    v_lshrrev_b32 v3, 4, v1
    s_waitcnt lgkmcnt(0)
    """)
    srd(a, 8, 38, WS_SIZE)
    srd(a, 20, 42, 1280)
    srd(a, 24, 44, 2621440)
    srd(a, 28, 46, 256)
    a("""
    s_cmp_ge_u32 s35, 4
    s_cbranch_scc1 L_s2_awave
    """)
    vm = []
    def V(ins, tag):
        vm.append(tag); return ins
    def waitvm(tag):
        idx = max(i for i, t in enumerate(vm) if t == tag)
        n = len(vm) - 1 - idx
        assert n <= 63, n
        return "s_waitcnt vmcnt(%d)" % n
    a("""
    s_mul_i32 s55, s34, """ + str(HS) + """
    s_mul_i32 s60, s35, 48
    s_add_u32 s55, s55, s60
    s_lshl_b32 s55, s55, 8                   ; A soffset
    s_add_u32 s55, s55, """ + hex(WS_H) + """
    s_mul_i32 s56, s35, 480
    s_mul_i32 s60, s33, 5
    s_add_u32 s56, s56, s60
    s_lshl_b32 s56, s56, 10
    s_add_u32 s56, s56, 0x%x                 ; B soffset
    s_mul_i32 s57, s35, 200
    s_add_u32 s57, s57, s60
    s_lshl_b32 s57, s57, 10
    s_add_u32 s57, s57, 0x%x                 ; WOF soffset
    v_add_u32 v5, 4096, v4
    ; rotate the K order among workgroups that share operands (L2 locality only)
    s_mul_i32 s59, s53, 3
    s_add_u32 s59, s59, s51
    s_lshr_b32 s60, s51, 1
    s_add_u32 s59, s59, s60                  ; 0..19
    s_cmp_ge_u32 s59, 12
    s_cselect_b32 s60, 12, 0
    s_mov_b32 s59, 0                         ; start step (rotation disabled)
    s_lshl_b32 s60, s59, 10
    s_add_u32 s55, s55, s60
    s_mul_i32 s60, s59, 40960
    s_add_u32 s56, s56, s60
    s_mov_b32 s66, %d
    s_mov_b32 s67, 1024
    s_mov_b32 s68, %d
    s_mov_b32 s69, 40960
    """ % (WS_W2F, WS_WOF, (1024 - 12288) & 0xffffffff, (40960 - 12 * 40960) & 0xffffffff))
    VA = 232
    for rt in range(NRT):
        a("v_add_u32 v%d, %d, v4" % (VA + rt, rt * HS * 256))
    ACC = 152
    def SET(st):
        b = 8 + 36 * (st % 4); return b, b + 16
    def bload(dst, t, sreg, tag):
        if t < 4:
            return ("buffer_load_dwordx4 %s, v4, s[8:11], s%d offen offset:%d" % (vr(dst), sreg, t * 1024), tag)
        return ("buffer_load_dwordx4 %s, v5, s[8:11], s%d offen" % (vr(dst), sreg), tag)
    def loads(st):
        A, B = SET(st); tag = "L%d" % st
        L = [bload(B, 0, 56, tag)]
        for rt in range(NRT):
            L.append(("buffer_load_dwordx4 %s, v%d, s[8:11], s55 offen" % (vr(A + 4 * rt), VA + rt), tag))
        for t in range(1, NT):
            L.append(bload(B + 4 * t, t, 56, tag))
        L.append(("s_add_u32 s59, s59, 1", None))
        L.append(("s_cmp_eq_u32 s59, 12", None))
        L.append(("s_cselect_b32 s64, s66, s67", None))
        L.append(("s_cselect_b32 s65, s68, s69", None))
        L.append(("s_add_u32 s55, s55, s64", None))
        L.append(("s_add_u32 s56, s56, s65", None))
        return L
    def wl(step):
        L = [bload(8 + 20 * step + 4 * t, t, 57, "W%d" % step) for t in range(NT)]
        L.append(("s_add_u32 s57, s57, %d" % (40 * 1024), None))
        return L
    def emit(items):
        for ins, tag in items:
            a(V(ins, tag) if tag else ins)
    def inter(main, items, every=2, start=0):
        items = list(items)
        for i, m in enumerate(main):
            a(m)
            if i >= start and (i - start) % every == 0 and items:
                ins, tag = items.pop(0); a(V(ins, tag) if tag else ins)
        emit(items)
    def mfmas(aset, bset):
        return ["v_mfma_f32_16x16x32_bf16 %s, %s, %s, %s" % (vr(ACC + (t * NRT + rt) * 4), vr(bset + 4 * t), vr(aset + 4 * rt), vr(ACC + (t * NRT + rt) * 4))
                for t in range(NT) for rt in range(NRT)]
    a("s_cmp_ge_u32 s2, 32")
    a("s_cbranch_scc1 L_s2_bgo")
    a("s_barrier")
    a.label("L_s2_bgo")
    emit(loads(0)); emit(loads(1))
    a("s_lshl_b32 s60, s35, 4")
    a("s_add_u32 s60, s60, s32")
    a("v_add_u32 v6, s60, v2")
    a("v_lshlrev_b32 v7, 2, v6")
    a("v_add_u32 v7, 0x%x, v7" % WS_G)
    a(V("buffer_load_dword v236, v7, s[8:11], 0 offen", "G"))
    a("s_mul_i32 s58, s33, 160")
    a("v_lshlrev_b32 v7, 3, v3")
    for t in range(NT):
        a(V("buffer_load_dwordx2 v[%d:%d], v7, s[20:23], s58 offen offset:%d" % (238 + 2 * t, 239 + 2 * t, t * 32), "G"))
    stamp(a, 1)
    for r in range(0, 80, 2):
        a("v_pk_mov_b32 v[%d:%d], 0, 0" % (ACC + r, ACC + r + 1))
    stamp(a, 2)
    a("s_mul_i32 s60, s35, 20480")
    a("v_add_u32 v7, s60, v4")
    SEQ = ["b"] * 5 + ["a", "a"] + ["b"] * 4 + ["a", "a", "a"] + ["b"] * 3
    def sloads(n):
        if n >= len(SEQ): return []
        if SEQ[n] == "b":
            return loads(n)
        A, B = SET(n)
        L = [bload(B + 4 * t, t, 57, "L%d" % n) for t in range(NT)]
        L.append(("s_add_u32 s57, s57, %d" % (40 * 1024), None))
        return L
    astep = 0
    for n, kind in enumerate(SEQ):
        A, B = SET(n)
        if kind == "a":
            if astep in (0, 2):
                a("s_barrier")
            for rt in range(NRT):
                a("ds_read_b128 %s, v7 offset:%d" % (vr(A + 4 * rt), rt * 5120 + astep * 1024))
            astep += 1
        side = (sloads(2) + sloads(3)) if n == 0 else sloads(n + 3)
        a(waitvm("L%d" % n))
        emit(side)
        if kind == "a":
            a("s_waitcnt lgkmcnt(0)")
        for x in mfmas(A, B): a(x)
    stamp(a, 3)
    stamp(a, 4)
    a("v_sub_f32 v236, 1.0, v236")
    a("v_cvt_pk_bf16_f32 v236, v236, v236")
    a("v_lshlrev_b32 v236, 16, v236")
    a("s_barrier")
    for w in range(4):
        a("s_cmp_lg_u32 s35, %d" % w)
        a("s_cbranch_scc1 L_s2_fw%d" % w)
        for rt in range(NRT):
            if rt == w: continue
            si = w if w < rt else w - 1
            for t in range(NT):
                a("ds_write_b128 v4, %s offset:%d" % (vr(ACC + (t * NRT + rt) * 4), (rt * 3 + si) * 5120 + t * 1024))
        for t in range(NT):
            src = ACC + (t * NRT + w) * 4
            a("v_lshlrev_b32 v8, 16, v%d" % (238 + 2 * t))
            a("v_and_b32 v9, 0xffff0000, v%d" % (238 + 2 * t))
            a("v_lshlrev_b32 v10, 16, v%d" % (239 + 2 * t))
            a("v_and_b32 v11, 0xffff0000, v%d" % (239 + 2 * t))
            for i in (0, 2):
                a("v_pk_fma_f32 v[%d:%d], v[%d:%d], v[236:237], v[%d:%d] op_sel_hi:[1,0,1]" % (16 + 4 * t + i, 17 + 4 * t + i, 8 + i, 9 + i, src + i, src + i + 1))
        a.label("L_s2_fw%d" % w)
    a("s_mul_i32 s61, s35, %d" % (3 * 5120))
    a("v_add_u32 v7, s61, v4")
    a("s_waitcnt lgkmcnt(0)")
    a("s_barrier")
    for si in range(3):
        for t in range(NT):
            a("ds_read_b128 %s, v7 offset:%d" % (vr(40 + (si * NT + t) * 4), si * 5120 + t * 1024))
    a("v_mul_u32_u24 v6, 1280, v6")
    a("v_and_b32 v8, 1, v3")
    a("v_lshl_add_u32 v8, v8, 5, v6")
    a("v_lshrrev_b32 v9, 1, v3")
    a("v_lshl_add_u32 v8, v9, 4, v8")
    a("v_lshl_add_u32 v9, v3, 3, v6")
    for si in range(3):
        a("s_waitcnt lgkmcnt(%d)" % (10 - 5 * si))
        for t in range(NT):
            o = 16 + 4 * t; q = 40 + (si * NT + t) * 4
            for i in (0, 2):
                a("v_pk_add_f32 v[%d:%d], v[%d:%d], v[%d:%d]" % (o + i, o + i + 1, o + i, o + i + 1, q + i, q + i + 1))
    for p in range(2):
        A_, B_ = 16 + 8 * p, 20 + 8 * p
        a("v_cvt_pk_bf16_f32 v%d, v%d, v%d" % (A_, A_, A_ + 1))
        a("v_cvt_pk_bf16_f32 v%d, v%d, v%d" % (A_ + 1, A_ + 2, A_ + 3))
        a("v_cvt_pk_bf16_f32 v%d, v%d, v%d" % (A_ + 2, B_, B_ + 1))
        a("v_cvt_pk_bf16_f32 v%d, v%d, v%d" % (A_ + 3, B_ + 2, B_ + 3))
    a("v_cvt_pk_bf16_f32 v32, v32, v33")
    a("v_cvt_pk_bf16_f32 v33, v34, v35")
    for p in range(2):
        A_ = 16 + 8 * p
        a("v_permlane16_swap_b32 v%d, v%d" % (A_, A_ + 2))
        a("v_permlane16_swap_b32 v%d, v%d" % (A_ + 1, A_ + 3))
        a("buffer_store_dwordx4 %s, v8, s[24:27], s58 offen offset:%d" % (vr(A_), p * 64))
    a("buffer_store_dwordx2 v[32:33], v9, s[24:27], s58 offen offset:128")
    dbg_end2(a)
    stamp_flush(a, 2, 8, 35)
    a("s_endpgm")
    a.label("L_s2_awave")
    a("s_setprio 2")
    F, PQB, Z, OA, RY, T1 = 8, [40, 56], 72, 96, 112, 144
    G = [76, 77, 78, 79]
    DS = 80
    EPSR = 88
    a("""
    s_sub_u32 s58, s35, 4                    ; aw
    s_mul_i32 s54, s58, 20480
    s_mul_i32 s60, s34, 160
    s_mul_i32 s61, s58, 40
    s_add_u32 s60, s60, s61
    s_lshl_b32 s60, s60, 7
    s_add_u32 s60, s60, 0x%x
    v_add_u32 v5, s32, v2
    v_lshlrev_b32 v5, 2, v5
    v_add_u32 v5, 0x%x, v5
    ; reducer duty: wave 4 of workgroups 0..31 reduces head = id
    s_cmp_ge_u32 s2, 32
    s_cbranch_scc1 L_s2_nored
    s_cmp_eq_u32 s35, 4
    s_cbranch_scc1 L_s2_dored
    s_barrier
    s_branch L_s2_nored
L_s2_dored:
    s_setprio 3
    v_mul_u32_u24 v8, 171, v1
    v_lshrrev_b32 v8, 9, v8                  ; e
    v_mul_u32_u24 v9, 3, v8
    v_sub_u32 v9, v1, v9                     ; g'
    v_mul_u32_u24 v6, 80, v8
    v_lshl_add_u32 v6, v9, 5, v6
    v_add_u32 v7, 16, v6
    v_mov_b32 v10, 0x7000000
    v_cmp_eq_u32 vcc, 2, v9
    s_mul_i32 s66, s2, 1680
    s_add_u32 s66, s66, 0x%x
    s_nop 0
    v_cndmask_b32 v7, v7, v10, vcc
    v_cmp_gt_u32 vcc, 63, v1
    s_and_saveexec_b64 s[72:73], vcc
    """ % (WS_PQF, WS_G, WS_P))
    for rb in range(16):
        a("buffer_load_dwordx4 %s, v6, s[8:11], s66 offen" % vr(16 + 8 * rb))
        a("buffer_load_dwordx4 %s, v7, s[8:11], s66 offen" % vr(20 + 8 * rb))
        if rb < 15:
            a("s_add_u32 s66, s66, %d" % (32 * 1680))
    a("""
    s_and_b32 s67, s2, 3
    s_lshl_b32 s67, s67, 2
    s_sub_u32 s68, s67, 16
    v_add_u32 v10, s68, v8
    v_and_b32 v10, 15, v10
    v_add_u32 v10, 48, v10
    v_cmp_gt_u32 vcc, 16, v8
    s_mul_i32 s66, s2, 1536
    s_add_u32 s66, s66, 0x%x
    v_cndmask_b32 v10, v10, v8, vcc
    v_lshlrev_b32 v10, 4, v10
    v_lshl_add_u32 v10, v9, 8, v10
    """ % WS_KVT)
    for rb in range(1, 16):
        a("s_waitcnt vmcnt(%d)" % (30 - 2 * rb))
        for i in range(0, 8, 2):
            a("v_pk_add_f32 v[%d:%d], v[%d:%d], v[%d:%d]" % (16 + i, 17 + i, 16 + i, 17 + i, 16 + 8 * rb + i, 17 + 8 * rb + i))
    for i in range(4):
        a("v_cvt_pk_bf16_f32 v%d, v%d, v%d" % (12 + i, 16 + 2 * i, 17 + 2 * i))
    a("""
    buffer_store_dwordx4 v[12:15], v10, s[8:11], s66 offen sc1
    s_barrier
    s_mov_b64 exec, -1
    s_setprio 2
    """)
    a.label("L_s2_nored")
    for rt in range(NRT):
        a("buffer_load_dword v%d, v5, s[8:11], 0 offen offset:%d" % (G[rt], rt * 64))
    for i in range(5):
        for rt in range(NRT):
            a("s_add_u32 m0, s54, %d" % (rt * 5120 + i * 1024))
            a("s_add_u32 s64, s60, %d" % (rt * 160 * 128 + i * 1024))
            a("buffer_load_dwordx4 v4, s[8:11], s64 offen lds")
    stamp(a, 1)
    a("v_cmp_gt_u32 s[82:83], 48, v1")
    a("v_cmp_gt_u32 s[84:85], 32, v1")
    a("s_lshl_b32 s61, s58, 3")
    a("s_mul_i32 s61, s61, 1536")
    a("s_add_u32 s61, s61, 0x%x" % WS_KVT)
    a("v_lshrrev_b32 v0, 2, v2")
    for jj in range(4):
        a("v_cmp_ne_u32 s[%d:%d], %d, v0" % (66 + 2 * jj, 67 + 2 * jj, jj))
        a("v_cmp_eq_u32 s[%d:%d], %d, v3" % (74 + 2 * jj, 75 + 2 * jj, jj))
    a("v_lshlrev_b32 v6, 8, v3")
    a("v_lshl_add_u32 v6, v2, 3, v6")
    a("v_add_u32 v6, s54, v6")
    a("v_add_u32 v7, s54, v4")
    for r in list(range(8, 72, 2)) + list(range(DS, DS + 8, 2)) + list(range(T1, T1 + 32, 2)):
        a("v_pk_mov_b32 v[%d:%d], 0, 0" % (r, r + 1))
    for i in range(4):
        a("v_mov_b32 v%d, %s" % (EPSR + i, EPS))
    def pqreads(j):
        P = PQB[j & 1]
        a("s_mov_b64 exec, s[82:83]")
        for rt in range(NRT):
            a("ds_read_b64 v[%d:%d], v6 offset:%d" % (P + 4 * rt, P + 4 * rt + 1, rt * 5120 + j * 640))
        a("s_mov_b64 exec, s[84:85]")
        for rt in range(NRT):
            a("ds_read_b64 v[%d:%d], v6 offset:%d" % (P + 4 * rt + 2, P + 4 * rt + 3, rt * 5120 + j * 640 + 128))
        a("s_mov_b64 exec, -1")
    def fload(j):
        a("s_mov_b64 exec, s[82:83]")
        a("buffer_load_dwordx4 %s, v4, s[8:11], s61 offen sc1" % vr(F + 8 * (j & 3)))
        a("buffer_load_dwordx4 %s, v4, s[8:11], s61 offen offset:768 sc1" % vr(F + 8 * (j & 3) + 4))
        a("s_mov_b64 exec, -1")
        a("s_add_u32 s61, s61, 1536")
    def fgroup(gp):
        FB = FBANK[gp]
        a("s_mov_b32 s63, 0")
        a.label("L_s2_fpoll%d" % gp)
        a("s_mov_b64 exec, s[82:83]")
        for j in range(4):
            a("s_add_u32 s62, s61, %d" % ((4 * gp + j) * 1536))
            a("buffer_load_dwordx4 %s, v4, s[8:11], s62 offen sc1" % vr(FB + 8 * j))
            a("buffer_load_dwordx4 %s, v4, s[8:11], s62 offen offset:768 sc1" % vr(FB + 8 * j + 4))
        a("s_waitcnt vmcnt(0)")
        a("s_mov_b64 s[64:65], 0")
        for j in range(4):
            a("v_cmp_eq_u32 vcc, -1, v%d" % (FB + 8 * j))
            a("s_or_b64 s[64:65], s[64:65], vcc")
            a("v_cmp_eq_u32 vcc, -1, v%d" % (FB + 8 * j + 4))
            a("s_and_b64 vcc, vcc, s[%d:%d]" % (40 + 2 * j, 41 + 2 * j))
            a("s_or_b64 s[64:65], s[64:65], vcc")
        a("s_mov_b64 exec, -1")
        a("s_add_u32 s63, s63, 1")
        a("s_cmp_eq_u64 s[64:65], 0")
        a("s_cbranch_scc1 L_s2_fok%d" % gp)
        a("s_cmp_ge_u32 s63, 100000")
        a("s_cbranch_scc1 L_s2_fok%d" % gp)
        a("s_sleep 6")
        a("s_branch L_s2_fpoll%d" % gp)
        a.label("L_s2_fok%d" % gp)
    FBANK = [8, 176]
    for r in range(176, 208, 2):
        a("v_pk_mov_b32 v[%d:%d], 0, 0" % (r, r + 1))
    for jj in range(4):
        a("v_cmp_eq_u32 vcc, %d, v2" % ((4 * jj + 4) & 15))
        a("s_orn2_b64 s[%d:%d], vcc, s[%d:%d]" % (40 + 2 * jj, 41 + 2 * jj, 66 + 2 * jj, 67 + 2 * jj))
    fgroup(0)
    stamp(a, 2)
    pqreads(0)
    for j in range(8):
        jj = j & 3
        f0, f1 = FBANK[j >> 2] + 8 * jj, FBANK[j >> 2] + 8 * jj + 4
        P = PQB[j & 1]
        if j == 4:
            fgroup(1)
        for i in range(4):
            a("v_mov_b32_dpp v%d, v%d row_newbcast:%d row_mask:0xf bank_mask:0xf" % (Z + i, f1 + i, (4 * jj + 4) & 15))
        a("s_nop 0")
        for i in range(4):
            a("v_cndmask_b32 v%d, v%d, 0, s[%d:%d]" % (f1 + i, f1 + i, 66 + 2 * jj, 67 + 2 * jj))
        a("s_waitcnt lgkmcnt(0)")
        if j < 7:
            pqreads(j + 1)
        else:
            a("s_nop 0")
        for rt in range(NRT):
            a("v_mfma_f32_16x16x32_bf16 %s, %s, %s, %s" % (vr(RY + 8 * rt + 4), vr(Z), vr(P + 4 * rt), vr(EPSR)))
        for rt in range(NRT):
            a("v_mfma_f32_16x16x32_bf16 %s, %s, %s, 0" % (vr(RY + 8 * rt), vr(f0), vr(P + 4 * rt)))
        for rt in range(NRT):
            t1 = T1 + ((j >> 2) * NRT + rt) * 4
            a("v_mfma_f32_16x16x32_bf16 %s, %s, %s, %s" % (vr(t1), vr(f1), vr(P + 4 * rt), vr(t1)))
        for rt in range(NRT):
            a("v_rcp_f32 v%d, v%d" % (RY + 8 * rt + 4, RY + 8 * rt + 4))
        a("s_nop 0")
        for rt in range(NRT):
            a("v_mul_f32 v%d, v%d, v%d" % (RY + 8 * rt + 4, RY + 8 * rt + 4, G[rt]))
        for rt in range(NRT):
            t0 = RY + 8 * rt
            for i in (0, 2):
                a("v_pk_mul_f32 v[%d:%d], v[%d:%d], v[%d:%d] op_sel_hi:[1,0]" % (t0 + i, t0 + i + 1, t0 + i, t0 + i + 1, t0 + 4, t0 + 5))
        for rt in range(NRT):
            ds = DS + (j >> 2) * NRT + rt
            a("v_cndmask_b32 v%d, v%d, v%d, s[%d:%d]" % (ds, ds, RY + 8 * rt + 4, 74 + 2 * jj, 75 + 2 * jj))
        for rt in range(NRT):
            t0 = RY + 8 * rt
            oa = OA + 4 * rt + 2 * (j & 1)
            a("v_cvt_pk_bf16_f32 v%d, v%d, v%d" % (oa, t0, t0 + 1))
            a("v_cvt_pk_bf16_f32 v%d, v%d, v%d" % (oa + 1, t0 + 2, t0 + 3))
        if j & 1:
            a("s_waitcnt lgkmcnt(0)")
            for rt in range(NRT):
                a("ds_write_b128 v7, %s offset:%d" % (vr(OA + 4 * rt), rt * 5120 + (j >> 1) * 1024))
            if j == 3:
                a("s_waitcnt lgkmcnt(0)")
                a("s_barrier")
    for rt in range(NRT):
        for q in range(2):
            t1 = T1 + (q * NRT + rt) * 4
            ds = DS + q * NRT + rt
            for i in range(4):
                a("v_mul_f32 v%d, v%d, v%d" % (t1 + i, t1 + i, ds))
            oa = RY + 4 * rt + 2 * q
            a("v_cvt_pk_bf16_f32 v%d, v%d, v%d" % (oa, t1, t1 + 1))
            a("v_cvt_pk_bf16_f32 v%d, v%d, v%d" % (oa + 1, t1 + 2, t1 + 3))
        a("ds_write_b128 v7, %s offset:%d" % (vr(RY + 4 * rt), rt * 5120 + 4096))
    stamp(a, 3)
    stamp(a, 4)
    a("s_waitcnt lgkmcnt(0)")
    a("s_barrier")
    stamp_flush(a, 2, 8, 35)
    a.label("L_s2_end")
    a("s_endpgm")
    a.label("L_code_end")

def kd(name, vgpr, accum, sgpr=102):
    return """.amdhsa_kernel %s
  .amdhsa_next_free_vgpr %d
  .amdhsa_next_free_sgpr %d
  .amdhsa_accum_offset %d
  .amdhsa_group_segment_fixed_size 0
  .amdhsa_kernarg_size 96
  .amdhsa_user_sgpr_count 2
  .amdhsa_user_sgpr_kernarg_segment_ptr 1
  .amdhsa_system_sgpr_workgroup_id_x 1
.end_amdhsa_kernel
""" % (name, vgpr, sgpr, accum)

def main():
    a = Asm()
    hdr = open("cdna_kernels/%s.s.ref" % NAME).read().split("; Override launch")[0]
    out = hdr
    out += "; @launch kernel=s1_kernel grid=(256,1,1) block=(448,1,1) lds=%d\n" % (3 * S1_BUF + 16384)
    out += "; @launch kernel=s2_kernel grid=(256,1,1) block=(512,1,1) lds=81920\n"
    out += '.amdgcn_target "amdgcn-amd-amdhsa--gfx950"\n.text\n'
    stage1(a)
    stage2(a)
    out += a.text()
    out += '.section .rodata,"a"\n.p2align 6\n'
    out += kd("s1_kernel", 256, 256)
    out += ".p2align 6\n" + kd("s2_kernel", 256, 256)
    dst = sys.argv[1] if len(sys.argv) > 1 else "cdna_kernels/%s.s" % NAME
    open(dst, "w").write(out)

main()
```

```python
import sys, os

NAME = "gated_mix__linear_attn_block__dense_activation_squared_relu__prompt"

HS = int(os.environ.get("HS", "192"))
WS_H   = 0x1000000
WS_PQF = 0x600000
WS_P   = 0x900000
WS_KVT = 0xA00000
WS_G   = 0xA10000
WS_FLAG = 0xA20000
WS_W2F = 0xC00000
WS_WOF = 0xE00000
WS_SIZE = 0x1800000
STAMP = int(os.environ.get("STAMP", "0"))
EARLYW = int(os.environ.get("EARLYW", "1"))
WS_STAMP = 0xB00000

class Asm:
    def __init__(self):
        self.L = []
    def __call__(self, s):
        for ln in s.strip("\n").split("\n"):
            if ln.strip():
                self.L.append("  " + ln.strip())
    def label(self, l):
        self.L.append(l + ":")
    def raw(self, s):
        self.L.append(s)
    def text(self):
        return "\n".join(self.L) + "\n"

def vr(b, n=4):
    return "v[%d:%d]" % (b, b + n - 1)

def srd(a, d, lo, size):
    a("s_mov_b32 s%d, s%d" % (d, lo))
    a("s_and_b32 s%d, s%d, 0xffff" % (d + 1, lo + 1))
    a("s_mov_b32 s%d, 0x%x" % (d + 2, size))
    a("s_mov_b32 s%d, 0x00020000" % (d + 3))

def interleave(a, main, side, start=1, every=1):
    side = list(side)
    for i, m in enumerate(main):
        a(m)
        if i >= start - 1 and (i - (start - 1)) % every == 0 and side:
            a(side.pop(0))
    for s in side:
        a(s)

DBG = int(os.environ.get("DBG", "0"))
def dbg_start(a):
    if DBG:
        a("s_memrealtime s[96:97]")
def dbg_end1(a):
    if DBG:
        a("s_waitcnt vmcnt(0)")
        a("s_memrealtime s[98:99]")
        a("s_waitcnt lgkmcnt(0)")
        a("s_or_b32 s97, s2, s35")
        a("s_cmp_lg_u32 s97, 0")
        a("s_cbranch_scc1 L_dbg1_%d" % len(a.L))
        lab = "L_dbg1_%d" % (len(a.L) - 1)
        a("v_mov_b32 v2, s96")
        a("v_mov_b32 v3, s98")
        a("v_mov_b32 v4, 0x%x" % WS_STAMP)
        a("s_mov_b64 exec, 1")
        a("buffer_store_dwordx2 v[2:3], v4, s[20:23], 0 offen")
        a("s_waitcnt vmcnt(0)")
        a.label(lab)
def dbg_end2(a):
    if DBG:
        a("s_waitcnt vmcnt(0)")
        a("s_memrealtime s[98:99]")
        a("s_waitcnt lgkmcnt(0)")
        a("s_or_b32 s97, s2, s35")
        a("s_cmp_lg_u32 s97, 0")
        a("s_cbranch_scc1 L_dbg2")
        a("v_mov_b32 v4, 0x%x" % WS_STAMP)
        a("s_mov_b64 exec, 1")
        a("buffer_load_dwordx2 v[8:9], v4, s[8:11], 0 offen")
        a("v_mov_b32 v10, s96")
        a("v_mov_b32 v11, s98")
        a("v_mov_b32 v4, 16")
        a("s_waitcnt vmcnt(0)")
        a("buffer_store_dwordx4 v[8:11], v4, s[28:31], 0 offen")
        a("s_waitcnt vmcnt(0)")
        a.label("L_dbg2")
def stamp_start(a):
    dbg_start(a)
    if STAMP:
        a("s_memrealtime s[86:87]")
        a("s_waitcnt lgkmcnt(0)")
        a("s_mov_b32 s94, s86")
        stamp(a, 0)
def stamp(a, idx):
    if STAMP:
        a("s_memtime s[86:87]")
        a("s_waitcnt lgkmcnt(0)")
        a("s_mov_b32 s%d, s86" % (88 + idx))
def stamp_flush(a, kern, srdreg, wavereg):
    if STAMP:
        a("s_waitcnt vmcnt(0)")
        stamp(a, 5)
        a("s_memrealtime s[86:87]")
        a("s_waitcnt lgkmcnt(0)")
        a("s_mov_b32 s95, s86")
        a("s_lshl_b32 s86, s2, 3")
        a("s_add_u32 s86, s86, s%d" % wavereg)
        a("s_lshl_b32 s86, s86, 5")
        a("s_add_u32 s86, s86, 0x%x" % (WS_STAMP + kern * 0x10000))
        a("s_mov_b64 exec, 1")
        for i in range(8):
            a("v_mov_b32 v2, s%d" % (88 + i))
            a("v_mov_b32 v3, %d" % (4 * i))
            a("buffer_store_dword v2, v3, s[%d:%d], s86 offen" % (srdreg, srdreg + 3))
        a("s_waitcnt vmcnt(0)")

LOG2E = "0x3fb8aa3b"
EPS = "0x358637bd"

def phi4(a, src, tmp, sl, se):
    for i in (0, 2):
        a("v_pk_mul_f32 v[%d:%d], v[%d:%d], s[%d:%d]" % (tmp + i, tmp + i + 1, src + i, src + i + 1, sl, sl + 1))
    for i in range(4):
        a("v_min_f32 v%d, 0, v%d" % (tmp + i, tmp + i))
    for i in range(4):
        a("v_exp_f32 v%d, v%d" % (tmp + i, tmp + i))
    for i in range(4):
        a("v_max_f32 v%d, 0, v%d" % (src + i, src + i))
    for i in (0, 2):
        a("v_pk_add_f32 v[%d:%d], v[%d:%d], v[%d:%d]" % (src + i, src + i + 1, src + i, src + i + 1, tmp + i, tmp + i + 1))
    for i in (0, 2):
        a("v_pk_add_f32 v[%d:%d], v[%d:%d], s[%d:%d]" % (src + i, src + i + 1, src + i, src + i + 1, se, se + 1))

def phi16(a, src, tmp, sl, se):
    n = 16
    for i in range(0, n, 2):
        a("v_pk_mul_f32 v[%d:%d], v[%d:%d], s[%d:%d]" % (tmp + i, tmp + i + 1, src + i, src + i + 1, sl, sl + 1))
    for i in range(n):
        a("v_exp_f32_e64 v%d, v%d clamp" % (tmp + i, tmp + i))
        a("v_max_f32 v%d, s%d, v%d" % (src + i, se, src + i))
    for i in range(0, n, 2):
        a("v_pk_add_f32 v[%d:%d], v[%d:%d], v[%d:%d]" % (src + i, src + i + 1, src + i, src + i + 1, tmp + i, tmp + i + 1))

def swap23_v(a, d, s, t):
    a("v_and_b32 v%d, 3, v%d" % (d, s))
    a("v_and_b32 v%d, 4, v%d" % (t, s))
    a("v_lshlrev_b32 v%d, 1, v%d" % (t, t))
    a("v_or_b32 v%d, v%d, v%d" % (d, d, t))
    a("v_and_b32 v%d, 8, v%d" % (t, s))
    a("v_lshrrev_b32 v%d, 1, v%d" % (t, t))
    a("v_or_b32 v%d, v%d, v%d" % (d, d, t))

S1_BUF = 45056
def stage1(a):
    a.raw(".globl s1_kernel\n.p2align 8\n.type s1_kernel,@function")
    a.label("s1_kernel")
    a("""
    s_cmp_ge_u32 s2, 256
    s_cbranch_scc1 L_s1_end
    s_getpc_b64 s[60:61]
    v_lshlrev_b32 v2, 4, v0
    global_load_dwordx4 v[244:247], v2, s[60:61]
    """)
    stamp_start(a)
    a("""
    s_load_dwordx4 s[36:39], s[0:1], 0
    s_load_dwordx4 s[40:43], s[0:1], 32
    s_load_dwordx2 s[44:45], s[0:1], 64
    s_load_dwordx2 s[46:47], s[0:1], 88
    s_load_dwordx2 s[66:67], s[0:1], 16
    s_load_dwordx2 s[68:69], s[0:1], 48
    s_load_dwordx2 s[70:71], s[0:1], 80
    s_and_b32 s48, s2, 7
    s_lshr_b32 s49, s2, 3
    s_and_b32 s50, s48, 1
    s_lshl_b32 s50, s50, 3
    s_and_b32 s51, s49, 7
    s_add_u32 s32, s50, s51          ; rb
    s_lshr_b32 s50, s48, 1
    s_lshl_b32 s50, s50, 2
    s_lshr_b32 s51, s49, 3
    s_add_u32 s65, s50, s51          ; cg
    s_and_b32 s34, s65, 1            ; type
    s_lshr_b32 s33, s65, 1           ; jj
    v_and_b32 v1, 63, v0
    v_lshrrev_b32 v2, 6, v0
    s_nop 0
    v_readfirstlane_b32 s35, v2      ; wave
    s_nop 3
    s_lshr_b32 s52, s35, 1           ; wr
    s_and_b32 s53, s35, 1            ; wc
    s_mov_b32 s57, 0
    s_mov_b32 s58, 0
    s_mov_b32 s59, 0
    s_waitcnt lgkmcnt(0)
    """)
    srd(a, 8, 36, 2621440)
    srd(a, 12, 38, 2457600)
    srd(a, 16, 40, 1966080)
    if EARLYW:
        a("s_cmp_ge_u32 s35, 4")
        a("s_cbranch_scc1 L_s1_now")
        s1_warm(a)
        a.label("L_s1_now")
    srd(a, 20, 46, WS_SIZE)
    srd(a, 24, 42, 3072)
    srd(a, 28, 44, 1280)
    a("s_cmp_lt_u32 s35, 4")
    a("s_cbranch_scc1 L_s1_compute")
    a("s_cmp_eq_u32 s35, 4")
    a("s_cbranch_scc1 L_s1_loader")
    a("s_cmp_eq_u32 s35, 6")
    a("s_cbranch_scc1 L_s1_aux")
    stage1_loader(a, 2)
    a.label("L_s1_loader")
    a("s_cmp_eq_u32 s34, 1")
    a("s_cbranch_scc1 L_s1_loaderB")
    stage1_loader(a, 0)
    a.label("L_s1_loaderB")
    stage1_loader(a, 1)
    a.label("L_s1_aux")
    stage1_aux(a)
    a.label("L_s1_compute")
    a("""
    s_mov_b32 s78, %s
    s_mov_b32 s79, %s
    s_mov_b32 s80, %s
    s_mov_b32 s81, %s
    """ % (LOG2E, LOG2E, EPS, EPS))
    a("""
    v_and_b32 v2, 15, v1             ; m
    v_lshrrev_b32 v3, 4, v1          ; g
    s_lshl_b32 s60, s52, 6
    v_add_u32 v4, s60, v2
    v_lshlrev_b32 v4, 7, v4
    v_lshrrev_b32 v5, 1, v2
    v_xor_b32 v5, v5, v3
    v_lshlrev_b32 v6, 4, v5
    v_add_u32 v105, v4, v6
    v_xor_b32 v5, 4, v5
    v_lshlrev_b32 v6, 4, v5
    v_add_u32 v106, v4, v6
    v_lshrrev_b32 v4, 2, v1
    v_and_b32 v4, 3, v4              ; r
    v_and_b32 v5, 3, v1
    v_lshlrev_b32 v5, 3, v5          ; c*8
    v_lshrrev_b32 v6, 1, v3
    v_lshlrev_b32 v6, 4, v6
    v_and_b32 v7, 1, v3              ; g&1
    v_lshlrev_b32 v2, 2, v7
    v_add3_u32 v6, v6, v2, v4        ; pil
    s_cmp_eq_u32 s34, 1
    s_cbranch_scc1 L_s1_typeB
    """)
    for typ in (0, 1):
        if typ == 1:
            a.label("L_s1_typeB")
        stage1_type(a, typ)
    a.label("L_s1_end")
    a("s_endpgm")

def stage1_transposer_old(a):
    a("""
    s_lshl_b32 s60, s2, 2
    s_add_u32 s60, s60, s35
    s_cmp_ge_u32 s60, 720
    s_cbranch_scc1 L_s1_tr_done
    s_lshl_b32 s61, s35, 12
    s_add_u32 s61, s61, %d                   ; scratch base
    v_lshrrev_b32 v2, 3, v1                  ; lr
    v_and_b32 v4, 7, v1
    v_lshrrev_b32 v5, 4, v1
    v_lshlrev_b32 v5, 1, v5
    v_xor_b32 v6, v4, v5
    v_lshlrev_b32 v6, 4, v6                  ; colpart
    v_and_b32 v3, 3, v2
    v_lshrrev_b32 v4, 2, v2                  ; lr>>2
    s_cmp_ge_u32 s60, 480
    s_cbranch_scc1 L_s1_tr_wo
    """ % (3 * S1_BUF))
    srd(a, 72, 68, 1966080)
    a("""
    s_mul_i32 s62, s60, 6554
    s_lshr_b32 s62, s62, 16                  ; ks = u/10
    s_mul_i32 s63, s62, 10
    s_sub_u32 s63, s60, s63                  ; cb
    s_mul_i32 s70, s62, %d
    s_lshl_b32 s71, s63, 7
    s_add_u32 s70, s70, s71                  ; src soffset
    s_mul_i32 s71, s62, 40
    s_lshl_b32 s63, s63, 2
    s_add_u32 s71, s71, s63
    s_lshl_b32 s71, s71, 10
    s_add_u32 s71, s71, 0x%x                 ; dst offset
    v_lshlrev_b32 v5, 3, v4
    v_add_u32 v5, v5, v3
    v_mul_u32_u24 v5, 1280, v5
    v_add_u32 v7, v5, v6
    """ % (32 * 1280, WS_W2F))
    for i in range(4):
        a("s_add_u32 m0, s61, %d" % (i * 1024))
        a("s_add_u32 s64, s70, %d" % ((16 * (i >> 1) + 4 * (i & 1)) * 1280))
        a("buffer_load_dwordx4 v7, s[72:75], s64 offen lds")
    a("s_branch L_s1_tr_go")
    a.label("L_s1_tr_wo")
    srd(a, 72, 66, 819200)
    a("""
    s_sub_u32 s60, s60, 480
    s_mul_i32 s62, s60, 6554
    s_lshr_b32 s62, s62, 16                  ; st = u/10 (0..23)
    s_mul_i32 s63, s62, 10
    s_sub_u32 s63, s60, s63                  ; cb
    s_mul_i32 s71, s62, 40
    s_lshl_b32 s64, s63, 2
    s_add_u32 s71, s71, s64
    s_lshl_b32 s71, s71, 10
    s_add_u32 s71, s71, 0x%x                 ; dst offset
    s_mul_i32 s64, s62, 21846
    s_lshr_b32 s64, s64, 16                  ; wg8 = st/3
    s_mul_i32 s70, s64, 3
    s_sub_u32 s62, s62, s70                  ; step = st%%3
    s_mul_i32 s70, s64, %d                   ; 80*wg8 rows
    s_lshl_b32 s63, s63, 7
    s_add_u32 s70, s70, s63
    s_cmp_eq_u32 s62, 2
    s_cbranch_scc1 L_s1_tr_wo2
    s_mul_i32 s62, s62, %d                   ; 40 rows per pair step
    s_add_u32 s70, s70, s62
    v_mul_u32_u24 v5, 1280, v2
    v_add_u32 v7, v5, v6
    """ % (WS_WOF, 80 * 1280, 40 * 1280))
    for i in range(4):
        row = 20 * (i & 1) + 8 * ((i >> 1) & 1)
        a("s_add_u32 m0, s61, %d" % (i * 1024))
        a("s_add_u32 s64, s70, %d" % (row * 1280))
        a("buffer_load_dwordx4 v7, s[72:75], s64 offen lds")
    a("s_branch L_s1_tr_go")
    a.label("L_s1_tr_wo2")
    a("""
    v_mul_u32_u24 v5, 20, v4
    v_add_u32 v5, v5, v3
    v_mul_u32_u24 v5, 1280, v5
    v_add_u32 v7, v5, v6
    """)
    for i in range(4):
        row = 20 * (2 * ((i >> 1) & 1)) + 16
        a("s_add_u32 m0, s61, %d" % (i * 1024))
        a("s_add_u32 s64, s70, %d" % (row * 1280))
        a("buffer_load_dwordx4 v7, s[72:75], s64 offen lds")
    a.label("L_s1_tr_go")
    a("""
    v_lshrrev_b32 v3, 4, v1
    v_lshrrev_b32 v4, 2, v1
    v_and_b32 v4, 3, v4
    v_and_b32 v5, 3, v1
    v_lshlrev_b32 v5, 3, v5
    v_lshrrev_b32 v6, 1, v3
    v_lshlrev_b32 v6, 4, v6
    v_and_b32 v7, 1, v3
    v_lshlrev_b32 v7, 2, v7
    v_add3_u32 v6, v6, v7, v4
    v_lshrrev_b32 v7, 1, v6
    v_and_b32 v7, 3, v7
    v_lshlrev_b32 v6, 7, v6
    v_add3_u32 v6, v6, v5, s61
    v_lshlrev_b32 v2, 4, v1
    s_waitcnt vmcnt(0)
    """)
    for t in range(4):
        a("v_xor_b32 v4, %d, v7" % t)
        a("v_lshl_add_u32 v4, v4, 5, v6")
        a("ds_read_b64_tr_b16 v[%d:%d], v4" % (8 + 4 * t, 9 + 4 * t))
        a("ds_read_b64_tr_b16 v[%d:%d], v4 offset:1024" % (10 + 4 * t, 11 + 4 * t))
    a("s_waitcnt lgkmcnt(0)")
    for t in range(4):
        a("buffer_store_dwordx4 %s, v2, s[20:23], s71 offen offset:%d" % (vr(8 + 4 * t), t * 1024))
    a("s_nop 1")
    a.label("L_s1_tr_done")


def stage1_aux(a):
    SCR = 3 * S1_BUF
    a("v_lshlrev_b32 v2, 4, v1")
    a("s_getpc_b64 s[60:61]")
    a.label("L_s1_pc")
    a("s_sub_u32 s60, s60, L_s1_pc-s1_kernel")
    a("s_subb_u32 s61, s61, 0")
    a("s_lshl_b32 s62, s49, 10")
    a("v_add_u32 v3, s62, v2")
    a("global_load_dwordx4 v[100:103], v3, s[60:61]")
    a("s_add_u32 s62, s62, 32768")
    a("s_cmp_ge_u32 s62, L_code_end-s1_kernel-1024")
    a("s_cbranch_scc1 L_s1_nopf2")
    a("v_add_u32 v3, s62, v2")
    a("global_load_dwordx4 v[100:103], v3, s[60:61]")
    a.label("L_s1_nopf2")
    a("s_mov_b32 m0, %d" % (SCR + 12288))
    a("s_nop 0")
    a("buffer_load_dwordx4 v2, s[28:31], 0 offen lds")
    a("buffer_load_dwordx4 v2, s[28:31], 0 offen offset:1024 lds")
    a("s_cmp_ge_u32 s2, 48")
    a("s_cbranch_scc1 L_s1_noz")
    a("v_pk_mov_b32 v[8:9], -1, -1")
    a("v_pk_mov_b32 v[10:11], -1, -1")
    a("s_lshl_b32 s60, s2, 10")
    a("s_add_u32 s60, s60, 0x%x" % WS_KVT)
    a("buffer_store_dwordx4 v[8:11], v2, s[20:23], s60 offen")
    a.label("L_s1_noz")
    a("s_waitcnt vmcnt(0)")
    a("s_barrier")
    srd(a, 72, 68, 1966080)
    srd(a, 76, 66, 819200)
    a("""
    v_lshrrev_b32 v2, 3, v1                  ; lr
    v_and_b32 v4, 7, v1
    v_lshrrev_b32 v5, 4, v1
    v_lshlrev_b32 v5, 1, v5
    v_xor_b32 v6, v4, v5
    v_lshlrev_b32 v6, 4, v6                  ; colpart
    v_and_b32 v3, 3, v2
    v_lshrrev_b32 v4, 2, v2                  ; lr>>2
    v_lshlrev_b32 v5, 3, v4
    v_add_u32 v5, v5, v3
    v_mul_u32_u24 v5, 1280, v5
    v_add_u32 v7, v5, v6                     ; voff w2
    v_mul_u32_u24 v5, 1280, v2
    v_add_u32 v8, v5, v6
    v_mul_u32_u24 v5, 20, v4
    v_add_u32 v5, v5, v3
    v_mul_u32_u24 v5, 1280, v5
    v_add_u32 v9, v5, v6
    """)
    for n in range(3):
        D = 82 + n
        a("s_mul_i32 s60, s2, 3")
        a("s_add_u32 s60, s60, %d" % n)
        a("s_mov_b32 s%d, -1" % D)
        a("s_cmp_ge_u32 s60, 680")
        a("s_cbranch_scc1 L_s1_tr_done%d" % n)
        a("s_cmp_ge_u32 s60, 480")
        a("s_cbranch_scc1 L_s1_tr_wo%d" % n)
        a("""
        s_mul_i32 s62, s60, 6554
        s_lshr_b32 s62, s62, 16
        s_mul_i32 s63, s62, 10
        s_sub_u32 s63, s60, s63
        s_mul_i32 s70, s62, %d
        s_lshl_b32 s71, s63, 7
        s_add_u32 s70, s70, s71
        s_mul_i32 s71, s62, 40
        s_lshl_b32 s63, s63, 2
        s_add_u32 s71, s71, s63
        s_lshl_b32 s71, s71, 10
        s_add_u32 s%d, s71, 0x%x
        """ % (32 * 1280, D, WS_W2F))
        for i in range(4):
            a("s_mov_b32 m0, %d" % (SCR + n * 4096 + i * 1024))
            a("s_add_u32 s64, s70, %d" % ((16 * (i >> 1) + 4 * (i & 1)) * 1280))
            a("buffer_load_dwordx4 v7, s[72:75], s64 offen lds")
        a("s_branch L_s1_tr_done%d" % n)
        a.label("L_s1_tr_wo%d" % n)
        a("""
        s_sub_u32 s60, s60, 480
        s_mul_i32 s62, s60, 6554
        s_lshr_b32 s62, s62, 16
        s_mul_i32 s63, s62, 10
        s_sub_u32 s63, s60, s63
        s_mul_i32 s71, s62, 40
        s_lshl_b32 s64, s63, 2
        s_add_u32 s71, s71, s64
        s_lshl_b32 s71, s71, 10
        s_add_u32 s%d, s71, 0x%x
        s_mul_i32 s64, s62, 13108
        s_lshr_b32 s64, s64, 16
        s_mul_i32 s70, s64, 5
        s_sub_u32 s62, s62, s70
        s_mul_i32 s70, s64, %d
        s_lshl_b32 s63, s63, 7
        s_add_u32 s70, s70, s63
        s_cmp_eq_u32 s62, 4
        s_cbranch_scc1 L_s1_tr_wl%d
        s_mul_i32 s62, s62, %d
        s_add_u32 s70, s70, s62
        """ % (D, WS_WOF, 160 * 1280, n, 40 * 1280))
        for i in range(4):
            row = 20 * (i & 1) + 8 * ((i >> 1) & 1)
            a("s_mov_b32 m0, %d" % (SCR + n * 4096 + i * 1024))
            a("s_add_u32 s64, s70, %d" % (row * 1280))
            a("buffer_load_dwordx4 v8, s[76:79], s64 offen lds")
        a("s_branch L_s1_tr_done%d" % n)
        a.label("L_s1_tr_wl%d" % n)
        for i in range(4):
            row = 20 * (4 * (i & 1) + 2 * ((i >> 1) & 1)) + 16
            a("s_mov_b32 m0, %d" % (SCR + n * 4096 + i * 1024))
            a("s_add_u32 s64, s70, %d" % (row * 1280))
            a("buffer_load_dwordx4 v9, s[76:79], s64 offen lds")
        a.label("L_s1_tr_done%d" % n)
    a("s_barrier")
    a("s_barrier")
    a("s_barrier")
    a("s_waitcnt vmcnt(0)")
    a("""
    v_lshrrev_b32 v3, 4, v1
    v_lshrrev_b32 v4, 2, v1
    v_and_b32 v4, 3, v4
    v_and_b32 v5, 3, v1
    v_lshlrev_b32 v5, 3, v5
    v_lshrrev_b32 v6, 1, v3
    v_lshlrev_b32 v6, 4, v6
    v_and_b32 v7, 1, v3
    v_lshlrev_b32 v7, 2, v7
    v_add3_u32 v6, v6, v7, v4
    v_lshrrev_b32 v7, 1, v6
    v_and_b32 v7, 3, v7
    v_lshlrev_b32 v6, 7, v6
    v_add_u32 v6, v6, v5
    v_add_u32 v6, %d, v6
    v_lshlrev_b32 v2, 4, v1
    """ % SCR)
    for t in range(4):
        a("v_xor_b32 v4, %d, v7" % t)
        a("v_lshl_add_u32 v%d, v4, 5, v6" % (10 + t))
    for n in range(3):
        for t in range(4):
            b = 104 + 16 * n + 4 * t
            a("ds_read_b64_tr_b16 v[%d:%d], v%d offset:%d" % (b, b + 1, 10 + t, n * 4096))
            a("ds_read_b64_tr_b16 v[%d:%d], v%d offset:%d" % (b + 2, b + 3, 10 + t, n * 4096 + 1024))
    a("s_waitcnt lgkmcnt(0)")
    for n in range(3):
        a("s_cmp_eq_u32 s%d, -1" % (82 + n))
        a("s_cbranch_scc1 L_s1_tr_skip%d" % n)
        for t in range(4):
            a("buffer_store_dwordx4 %s, v2, s[20:23], s%d offen offset:%d" % (vr(104 + 16 * n + 4 * t), 82 + n, t * 1024))
        a.label("L_s1_tr_skip%d" % n)
    for i in range(7):
        a("s_barrier")
    a("s_endpgm")


def stage1_lastarriver(a, T):
    a("""
    s_waitcnt vmcnt(0)
    s_barrier
    s_cmp_lg_u32 s35, 0
    s_cbranch_scc1 L_s1_la_wait_%s
    v_mov_b32 v4, 1
    s_lshl_b32 s63, s33, 2
    v_mov_b32 v5, s63
    s_mov_b64 s[72:73], exec
    s_mov_b64 exec, 1
    buffer_atomic_add v4, v5, s[4:7], 0 offen sc0 sc1
    s_waitcnt vmcnt(0)
    v_mov_b32 v5, 0x%x
    ds_write_b32 v5, v4
    s_waitcnt lgkmcnt(0)
    s_mov_b64 exec, s[72:73]
    """ % (T, 3 * S1_BUF + 12288))
    a.label("L_s1_la_wait_%s" % T)
    a("""
    s_barrier
    v_mov_b32 v5, 0x%x
    ds_read_b32 v4, v5
    s_waitcnt lgkmcnt(0)
    v_readfirstlane_b32 s63, v4
    s_nop 3
    s_cmp_lg_u32 s63, 15
    s_cbranch_scc1 L_s1_la_done_%s
    ; ---- reduce head h = 4jj + w : lane t<63: e=t/3, g'=t%%3
    v_mul_u32_u24 v4, 171, v1
    v_lshrrev_b32 v4, 9, v4                  ; e
    v_mul_u32_u24 v5, 3, v4
    v_sub_u32 v5, v1, v5                     ; g'
    v_mul_u32_u24 v6, 80, v4
    v_lshl_add_u32 v6, v5, 5, v6
    v_add_u32 v7, 16, v6
    v_mov_b32 v8, 0x7000000
    v_cmp_eq_u32 vcc, 2, v5
    s_lshl_b32 s64, s33, 2
    s_add_u32 s64, s64, s35                  ; head
    s_mul_i32 s66, s64, 1680
    s_add_u32 s66, s66, 0x%x
    v_cndmask_b32 v7, v7, v8, vcc
    v_cmp_gt_u32 vcc, 63, v1
    s_and_saveexec_b64 s[72:73], vcc
    """ % (3 * S1_BUF + 12288, T, WS_P))
    for rb in range(16):
        a("buffer_load_dwordx4 %s, v6, s[20:23], s66 offen sc1" % vr(16 + 8 * rb))
        a("buffer_load_dwordx4 %s, v7, s[20:23], s66 offen sc1" % vr(20 + 8 * rb))
        if rb < 15:
            a("s_add_u32 s66, s66, %d" % (32 * 1680))
    a("""
    s_lshl_b32 s67, s35, 2
    s_sub_u32 s68, s67, 16
    v_add_u32 v8, s68, v4                    ; 4w + e - 16
    v_and_b32 v8, 15, v8
    v_add_u32 v8, 48, v8                     ; +768/16
    v_cmp_gt_u32 vcc, 16, v4
    s_mul_i32 s66, s64, 1536
    s_add_u32 s66, s66, 0x%x
    v_cndmask_b32 v8, v8, v4, vcc
    v_lshlrev_b32 v8, 4, v8
    v_lshl_add_u32 v8, v5, 8, v8
    """ % WS_KVT)
    for rb in range(1, 16):
        a("s_waitcnt vmcnt(%d)" % (30 - 2 * rb))
        for i in range(0, 8, 2):
            a("v_pk_add_f32 v[%d:%d], v[%d:%d], v[%d:%d]" % (16 + i, 17 + i, 16 + i, 17 + i, 16 + 8 * rb + i, 17 + 8 * rb + i))
    for i in range(4):
        a("v_cvt_pk_bf16_f32 v%d, v%d, v%d" % (12 + i, 16 + 2 * i, 17 + 2 * i))
    a("buffer_store_dwordx4 v[12:15], v8, s[20:23], s66 offen")
    a("s_mov_b64 exec, s[72:73]")
    a.label("L_s1_la_done_%s" % T)


def stage1_gate(a):
    a("""
    s_lshl_b32 s60, s32, 7
    s_lshl_b32 s61, s33, 4
    s_add_u32 s60, s60, s61
    s_lshl_b32 s61, s35, 2
    s_add_u32 s60, s60, s61
    v_lshrrev_b32 v2, 5, v1
    v_add_u32 v2, s60, v2
    v_lshlrev_b32 v100, 2, v2
    v_add_u32 v100, 0x%x, v100
    v_mul_u32_u24 v2, 1280, v2
    v_and_b32 v3, 31, v1
    v_cmp_eq_u32 s[74:75], 0, v3
    v_mul_u32_u24 v3, 40, v3
    v_add_u32 v2, v2, v3
    buffer_load_dwordx4 v[20:23], v3, s[28:31], 0 offen
    buffer_load_dwordx4 v[24:27], v3, s[28:31], 0 offen offset:16
    buffer_load_dwordx2 v[28:29], v3, s[28:31], 0 offen offset:32
    """ % WS_G)
    for p in range(2):
        b = 32 + 12 * p
        a("buffer_load_dwordx4 %s, v2, s[8:11], 0 offen offset:%d" % (vr(b), p * 2560))
        a("buffer_load_dwordx4 %s, v2, s[8:11], 0 offen offset:%d" % (vr(b + 4), p * 2560 + 16))
        a("buffer_load_dwordx2 v[%d:%d], v2, s[8:11], 0 offen offset:%d" % (b + 8, b + 9, p * 2560 + 32))

def stage1_gate2(a, nst):
    a("s_waitcnt vmcnt(%d)" % nst)
    for i in range(10):
        a("v_lshlrev_b32 v%d, 16, v%d" % (60 + 2 * i, 20 + i))
        a("v_and_b32 v%d, 0xffff0000, v%d" % (61 + 2 * i, 20 + i))
    a("v_pk_mov_b32 v[96:97], 0, 0")
    for i in range(10):
        for p in range(2):
            b = 32 + 12 * p; t = 8 + 4 * p
            a("v_lshlrev_b32 v%d, 16, v%d" % (t, b + i))
            a("v_and_b32 v%d, 0xffff0000, v%d" % (t + 1, b + i))
        for p in range(2):
            t = 8 + 4 * p
            a("v_pk_mul_f32 v[%d:%d], v[%d:%d], v[%d:%d]" % (t, t + 1, t, t + 1, 60 + 2 * i, 61 + 2 * i))
        for p in range(2):
            t = 8 + 4 * p
            a("v_cvt_pk_bf16_f32 v%d, v%d, v%d" % (t, t, t + 1))
        for p in range(2):
            t = 8 + 4 * p
            a("v_lshlrev_b32 v%d, 16, v%d" % (t + 1, t))
            a("v_and_b32 v%d, 0xffff0000, v%d" % (t, t))
        for p in range(2):
            t = 8 + 4 * p
            a("v_add_f32 v%d, v%d, v%d" % (96 + p, 96 + p, t + 1))
        for p in range(2):
            t = 8 + 4 * p
            a("v_add_f32 v%d, v%d, v%d" % (96 + p, 96 + p, t))
    for mode in ("quad_perm:[1,0,3,2]", "quad_perm:[2,3,0,1]", "row_half_mirror", "row_mirror"):
        a("s_nop 1")
        for p in range(2):
            a("v_add_f32_dpp v%d, v%d, v%d %s row_mask:0xf bank_mask:0xf" % (96 + p, 96 + p, 96 + p, mode))
    for p in range(2):
        a("ds_swizzle_b32 v%d, v%d offset:0x401F" % (98 + p, 96 + p))
    a("s_waitcnt lgkmcnt(0)")
    for ins in ("v_add_f32 v{r}, v{r}, v{q}", "v_cvt_pk_bf16_f32 v{r}, v{r}, v{r}", "v_lshlrev_b32 v{r}, 16, v{r}", "v_mul_f32 v{r}, 0xbfb8aa3b, v{r}",
                "v_exp_f32 v{r}, v{r}", "NOP", "v_add_f32 v{r}, 1.0, v{r}", "v_rcp_f32 v{r}, v{r}", "NOP", "v_cvt_pk_bf16_f32 v{r}, v{r}, v{r}", "v_lshlrev_b32 v{r}, 16, v{r}"):
        if ins == "NOP":
            a("s_nop 0"); continue
        for p in range(2):
            a(ins.format(r=96 + p, q=98 + p))
    a("s_and_saveexec_b64 s[72:73], s[74:75]")
    for p in range(2):
        a("buffer_store_dword v%d, v100, s[20:23], 0 offen offset:%d" % (96 + p, p * 8))
    a("s_mov_b64 exec, s[72:73]")

def s1_warm(a):
    if int(os.environ.get("WARM", "1")):
        a("v_lshlrev_b32 v2, 4, v1")
        for (srdn, S, n) in ((8, 10240, 3), (12, 9600, 3), (16, 7680, 2)):
            a("s_mul_i32 s60, s2, %d" % S)
            a("s_mul_i32 s61, s35, %d" % (S // 4))
            a("s_add_u32 s60, s60, s61")
            for i in range(n):
                a("buffer_load_dwordx4 v[240:243], v2, s[%d:%d], s60 offen offset:%d" % (srdn, srdn + 3, i * 1024))

def s1_dma(typ):
    L = []
    if typ == 2:
        for i in range(16):
            L.append("s_add_u32 m0, s57, %d" % (i * 1024))
            L.append("s_add_u32 s64, s54, %d" % (i * 10240))
            L.append("buffer_load_dwordx4 v%d, s[8:11], s64 offen lds" % (96 + (i & 1)))
        L.append("s_add_u32 s54, s54, 128")
    elif typ == 0:
        for i in range(28):
            L.append("s_add_u32 m0, s57, %d" % (16384 + i * 1024))
            L.append("s_add_u32 s64, s55, %d" % ((i // 7) * 16 * 3840))
            L.append("buffer_load_dwordx4 v%d, s[12:15], s64 offen lds" % (98 + i % 7))
        L.append("s_add_u32 s55, s55, %d" % (64 * 3840))
    else:
        for i in range(24):
            L.append("s_add_u32 m0, s57, %d" % (16384 + i * 1024))
            L.append("s_add_u32 s64, s56, %d" % ((i // 6) * 16 * 3072))
            L.append("buffer_load_dwordx4 v%d, s[16:19], s64 offen lds" % (98 + i % 6))
        for i in range(2):
            L.append("s_add_u32 m0, s57, %d" % (16384 + 24576 + i * 1024))
            L.append("s_add_u32 s64, s55, %d" % (i * 32 * 3840))
            L.append("buffer_load_dwordx4 v104, s[12:15], s64 offen lds")
        L.append("s_add_u32 s55, s55, %d" % (64 * 3840))
        L.append("s_add_u32 s56, s56, %d" % (64 * 3072))
    L.append("s_add_u32 s57, s57, %d" % S1_BUF)
    L.append("s_cmp_eq_u32 s57, %d" % (3 * S1_BUF))
    L.append("s_cselect_b32 s57, 0, s57")
    return L

def stage1_loader(a, typ):
    T = "ABX"[typ]
    N = [28, 26, 16][typ]
    if typ == 2:
        a("""
        v_lshrrev_b32 v2, 3, v1
        v_mul_u32_u24 v2, 1280, v2
        v_and_b32 v3, 7, v1
        v_lshrrev_b32 v4, 4, v1
        v_xor_b32 v5, v3, v4
        v_lshlrev_b32 v6, 4, v5
        v_add_u32 v96, v2, v6
        v_xor_b32 v5, 4, v5
        v_lshlrev_b32 v6, 4, v5
        v_add_u32 v97, v2, v6
        s_lshl_b32 s60, s32, 7
        s_mul_i32 s54, s60, 1280
        """)
    else:
        a("s_mov_b32 s55, 0")
        a("s_mov_b32 s56, 0")
    if typ == 0:
        C = 28
        a("s_mov_b32 s67, %d" % ((2**32 + C - 1) // C))
        a("s_mul_i32 s68, s33, 160")
        a("s_add_u32 s69, s68, 1280")
        a("s_add_u32 s70, s68, %d" % (2560 - 160))
        a("s_lshl_b32 s71, s33, 7")
        a("s_sub_u32 s71, s71, 320")
        a("v_mov_b32 v8, s69")
        a("v_mov_b32 v9, s70")
        a("v_mov_b32 v10, s71")
        for i in range(7):
            a("v_add_u32 v2, %d, v1" % (64 * i))
            a("v_mul_hi_u32 v3, v2, s67")
            a("v_mul_u32_u24 v4, %d, v3" % C)
            a("v_sub_u32 v4, v2, v4")
            a("v_and_b32 v5, 4, v3")
            a("v_lshrrev_b32 v5, 1, v5")
            a("v_xor_b32 v4, v4, v5")
            a("v_cmp_gt_u32 vcc, 10, v4")
            a("v_cmp_gt_u32 s[72:73], 20, v4")
            swap23_v(a, 5, 3, 6)
            a("v_mul_u32_u24 v5, 3840, v5")
            a("v_cndmask_b32 v6, v9, v8, vcc")
            a("v_cndmask_b32 v6, v10, v6, s[72:73]")
            a("v_lshlrev_b32 v4, 4, v4")
            a("v_add3_u32 v%d, v5, v6, v4" % (98 + i))
    elif typ == 1:
        C = 24
        a("s_mov_b32 s67, %d" % ((2**32 + C - 1) // C))
        a("s_mul_i32 s68, s33, 384")
        for i in range(6):
            a("v_add_u32 v2, %d, v1" % (64 * i))
            a("v_mul_hi_u32 v3, v2, s67")
            a("v_mul_u32_u24 v4, %d, v3" % C)
            a("v_sub_u32 v4, v2, v4")
            a("v_and_b32 v5, 6, v3")
            a("v_xor_b32 v4, v4, v5")
            swap23_v(a, 5, 3, 6)
            a("v_mul_u32_u24 v5, 3072, v5")
            a("v_lshlrev_b32 v4, 4, v4")
            a("v_add3_u32 v%d, v5, s68, v4" % (98 + i))
        a("v_lshrrev_b32 v2, 1, v1")
        a("v_and_b32 v3, 15, v2")
        swap23_v(a, 5, 3, 6)
        a("v_and_b32 v3, 16, v2")
        a("v_add_u32 v5, v5, v3")
        a("v_mul_u32_u24 v5, 3840, v5")
        a("v_and_b32 v4, 1, v1")
        a("v_lshlrev_b32 v4, 4, v4")
        a("s_lshl_b32 s68, s33, 5")
        a("s_add_u32 s68, s68, 1024")
        a("v_add3_u32 v104, v5, s68, v4")
    stamp(a, 1)
    a.label("L_s1_ld_%s" % T)
    for s in s1_dma(typ):
        if int(os.environ.get("NODMA", "0")) and "buffer_load" in s: continue
        a(s)
    a("s_add_u32 s59, s59, 1")
    a("s_cmp_eq_u32 s59, 1")
    a("s_cbranch_scc1 L_s1_ld_%s" % T)
    if STAMP:
        a("s_cmp_lg_u32 s59, 2")
        a("s_cbranch_scc1 L_s1_ldst_%s" % T)
        stamp(a, 2)
        a("s_waitcnt vmcnt(%d)" % N)
        stamp(a, 3)
        a.label("L_s1_ldst_%s" % T)
    a("s_waitcnt vmcnt(%d)" % N)
    a("s_barrier")
    a("s_cmp_lt_u32 s59, 10")
    a("s_cbranch_scc1 L_s1_ld_%s" % T)
    a("s_waitcnt vmcnt(0)")
    a("s_barrier")
    a("s_barrier")
    stamp(a, 4)
    stamp_flush(a, 0, 20, 35)
    a("s_endpgm")

def stage1_type(a, typ):
    T = "AB"[typ]
    if typ == 0:
        a("""
        v_mul_u32_u24 v2, 448, v6
        v_add_u32 v2, v2, v5
        v_add_u32 v2, 16384, v2
        v_lshlrev_b32 v7, 5, v7
        v_add_u32 v107, v2, v7
        v_sub_u32 v108, v2, v7
        """)
        nb = 2
    else:
        a("""
        v_mul_u32_u24 v2, 384, v6
        v_add_u32 v2, v2, v5
        v_add_u32 v2, 16384, v2
        v_lshrrev_b32 v7, 1, v6
        v_and_b32 v7, 3, v7
        """)
        for j in range(4):
            a("v_xor_b32 v3, %d, v7" % j)
            a("v_subrev_u32 v3, %d, v3" % j)
            a("v_lshlrev_b32 v3, 5, v3")
            a("v_add_u32 v%d, v2, v3" % (107 + j))
        a("v_lshlrev_b32 v2, 5, v6")
        a("v_add_u32 v2, v2, v5")
        a("v_add_u32 v111, %d, v2" % (16384 + 24576))
        nb = 5
        a("s_mul_i32 s63, s33, 384")
        a("s_mul_i32 s64, s53, 192")
        a("s_add_u32 s63, s63, s64")
        a("v_lshrrev_b32 v3, 4, v1")
        a("v_lshlrev_b32 v4, 3, v3")
        for i in range(6):
            a("buffer_load_dwordx2 v[%d:%d], v4, s[24:27], s63 offen offset:%d" % (32 + 2 * i, 33 + 2 * i, 32 * i))
    a("s_cmp_eq_u32 s53, 1")
    a("s_cbranch_scc1 L_s1_%s1" % T)
    for wc in (0, 1):
        if wc == 1:
            a.label("L_s1_%s1" % T)
        stage1_wave(a, typ, wc, nb)

def s1_tiles(typ, wc):
    if typ == 0:
        return [("k", 0), ("k", 1), ("k", 2), ("v", 0), ("v", 1), ("q", 0), ("q", 1)] if wc == 0 else \
               [("k", 3), ("k", 4), ("v", 2), ("v", 3), ("v", 4), ("q", 2), ("q", 3)]
    else:
        return [("h", i) for i in range(6)] + [("q", 0)] if wc == 0 else [("h", i) for i in range(6, 12)] + [("g", 0)]

def s1_reads(typ, tiles, ks, aset, bset):
    L = []
    for ti, (kind, idx) in enumerate(tiles):
        if kind == "g":
            L.append("ds_read_b128 %s, v119 offset:%d" % (vr(bset + 4 * ti), 64 * ks))
            continue
        for hh in range(2):
            dst = bset + 4 * ti + 2 * hh
            if typ == 0:
                slot = {"k": 0, "v": 5, "q": 10}[kind] + idx
                base = 114 + (slot & 1)
                off = (32 * ks + 8 * hh) * 448 + slot * 32
            else:
                if kind == "q":
                    base = 118
                    off = (32 * ks + 8 * hh) * 32
                else:
                    base = 114 + (idx & 3)
                    off = (32 * ks + 8 * hh) * 384 + idx * 32
            L.append("ds_read_b64_tr_b16 v[%d:%d], v%d offset:%d" % (dst, dst + 1, base, off))
        if ti == 0:
            for rt in range(4):
                L.append("ds_read_b128 %s, v%d offset:%d" % (vr(aset + 4 * rt), 112 + ks, rt * 2048))
    return L

def s1_mfmas(tiles, aset, bset):
    L = []
    for ti, (kind, idx) in enumerate(tiles):
        for rt in range(4):
            acc = 128 + (ti * 4 + rt) * 4
            x = vr(aset + 4 * rt); w = vr(bset + 4 * ti)
            if kind in ("k", "v"):
                L.append("v_mfma_f32_16x16x32_bf16 %s, %s, %s, %s" % (vr(acc), x, w, vr(acc)))
            else:
                L.append("v_mfma_f32_16x16x32_bf16 %s, %s, %s, %s" % (vr(acc), w, x, vr(acc)))
    return L

def s1_setbase(nb):
    L = ["v_add_u32 v112, s58, v105", "v_add_u32 v113, s58, v106"]
    for j in range(nb):
        L.append("v_add_u32 v%d, s58, v%d" % (114 + j, 107 + j))
    return L

def stage1_wave(a, typ, wc, nb):
    T = "AB"[typ] + str(wc)
    tiles = s1_tiles(typ, wc)
    if typ == 1:
        a("s_waitcnt vmcnt(0)")
    for ti, (kind, idx) in enumerate(tiles):
        acc = 128 + (ti * 4) * 4
        if kind == "h":
            b = 32 + 2 * (idx % 6)
            a("v_lshlrev_b32 v%d, 16, v%d" % (acc, b))
            a("v_and_b32 v%d, 0xffff0000, v%d" % (acc + 1, b))
            a("v_lshlrev_b32 v%d, 16, v%d" % (acc + 2, b + 1))
            a("v_and_b32 v%d, 0xffff0000, v%d" % (acc + 3, b + 1))
            for rt in range(1, 4):
                for i in (0, 2):
                    a("v_pk_mov_b32 v[%d:%d], v[%d:%d], v[%d:%d] op_sel:[0,1]" % (acc + 4 * rt + i, acc + 4 * rt + i + 1, acc + i, acc + i + 1, acc + i, acc + i + 1))
        elif kind in ("k", "q"):
            for r in range(0, 16, 2):
                a("v_pk_mov_b32 v[%d:%d], s[80:81], s[80:81] op_sel:[0,1]" % (acc + r, acc + r + 1))
        else:
            for r in range(0, 16, 2):
                a("v_pk_mov_b32 v[%d:%d], 0, 0" % (acc + r, acc + r + 1))
    for s in s1_setbase(nb):
        a(s)
    GT = (typ == 1 and wc == 1)
    if GT:
        a("v_lshrrev_b32 v119, 4, v1")
        a("v_lshlrev_b32 v119, 4, v119")
        a("v_add_u32 v119, %d, v119" % (3 * S1_BUF + 12288))
    if not EARLYW: s1_warm(a)
    stamp(a, 1)
    a("s_barrier")
    for s in s1_reads(typ, tiles, 0, 64, 8):
        a(s)
    a("s_waitcnt lgkmcnt(0)")
    stamp(a, 2)
    a.label("L_s1_loop_%s" % T)
    NOLDS = int(os.environ.get("NOLDS", "0"))
    interleave(a, s1_mfmas(tiles, 64, 8), [] if NOLDS else s1_reads(typ, tiles, 1, 80, 36))
    a("s_add_u32 s58, s58, %d" % S1_BUF)
    a("s_cmp_eq_u32 s58, %d" % (3 * S1_BUF))
    a("s_cselect_b32 s58, 0, s58")
    a("s_waitcnt lgkmcnt(0)")
    a("s_barrier")
    m = s1_mfmas(tiles, 80, 36)
    interleave(a, m, s1_setbase(nb) + (["v_add_u32 v119, 128, v119"] if GT else []) + ([] if NOLDS else s1_reads(typ, tiles, 0, 64, 8)))
    a("s_add_u32 s59, s59, 1")
    a("s_cmp_lt_u32 s59, 10")
    a("s_waitcnt lgkmcnt(0)")
    a("s_cbranch_scc1 L_s1_loop_%s" % T)
    stamp(a, 3)
    a("v_and_b32 v2, 15, v1")
    a("v_lshrrev_b32 v3, 4, v1")
    a("s_lshl_b32 s60, s32, 7")
    a("s_lshl_b32 s63, s52, 6")
    a("s_add_u32 s60, s60, s63")
    if typ == 1:
        a("s_lshl_b32 s63, s52, 8")
        a("v_lshl_add_u32 v6, v2, 2, s63")
        if wc == 1:
            gacc = 128 + 6 * 16
            a("s_nop 4")
            for ins in ("v_cvt_pk_bf16_f32 v{r}, v{g}, v{g}", "v_lshlrev_b32 v{r}, 16, v{r}", "v_mul_f32 v{r}, 0xbfb8aa3b, v{r}", "v_exp_f32 v{r}, v{r}", "NOP",
                        "v_add_f32 v{r}, 1.0, v{r}", "v_rcp_f32 v{r}, v{r}", "NOP", "v_cvt_pk_bf16_f32 v{r}, v{r}, v{r}", "v_lshlrev_b32 v{r}, 16, v{r}",
                        "v_sub_f32 v{o}, 1.0, v{r}", "v_cvt_pk_bf16_f32 v{o}, v{o}, v{o}", "v_lshlrev_b32 v{o}, 16, v{o}"):
                if ins == "NOP":
                    a("s_nop 0"); continue
                for rt in range(4):
                    a(ins.format(r=21 + 2 * rt, o=20 + 2 * rt, g=gacc + 4 * rt))
            a("v_add_u32 v4, s60, v2")
            a("v_lshlrev_b32 v4, 2, v4")
            a("v_add_u32 v4, 0x%x, v4" % WS_G)
            a("v_cmp_eq_u32 vcc, 0, v3")
            a("s_and_saveexec_b64 s[72:73], vcc")
            for rt in range(4):
                a("ds_write_b32 v6, v%d offset:%d" % (20 + 2 * rt, rt * 64))
                a("buffer_store_dword v%d, v4, s[20:23], 0 offen offset:%d" % (21 + 2 * rt, rt * 64))
            a("s_mov_b64 exec, s[72:73]")
            a("s_waitcnt lgkmcnt(0)")
            a("s_barrier")
        else:
            a("s_barrier")
            for rt in range(4):
                a("ds_read_b32 v%d, v6 offset:%d" % (20 + 2 * rt, rt * 64))
            a("s_waitcnt lgkmcnt(0)")
    first_h = True; first_kv = True
    for ti, (kind, idx) in enumerate(tiles):
        if kind == "g":
            continue
        if kind == "h":
            if first_h:
                a("v_and_b32 v4, 1, v3")
                a("v_mul_u32_u24 v4, %d, v4" % HS)
                a("v_lshrrev_b32 v5, 1, v3")
                a("v_add_u32 v4, v4, v5")
                a("v_lshlrev_b32 v4, 8, v4")
                a("v_lshl_add_u32 v5, v2, 4, v4")
                a("s_lshr_b32 s63, s60, 4")
                a("s_mul_i32 s63, s63, %d" % HS)
                a("s_mul_i32 s64, s33, 24")
                a("s_add_u32 s63, s63, s64")
                a("s_add_u32 s63, s63, %d" % (12 * wc))
                a("s_lshl_b32 s63, s63, 8")
                a("s_add_u32 s63, s63, 0x%x" % WS_H)
                a("s_add_u32 s66, s63, %d" % (2 * HS * 256))
                first_h = False
            for p in range(2):
                accA = 128 + (ti * 4 + 2 * p) * 4
                accB = accA + 4
                for i in range(8):
                    a("v_max_f32 v%d, 0, v%d" % (accA + i, accA + i))
                for i in range(0, 8, 2):
                    a("v_pk_mul_f32 v[%d:%d], v[%d:%d], v[%d:%d]" % (accA + i, accA + i + 1, accA + i, accA + i + 1, accA + i, accA + i + 1))
                for i in range(0, 8, 2):
                    om = 20 + 2 * (2 * p + (i >> 2))
                    a("v_pk_mul_f32 v[%d:%d], v[%d:%d], v[%d:%d] op_sel_hi:[1,0]" % (accA + i, accA + i + 1, accA + i, accA + i + 1, om, om + 1))
                a("v_cvt_pk_bf16_f32 v%d, v%d, v%d" % (accA, accA, accA + 1))
                a("v_cvt_pk_bf16_f32 v%d, v%d, v%d" % (accA + 1, accA + 2, accA + 3))
                a("v_cvt_pk_bf16_f32 v%d, v%d, v%d" % (accA + 2, accB, accB + 1))
                a("v_cvt_pk_bf16_f32 v%d, v%d, v%d" % (accA + 3, accB + 2, accB + 3))
                a("s_nop 1")
                a("v_permlane16_swap_b32 v%d, v%d" % (accA, accA + 2))
                a("v_permlane16_swap_b32 v%d, v%d" % (accA + 1, accA + 3))
                a("buffer_store_dwordx4 %s, v5, s[20:23], s%d offen offset:%d" % (vr(accA), [63, 66][p], (idx % 6) * 512))
        elif kind == "q":
            if typ == 0:
                a("s_lshl_b32 s63, s33, 4")
                a("s_add_u32 s63, s63, %d" % (4 * idx))
            else:
                a("s_lshl_b32 s63, s33, 2")
                a("s_add_u32 s63, s63, 128")
            a("s_lshr_b32 s64, s60, 4")
            a("s_mul_i32 s64, s64, 160")
            a("s_add_u32 s63, s63, s64")
            a("s_lshl_b32 s63, s63, 7")
            a("s_add_u32 s63, s63, 0x%x" % WS_PQF)
            a("v_lshlrev_b32 v7, 3, v1")
            phi16(a, 128 + ti * 16, 96, 78, 80)
            for rt in range(4):
                acc = 128 + (ti * 4 + rt) * 4
                a("v_cvt_pk_bf16_f32 v%d, v%d, v%d" % (acc, acc, acc + 1))
                a("v_cvt_pk_bf16_f32 v%d, v%d, v%d" % (acc + 1, acc + 2, acc + 3))
                a("s_add_u32 s64, s63, %d" % (rt * 160 * 128))
                a("buffer_store_dwordx2 v[%d:%d], v7, s[20:23], s64 offen" % (acc, acc + 1))
        else:
            tc0 = 16 * idx + (80 if kind == "v" else 0)
            if first_kv:
                a("v_mul_u32_u24 v5, 272, v2")
                a("v_lshlrev_b32 v6, 3, v3")
                a("s_lshl_b32 s63, s52, 7")
                a("v_add3_u32 v5, v5, v6, s63")
                first_kv = False
            if kind == "k":
                phi16(a, 128 + ti * 16, 96, 78, 80)
            for rt in range(4):
                acc = 128 + (ti * 4 + rt) * 4
                a("v_cvt_pk_bf16_f32 v%d, v%d, v%d" % (acc, acc, acc + 1))
                a("v_cvt_pk_bf16_f32 v%d, v%d, v%d" % (acc + 1, acc + 2, acc + 3))
                a("ds_write_b64 v5, v[%d:%d] offset:%d" % (acc, acc + 1, tc0 * 272 + rt * 32))
            if ti == 4:
                a("s_waitcnt lgkmcnt(0)")
                a("s_barrier")
                a("s_mul_i32 s63, s35, %d" % (20 * 272))
                a("v_mul_u32_u24 v5, 272, v2")
                a("v_lshlrev_b32 v6, 4, v3")
                a("v_add3_u32 v5, v5, v6, s63")
                for ks in range(4):
                    b = 16 + 16 * ks
                    a("ds_read_b128 %s, v5 offset:%d" % (vr(b), ks * 64))
                    a("ds_read_b128 %s, v5 offset:%d" % (vr(b + 4), ks * 64 + 16 * 272))
                    a("ds_read_b128 %s, v5 offset:%d" % (vr(b + 8), ks * 64 + 80 * 272))
                    a("ds_read_b128 %s, v5 offset:%d" % (vr(b + 12), ks * 64 + 96 * 272))
                a("v_cmp_eq_u32 vcc, 4, v2")
                a("v_mov_b32 v6, 0x3f803f80")
                a("s_waitcnt lgkmcnt(0)")
                for ks in range(4):
                    b = 16 + 16 * ks
                    for i in range(4):
                        a("v_cndmask_b32 v%d, v%d, v6, vcc" % (b + 12 + i, b + 12 + i))
                a("s_nop 1")
                for ks in range(4):
                    b = 16 + 16 * ks
                    c = lambda r: ("0" if ks == 0 else vr(r))
                    a("v_mfma_f32_16x16x32_bf16 v[80:83], %s, %s, %s" % (vr(b), vr(b + 8), c(80)))
                    a("v_mfma_f32_16x16x32_bf16 v[84:87], %s, %s, %s" % (vr(b), vr(b + 12), c(84)))
                    a("v_mfma_f32_16x16x32_bf16 v[88:91], %s, %s, %s" % (vr(b + 4), vr(b + 8), c(88)))
                    a("v_mfma_f32_16x16x32_bf16 v[92:95], %s, %s, %s" % (vr(b + 4), vr(b + 12), c(92)))
                a("s_lshl_b32 s63, s32, 5")
                a("s_lshl_b32 s64, s33, 2")
                a("s_add_u32 s63, s63, s64")
                a("s_add_u32 s63, s63, s35")
                a("s_mul_i32 s63, s63, 1680")
                a("s_add_u32 s63, s63, 0x%x" % WS_P)
                a("v_mul_u32_u24 v5, 80, v2")
                a("v_lshlrev_b32 v6, 4, v3")
                a("v_add_u32 v5, v5, v6")
                a("v_cmp_eq_u32 s[74:75], 0, v3")
                a("v_cmp_gt_u32 s[76:77], 5, v2")
                a("s_nop 7")
                a("buffer_store_dwordx4 v[80:83], v5, s[20:23], s63 offen")
                a("s_and_saveexec_b64 s[72:73], s[74:75]")
                a("buffer_store_dwordx4 v[88:91], v5, s[20:23], s63 offen offset:64")
                a("s_mov_b64 exec, s[76:77]")
                a("buffer_store_dwordx4 v[84:87], v5, s[20:23], s63 offen offset:1280")
                a("s_and_b64 exec, exec, s[74:75]")
                a("buffer_store_dwordx4 v[92:95], v5, s[20:23], s63 offen offset:1344")
                a("s_mov_b64 exec, s[72:73]")

    stamp(a, 4)
    stamp_flush(a, 0, 20, 35)
    dbg_end1(a)
    a("s_endpgm")

def stage2(a):
    NRT, NT = 4, 5
    a.raw(".globl s2_kernel\n.p2align 8\n.type s2_kernel,@function")
    a.label("s2_kernel")
    a("""
    s_cmp_ge_u32 s2, 256
    s_cbranch_scc1 L_s2_end
    """)
    stamp_start(a)
    a("""
    s_load_dwordx2 s[42:43], s[0:1], 56      ; b2
    s_load_dwordx4 s[44:47], s[0:1], 72
    s_load_dwordx2 s[38:39], s[0:1], 88      ; ws
    s_and_b32 s48, s2, 7
    s_lshr_b32 s49, s2, 3
    s_lshr_b32 s50, s48, 1
    s_lshl_b32 s50, s50, 3
    s_and_b32 s51, s49, 7
    s_add_u32 s50, s50, s51                  ; rb2 (0..31)
    s_and_b32 s52, s48, 1
    s_lshl_b32 s52, s52, 2
    s_lshr_b32 s53, s49, 3
    s_add_u32 s33, s52, s53                  ; cb (0..7)
    s_lshl_b32 s32, s50, 6                   ; row0
    s_lshl_b32 s34, s50, 2                   ; rt0
    v_and_b32 v1, 63, v0
    v_lshrrev_b32 v2, 6, v0
    v_lshlrev_b32 v4, 4, v1                  ; lane*16
    v_readfirstlane_b32 s35, v2
    v_and_b32 v2, 15, v1
    v_lshrrev_b32 v3, 4, v1
    s_waitcnt lgkmcnt(0)
    """)
    srd(a, 8, 38, WS_SIZE)
    srd(a, 20, 42, 1280)
    srd(a, 24, 44, 2621440)
    srd(a, 28, 46, 256)
    a("""
    s_cmp_ge_u32 s35, 4
    s_cbranch_scc1 L_s2_awave
    """)
    vm = []
    def V(ins, tag):
        vm.append(tag); return ins
    def waitvm(tag):
        idx = max(i for i, t in enumerate(vm) if t == tag)
        n = len(vm) - 1 - idx
        assert n <= 63, n
        return "s_waitcnt vmcnt(%d)" % n
    a("""
    s_mul_i32 s55, s34, """ + str(HS) + """
    s_mul_i32 s60, s35, 48
    s_add_u32 s55, s55, s60
    s_lshl_b32 s55, s55, 8                   ; A soffset
    s_add_u32 s55, s55, """ + hex(WS_H) + """
    s_mul_i32 s56, s35, 480
    s_mul_i32 s60, s33, 5
    s_add_u32 s56, s56, s60
    s_lshl_b32 s56, s56, 10
    s_add_u32 s56, s56, 0x%x                 ; B soffset
    s_mul_i32 s57, s35, 200
    s_add_u32 s57, s57, s60
    s_lshl_b32 s57, s57, 10
    s_add_u32 s57, s57, 0x%x                 ; WOF soffset
    v_add_u32 v5, 4096, v4
    ; rotate the K order among workgroups that share operands (L2 locality only)
    s_mul_i32 s59, s53, 3
    s_add_u32 s59, s59, s51
    s_lshr_b32 s60, s51, 1
    s_add_u32 s59, s59, s60                  ; 0..19
    s_cmp_ge_u32 s59, 12
    s_cselect_b32 s60, 12, 0
    s_mov_b32 s59, 0                         ; start step (rotation disabled)
    s_lshl_b32 s60, s59, 10
    s_add_u32 s55, s55, s60
    s_mul_i32 s60, s59, 40960
    s_add_u32 s56, s56, s60
    s_mov_b32 s66, %d
    s_mov_b32 s67, 1024
    s_mov_b32 s68, %d
    s_mov_b32 s69, 40960
    """ % (WS_W2F, WS_WOF, (1024 - 12288) & 0xffffffff, (40960 - 12 * 40960) & 0xffffffff))
    VA = 232
    for rt in range(NRT):
        a("v_add_u32 v%d, %d, v4" % (VA + rt, rt * HS * 256))
    ACC = 152
    def SET(st):
        b = 8 + 36 * (st % 4); return b, b + 16
    def bload(dst, t, sreg, tag):
        if t < 4:
            return ("buffer_load_dwordx4 %s, v4, s[8:11], s%d offen offset:%d" % (vr(dst), sreg, t * 1024), tag)
        return ("buffer_load_dwordx4 %s, v5, s[8:11], s%d offen" % (vr(dst), sreg), tag)
    def loads(st):
        A, B = SET(st); tag = "L%d" % st
        L = [bload(B, 0, 56, tag)]
        for rt in range(NRT):
            L.append(("buffer_load_dwordx4 %s, v%d, s[8:11], s55 offen" % (vr(A + 4 * rt), VA + rt), tag))
        for t in range(1, NT):
            L.append(bload(B + 4 * t, t, 56, tag))
        L.append(("s_add_u32 s59, s59, 1", None))
        L.append(("s_cmp_eq_u32 s59, 12", None))
        L.append(("s_cselect_b32 s64, s66, s67", None))
        L.append(("s_cselect_b32 s65, s68, s69", None))
        L.append(("s_add_u32 s55, s55, s64", None))
        L.append(("s_add_u32 s56, s56, s65", None))
        return L
    def wl(step):
        L = [bload(8 + 20 * step + 4 * t, t, 57, "W%d" % step) for t in range(NT)]
        L.append(("s_add_u32 s57, s57, %d" % (40 * 1024), None))
        return L
    def emit(items):
        for ins, tag in items:
            a(V(ins, tag) if tag else ins)
    def inter(main, items, every=2, start=0):
        items = list(items)
        for i, m in enumerate(main):
            a(m)
            if i >= start and (i - start) % every == 0 and items:
                ins, tag = items.pop(0); a(V(ins, tag) if tag else ins)
        emit(items)
    def mfmas(aset, bset):
        return ["v_mfma_f32_16x16x32_bf16 %s, %s, %s, %s" % (vr(ACC + (t * NRT + rt) * 4), vr(bset + 4 * t), vr(aset + 4 * rt), vr(ACC + (t * NRT + rt) * 4))
                for t in range(NT) for rt in range(NRT)]
    a("s_cmp_ge_u32 s2, 32")
    a("s_cbranch_scc1 L_s2_bgo")
    a("s_barrier")
    a.label("L_s2_bgo")
    emit(loads(0)); emit(loads(1))
    a("s_lshl_b32 s60, s35, 4")
    a("s_add_u32 s60, s60, s32")
    a("v_add_u32 v6, s60, v2")
    a("v_lshlrev_b32 v7, 2, v6")
    a("v_add_u32 v7, 0x%x, v7" % WS_G)
    a(V("buffer_load_dword v236, v7, s[8:11], 0 offen", "G"))
    a("s_mul_i32 s58, s33, 160")
    a("v_lshlrev_b32 v7, 3, v3")
    for t in range(NT):
        a(V("buffer_load_dwordx2 v[%d:%d], v7, s[20:23], s58 offen offset:%d" % (238 + 2 * t, 239 + 2 * t, t * 32), "G"))
    stamp(a, 1)
    for r in range(0, 80, 2):
        a("v_pk_mov_b32 v[%d:%d], 0, 0" % (ACC + r, ACC + r + 1))
    stamp(a, 2)
    a("s_mul_i32 s60, s35, 20480")
    a("v_add_u32 v7, s60, v4")
    SEQ = ["b"] * 5 + ["a", "a"] + ["b"] * 4 + ["a", "a", "a"] + ["b"] * 3
    def sloads(n):
        if n >= len(SEQ): return []
        if SEQ[n] == "b":
            return loads(n)
        A, B = SET(n)
        L = [bload(B + 4 * t, t, 57, "L%d" % n) for t in range(NT)]
        L.append(("s_add_u32 s57, s57, %d" % (40 * 1024), None))
        return L
    astep = 0
    for n, kind in enumerate(SEQ):
        A, B = SET(n)
        if kind == "a":
            if astep in (0, 2):
                a("s_barrier")
            for rt in range(NRT):
                a("ds_read_b128 %s, v7 offset:%d" % (vr(A + 4 * rt), rt * 5120 + astep * 1024))
            astep += 1
        side = (sloads(2) + sloads(3)) if n == 0 else sloads(n + 3)
        a(waitvm("L%d" % n))
        emit(side)
        if kind == "a":
            a("s_waitcnt lgkmcnt(0)")
        for x in mfmas(A, B): a(x)
    stamp(a, 3)
    stamp(a, 4)
    a("v_sub_f32 v236, 1.0, v236")
    a("v_cvt_pk_bf16_f32 v236, v236, v236")
    a("v_lshlrev_b32 v236, 16, v236")
    a("s_barrier")
    for w in range(4):
        a("s_cmp_lg_u32 s35, %d" % w)
        a("s_cbranch_scc1 L_s2_fw%d" % w)
        for rt in range(NRT):
            if rt == w: continue
            si = w if w < rt else w - 1
            for t in range(NT):
                a("ds_write_b128 v4, %s offset:%d" % (vr(ACC + (t * NRT + rt) * 4), (rt * 3 + si) * 5120 + t * 1024))
        for t in range(NT):
            src = ACC + (t * NRT + w) * 4
            a("v_lshlrev_b32 v8, 16, v%d" % (238 + 2 * t))
            a("v_and_b32 v9, 0xffff0000, v%d" % (238 + 2 * t))
            a("v_lshlrev_b32 v10, 16, v%d" % (239 + 2 * t))
            a("v_and_b32 v11, 0xffff0000, v%d" % (239 + 2 * t))
            for i in (0, 2):
                a("v_pk_fma_f32 v[%d:%d], v[%d:%d], v[236:237], v[%d:%d] op_sel_hi:[1,0,1]" % (16 + 4 * t + i, 17 + 4 * t + i, 8 + i, 9 + i, src + i, src + i + 1))
        a.label("L_s2_fw%d" % w)
    a("s_mul_i32 s61, s35, %d" % (3 * 5120))
    a("v_add_u32 v7, s61, v4")
    a("s_waitcnt lgkmcnt(0)")
    a("s_barrier")
    for si in range(3):
        for t in range(NT):
            a("ds_read_b128 %s, v7 offset:%d" % (vr(40 + (si * NT + t) * 4), si * 5120 + t * 1024))
    a("v_mul_u32_u24 v6, 1280, v6")
    a("v_and_b32 v8, 1, v3")
    a("v_lshl_add_u32 v8, v8, 5, v6")
    a("v_lshrrev_b32 v9, 1, v3")
    a("v_lshl_add_u32 v8, v9, 4, v8")
    a("v_lshl_add_u32 v9, v3, 3, v6")
    for si in range(3):
        a("s_waitcnt lgkmcnt(%d)" % (10 - 5 * si))
        for t in range(NT):
            o = 16 + 4 * t; q = 40 + (si * NT + t) * 4
            for i in (0, 2):
                a("v_pk_add_f32 v[%d:%d], v[%d:%d], v[%d:%d]" % (o + i, o + i + 1, o + i, o + i + 1, q + i, q + i + 1))
    for p in range(2):
        A_, B_ = 16 + 8 * p, 20 + 8 * p
        a("v_cvt_pk_bf16_f32 v%d, v%d, v%d" % (A_, A_, A_ + 1))
        a("v_cvt_pk_bf16_f32 v%d, v%d, v%d" % (A_ + 1, A_ + 2, A_ + 3))
        a("v_cvt_pk_bf16_f32 v%d, v%d, v%d" % (A_ + 2, B_, B_ + 1))
        a("v_cvt_pk_bf16_f32 v%d, v%d, v%d" % (A_ + 3, B_ + 2, B_ + 3))
    a("v_cvt_pk_bf16_f32 v32, v32, v33")
    a("v_cvt_pk_bf16_f32 v33, v34, v35")
    for p in range(2):
        A_ = 16 + 8 * p
        a("v_permlane16_swap_b32 v%d, v%d" % (A_, A_ + 2))
        a("v_permlane16_swap_b32 v%d, v%d" % (A_ + 1, A_ + 3))
        a("buffer_store_dwordx4 %s, v8, s[24:27], s58 offen offset:%d" % (vr(A_), p * 64))
    a("buffer_store_dwordx2 v[32:33], v9, s[24:27], s58 offen offset:128")
    dbg_end2(a)
    stamp_flush(a, 2, 8, 35)
    a("s_endpgm")
    a.label("L_s2_awave")
    a("s_setprio 2")
    F, PQB, Z, OA, RY, T1 = 8, [40, 56], 72, 96, 112, 144
    G = [76, 77, 78, 79]
    DS = 80
    EPSR = 88
    a("""
    s_sub_u32 s58, s35, 4                    ; aw
    s_mul_i32 s54, s58, 20480
    s_mul_i32 s60, s34, 160
    s_mul_i32 s61, s58, 40
    s_add_u32 s60, s60, s61
    s_lshl_b32 s60, s60, 7
    s_add_u32 s60, s60, 0x%x
    v_add_u32 v5, s32, v2
    v_lshlrev_b32 v5, 2, v5
    v_add_u32 v5, 0x%x, v5
    ; reducer duty: wave 4 of workgroups 0..31 reduces head = id
    s_cmp_ge_u32 s2, 32
    s_cbranch_scc1 L_s2_nored
    s_cmp_eq_u32 s35, 4
    s_cbranch_scc1 L_s2_dored
    s_barrier
    s_branch L_s2_nored
L_s2_dored:
    s_setprio 3
    v_mul_u32_u24 v8, 171, v1
    v_lshrrev_b32 v8, 9, v8                  ; e
    v_mul_u32_u24 v9, 3, v8
    v_sub_u32 v9, v1, v9                     ; g'
    v_mul_u32_u24 v6, 80, v8
    v_lshl_add_u32 v6, v9, 5, v6
    v_add_u32 v7, 16, v6
    v_mov_b32 v10, 0x7000000
    v_cmp_eq_u32 vcc, 2, v9
    s_mul_i32 s66, s2, 1680
    s_add_u32 s66, s66, 0x%x
    s_nop 0
    v_cndmask_b32 v7, v7, v10, vcc
    v_cmp_gt_u32 vcc, 63, v1
    s_and_saveexec_b64 s[72:73], vcc
    """ % (WS_PQF, WS_G, WS_P))
    for rb in range(16):
        a("buffer_load_dwordx4 %s, v6, s[8:11], s66 offen" % vr(16 + 8 * rb))
        a("buffer_load_dwordx4 %s, v7, s[8:11], s66 offen" % vr(20 + 8 * rb))
        if rb < 15:
            a("s_add_u32 s66, s66, %d" % (32 * 1680))
    a("""
    s_and_b32 s67, s2, 3
    s_lshl_b32 s67, s67, 2
    s_sub_u32 s68, s67, 16
    v_add_u32 v10, s68, v8
    v_and_b32 v10, 15, v10
    v_add_u32 v10, 48, v10
    v_cmp_gt_u32 vcc, 16, v8
    s_mul_i32 s66, s2, 1536
    s_add_u32 s66, s66, 0x%x
    v_cndmask_b32 v10, v10, v8, vcc
    v_lshlrev_b32 v10, 4, v10
    v_lshl_add_u32 v10, v9, 8, v10
    """ % WS_KVT)
    for rb in range(1, 16):
        a("s_waitcnt vmcnt(%d)" % (30 - 2 * rb))
        for i in range(0, 8, 2):
            a("v_pk_add_f32 v[%d:%d], v[%d:%d], v[%d:%d]" % (16 + i, 17 + i, 16 + i, 17 + i, 16 + 8 * rb + i, 17 + 8 * rb + i))
    for i in range(4):
        a("v_cvt_pk_bf16_f32 v%d, v%d, v%d" % (12 + i, 16 + 2 * i, 17 + 2 * i))
    a("""
    buffer_store_dwordx4 v[12:15], v10, s[8:11], s66 offen sc1
    s_barrier
    s_mov_b64 exec, -1
    s_setprio 2
    """)
    a.label("L_s2_nored")
    for rt in range(NRT):
        a("buffer_load_dword v%d, v5, s[8:11], 0 offen offset:%d" % (G[rt], rt * 64))
    for i in range(5):
        for rt in range(NRT):
            a("s_add_u32 m0, s54, %d" % (rt * 5120 + i * 1024))
            a("s_add_u32 s64, s60, %d" % (rt * 160 * 128 + i * 1024))
            a("buffer_load_dwordx4 v4, s[8:11], s64 offen lds")
    stamp(a, 1)
    a("v_cmp_gt_u32 s[82:83], 48, v1")
    a("v_cmp_gt_u32 s[84:85], 32, v1")
    a("s_lshl_b32 s61, s58, 3")
    a("s_mul_i32 s61, s61, 1536")
    a("s_add_u32 s61, s61, 0x%x" % WS_KVT)
    a("v_lshrrev_b32 v0, 2, v2")
    for jj in range(4):
        a("v_cmp_ne_u32 s[%d:%d], %d, v0" % (66 + 2 * jj, 67 + 2 * jj, jj))
        a("v_cmp_eq_u32 s[%d:%d], %d, v3" % (74 + 2 * jj, 75 + 2 * jj, jj))
    a("v_lshlrev_b32 v6, 8, v3")
    a("v_lshl_add_u32 v6, v2, 3, v6")
    a("v_add_u32 v6, s54, v6")
    a("v_add_u32 v7, s54, v4")
    for r in list(range(8, 72, 2)) + list(range(DS, DS + 8, 2)) + list(range(T1, T1 + 32, 2)):
        a("v_pk_mov_b32 v[%d:%d], 0, 0" % (r, r + 1))
    for i in range(4):
        a("v_mov_b32 v%d, %s" % (EPSR + i, EPS))
    def pqreads(j):
        P = PQB[j & 1]
        a("s_mov_b64 exec, s[82:83]")
        for rt in range(NRT):
            a("ds_read_b64 v[%d:%d], v6 offset:%d" % (P + 4 * rt, P + 4 * rt + 1, rt * 5120 + j * 640))
        a("s_mov_b64 exec, s[84:85]")
        for rt in range(NRT):
            a("ds_read_b64 v[%d:%d], v6 offset:%d" % (P + 4 * rt + 2, P + 4 * rt + 3, rt * 5120 + j * 640 + 128))
        a("s_mov_b64 exec, -1")
    def fload(j):
        a("s_mov_b64 exec, s[82:83]")
        a("buffer_load_dwordx4 %s, v4, s[8:11], s61 offen sc1" % vr(F + 8 * (j & 3)))
        a("buffer_load_dwordx4 %s, v4, s[8:11], s61 offen offset:768 sc1" % vr(F + 8 * (j & 3) + 4))
        a("s_mov_b64 exec, -1")
        a("s_add_u32 s61, s61, 1536")
    def fgroup(gp):
        FB = FBANK[gp]
        a("s_mov_b32 s63, 0")
        a.label("L_s2_fpoll%d" % gp)
        a("s_mov_b64 exec, s[82:83]")
        for j in range(4):
            a("s_add_u32 s62, s61, %d" % ((4 * gp + j) * 1536))
            a("buffer_load_dwordx4 %s, v4, s[8:11], s62 offen sc1" % vr(FB + 8 * j))
            a("buffer_load_dwordx4 %s, v4, s[8:11], s62 offen offset:768 sc1" % vr(FB + 8 * j + 4))
        a("s_waitcnt vmcnt(0)")
        a("s_mov_b64 s[64:65], 0")
        for j in range(4):
            a("v_cmp_eq_u32 vcc, -1, v%d" % (FB + 8 * j))
            a("s_or_b64 s[64:65], s[64:65], vcc")
            a("v_cmp_eq_u32 vcc, -1, v%d" % (FB + 8 * j + 4))
            a("s_and_b64 vcc, vcc, s[%d:%d]" % (40 + 2 * j, 41 + 2 * j))
            a("s_or_b64 s[64:65], s[64:65], vcc")
        a("s_mov_b64 exec, -1")
        a("s_add_u32 s63, s63, 1")
        a("s_cmp_eq_u64 s[64:65], 0")
        a("s_cbranch_scc1 L_s2_fok%d" % gp)
        a("s_cmp_ge_u32 s63, 100000")
        a("s_cbranch_scc1 L_s2_fok%d" % gp)
        a("s_sleep 6")
        a("s_branch L_s2_fpoll%d" % gp)
        a.label("L_s2_fok%d" % gp)
    FBANK = [8, 176]
    for r in range(176, 208, 2):
        a("v_pk_mov_b32 v[%d:%d], 0, 0" % (r, r + 1))
    for jj in range(4):
        a("v_cmp_eq_u32 vcc, %d, v2" % ((4 * jj + 4) & 15))
        a("s_orn2_b64 s[%d:%d], vcc, s[%d:%d]" % (40 + 2 * jj, 41 + 2 * jj, 66 + 2 * jj, 67 + 2 * jj))
    fgroup(0)
    stamp(a, 2)
    pqreads(0)
    for j in range(8):
        jj = j & 3
        f0, f1 = FBANK[j >> 2] + 8 * jj, FBANK[j >> 2] + 8 * jj + 4
        P = PQB[j & 1]
        if j == 4:
            fgroup(1)
        for i in range(4):
            a("v_mov_b32_dpp v%d, v%d row_newbcast:%d row_mask:0xf bank_mask:0xf" % (Z + i, f1 + i, (4 * jj + 4) & 15))
        a("s_nop 0")
        for i in range(4):
            a("v_cndmask_b32 v%d, v%d, 0, s[%d:%d]" % (f1 + i, f1 + i, 66 + 2 * jj, 67 + 2 * jj))
        a("s_waitcnt lgkmcnt(0)")
        if j < 7:
            pqreads(j + 1)
        else:
            a("s_nop 0")
        for rt in range(NRT):
            a("v_mfma_f32_16x16x32_bf16 %s, %s, %s, %s" % (vr(RY + 8 * rt + 4), vr(Z), vr(P + 4 * rt), vr(EPSR)))
        for rt in range(NRT):
            a("v_mfma_f32_16x16x32_bf16 %s, %s, %s, 0" % (vr(RY + 8 * rt), vr(f0), vr(P + 4 * rt)))
        for rt in range(NRT):
            t1 = T1 + ((j >> 2) * NRT + rt) * 4
            a("v_mfma_f32_16x16x32_bf16 %s, %s, %s, %s" % (vr(t1), vr(f1), vr(P + 4 * rt), vr(t1)))
        for rt in range(NRT):
            a("v_rcp_f32 v%d, v%d" % (RY + 8 * rt + 4, RY + 8 * rt + 4))
        a("s_nop 0")
        for rt in range(NRT):
            a("v_mul_f32 v%d, v%d, v%d" % (RY + 8 * rt + 4, RY + 8 * rt + 4, G[rt]))
        for rt in range(NRT):
            t0 = RY + 8 * rt
            for i in (0, 2):
                a("v_pk_mul_f32 v[%d:%d], v[%d:%d], v[%d:%d] op_sel_hi:[1,0]" % (t0 + i, t0 + i + 1, t0 + i, t0 + i + 1, t0 + 4, t0 + 5))
        for rt in range(NRT):
            ds = DS + (j >> 2) * NRT + rt
            a("v_cndmask_b32 v%d, v%d, v%d, s[%d:%d]" % (ds, ds, RY + 8 * rt + 4, 74 + 2 * jj, 75 + 2 * jj))
        for rt in range(NRT):
            t0 = RY + 8 * rt
            oa = OA + 4 * rt + 2 * (j & 1)
            a("v_cvt_pk_bf16_f32 v%d, v%d, v%d" % (oa, t0, t0 + 1))
            a("v_cvt_pk_bf16_f32 v%d, v%d, v%d" % (oa + 1, t0 + 2, t0 + 3))
        if j & 1:
            a("s_waitcnt lgkmcnt(0)")
            for rt in range(NRT):
                a("ds_write_b128 v7, %s offset:%d" % (vr(OA + 4 * rt), rt * 5120 + (j >> 1) * 1024))
            if j == 3:
                a("s_waitcnt lgkmcnt(0)")
                a("s_barrier")
    for rt in range(NRT):
        for q in range(2):
            t1 = T1 + (q * NRT + rt) * 4
            ds = DS + q * NRT + rt
            for i in range(4):
                a("v_mul_f32 v%d, v%d, v%d" % (t1 + i, t1 + i, ds))
            oa = RY + 4 * rt + 2 * q
            a("v_cvt_pk_bf16_f32 v%d, v%d, v%d" % (oa, t1, t1 + 1))
            a("v_cvt_pk_bf16_f32 v%d, v%d, v%d" % (oa + 1, t1 + 2, t1 + 3))
        a("ds_write_b128 v7, %s offset:%d" % (vr(RY + 4 * rt), rt * 5120 + 4096))
    stamp(a, 3)
    stamp(a, 4)
    a("s_waitcnt lgkmcnt(0)")
    a("s_barrier")
    stamp_flush(a, 2, 8, 35)
    a.label("L_s2_end")
    a("s_endpgm")
    a.label("L_code_end")

def kd(name, vgpr, accum, sgpr=102):
    return """.amdhsa_kernel %s
  .amdhsa_next_free_vgpr %d
  .amdhsa_next_free_sgpr %d
  .amdhsa_accum_offset %d
  .amdhsa_group_segment_fixed_size 0
  .amdhsa_kernarg_size 96
  .amdhsa_user_sgpr_count 2
  .amdhsa_user_sgpr_kernarg_segment_ptr 1
  .amdhsa_system_sgpr_workgroup_id_x 1
.end_amdhsa_kernel
""" % (name, vgpr, sgpr, accum)

def main():
    a = Asm()
    hdr = open("cdna_kernels/%s.s.ref" % NAME).read().split("; Override launch")[0]
    out = hdr
    out += "; @launch kernel=s1_kernel grid=(256,1,1) block=(448,1,1) lds=%d\n" % (3 * S1_BUF + 16384)
    out += "; @launch kernel=s2_kernel grid=(256,1,1) block=(512,1,1) lds=81920\n"
    out += '.amdgcn_target "amdgcn-amd-amdhsa--gfx950"\n.text\n'
    stage1(a)
    stage2(a)
    out += a.text()
    out += '.section .rodata,"a"\n.p2align 6\n'
    out += kd("s1_kernel", 256, 256)
    out += ".p2align 6\n" + kd("s2_kernel", 256, 256)
    dst = sys.argv[1] if len(sys.argv) > 1 else "cdna_kernels/%s.s" % NAME
    open(dst, "w").write(out)

main()
```

```python
import sys, os

NAME = "gated_mix__linear_attn_block__dense_activation_squared_relu__prompt"

HS = int(os.environ.get("HS", "192"))
WS_H   = 0x1000000
WS_PQF = 0x600000
WS_P   = 0x900000
WS_KVT = 0xA00000
WS_G   = 0xA10000
WS_FLAG = 0xA20000
WS_W2F = 0xC00000
WS_WOF = 0xE00000
WS_SIZE = 0x1800000
STAMP = int(os.environ.get("STAMP", "0"))
EARLYW = int(os.environ.get("EARLYW", "1"))
WS_STAMP = 0xB00000

class Asm:
    def __init__(self):
        self.L = []
    def __call__(self, s):
        for ln in s.strip("\n").split("\n"):
            if ln.strip():
                self.L.append("  " + ln.strip())
    def label(self, l):
        self.L.append(l + ":")
    def raw(self, s):
        self.L.append(s)
    def text(self):
        return "\n".join(self.L) + "\n"

def vr(b, n=4):
    return "v[%d:%d]" % (b, b + n - 1)

def srd(a, d, lo, size):
    a("s_mov_b32 s%d, s%d" % (d, lo))
    a("s_and_b32 s%d, s%d, 0xffff" % (d + 1, lo + 1))
    a("s_mov_b32 s%d, 0x%x" % (d + 2, size))
    a("s_mov_b32 s%d, 0x00020000" % (d + 3))

def interleave(a, main, side, start=1, every=1):
    side = list(side)
    for i, m in enumerate(main):
        a(m)
        if i >= start - 1 and (i - (start - 1)) % every == 0 and side:
            a(side.pop(0))
    for s in side:
        a(s)

DBG = int(os.environ.get("DBG", "0"))
def dbg_start(a):
    if DBG:
        a("s_memrealtime s[96:97]")
def dbg_end1(a):
    if DBG:
        a("s_waitcnt vmcnt(0)")
        a("s_memrealtime s[98:99]")
        a("s_waitcnt lgkmcnt(0)")
        a("s_or_b32 s97, s2, s35")
        a("s_cmp_lg_u32 s97, 0")
        a("s_cbranch_scc1 L_dbg1_%d" % len(a.L))
        lab = "L_dbg1_%d" % (len(a.L) - 1)
        a("v_mov_b32 v2, s96")
        a("v_mov_b32 v3, s98")
        a("v_mov_b32 v4, 0x%x" % WS_STAMP)
        a("s_mov_b64 exec, 1")
        a("buffer_store_dwordx2 v[2:3], v4, s[20:23], 0 offen")
        a("s_waitcnt vmcnt(0)")
        a.label(lab)
def dbg_end2(a):
    if DBG:
        a("s_waitcnt vmcnt(0)")
        a("s_memrealtime s[98:99]")
        a("s_waitcnt lgkmcnt(0)")
        a("s_or_b32 s97, s2, s35")
        a("s_cmp_lg_u32 s97, 0")
        a("s_cbranch_scc1 L_dbg2")
        a("v_mov_b32 v4, 0x%x" % WS_STAMP)
        a("s_mov_b64 exec, 1")
        a("buffer_load_dwordx2 v[8:9], v4, s[8:11], 0 offen")
        a("v_mov_b32 v10, s96")
        a("v_mov_b32 v11, s98")
        a("v_mov_b32 v4, 16")
        a("s_waitcnt vmcnt(0)")
        a("buffer_store_dwordx4 v[8:11], v4, s[28:31], 0 offen")
        a("s_waitcnt vmcnt(0)")
        a.label("L_dbg2")
def stamp_start(a):
    dbg_start(a)
    if STAMP:
        a("s_memrealtime s[86:87]")
        a("s_waitcnt lgkmcnt(0)")
        a("s_mov_b32 s94, s86")
        stamp(a, 0)
def stamp(a, idx):
    if STAMP:
        a("s_memtime s[86:87]")
        a("s_waitcnt lgkmcnt(0)")
        a("s_mov_b32 s%d, s86" % (88 + idx))
def stamp_flush(a, kern, srdreg, wavereg):
    if STAMP:
        a("s_waitcnt vmcnt(0)")
        stamp(a, 5)
        a("s_memrealtime s[86:87]")
        a("s_waitcnt lgkmcnt(0)")
        a("s_mov_b32 s95, s86")
        a("s_lshl_b32 s86, s2, 3")
        a("s_add_u32 s86, s86, s%d" % wavereg)
        a("s_lshl_b32 s86, s86, 5")
        a("s_add_u32 s86, s86, 0x%x" % (WS_STAMP + kern * 0x10000))
        a("s_mov_b64 exec, 1")
        for i in range(8):
            a("v_mov_b32 v2, s%d" % (88 + i))
            a("v_mov_b32 v3, %d" % (4 * i))
            a("buffer_store_dword v2, v3, s[%d:%d], s86 offen" % (srdreg, srdreg + 3))
        a("s_waitcnt vmcnt(0)")

LOG2E = "0x3fb8aa3b"
EPS = "0x358637bd"

def phi4(a, src, tmp, sl, se):
    for i in (0, 2):
        a("v_pk_mul_f32 v[%d:%d], v[%d:%d], s[%d:%d]" % (tmp + i, tmp + i + 1, src + i, src + i + 1, sl, sl + 1))
    for i in range(4):
        a("v_min_f32 v%d, 0, v%d" % (tmp + i, tmp + i))
    for i in range(4):
        a("v_exp_f32 v%d, v%d" % (tmp + i, tmp + i))
    for i in range(4):
        a("v_max_f32 v%d, 0, v%d" % (src + i, src + i))
    for i in (0, 2):
        a("v_pk_add_f32 v[%d:%d], v[%d:%d], v[%d:%d]" % (src + i, src + i + 1, src + i, src + i + 1, tmp + i, tmp + i + 1))
    for i in (0, 2):
        a("v_pk_add_f32 v[%d:%d], v[%d:%d], s[%d:%d]" % (src + i, src + i + 1, src + i, src + i + 1, se, se + 1))

def phi16(a, src, tmp, sl, se):
    n = 16
    for i in range(0, n, 2):
        a("v_pk_mul_f32 v[%d:%d], v[%d:%d], s[%d:%d]" % (tmp + i, tmp + i + 1, src + i, src + i + 1, sl, sl + 1))
    for i in range(n):
        a("v_exp_f32_e64 v%d, v%d clamp" % (tmp + i, tmp + i))
        a("v_max_f32 v%d, s%d, v%d" % (src + i, se, src + i))
    for i in range(0, n, 2):
        a("v_pk_add_f32 v[%d:%d], v[%d:%d], v[%d:%d]" % (src + i, src + i + 1, src + i, src + i + 1, tmp + i, tmp + i + 1))

def swap23_v(a, d, s, t):
    a("v_and_b32 v%d, 3, v%d" % (d, s))
    a("v_and_b32 v%d, 4, v%d" % (t, s))
    a("v_lshlrev_b32 v%d, 1, v%d" % (t, t))
    a("v_or_b32 v%d, v%d, v%d" % (d, d, t))
    a("v_and_b32 v%d, 8, v%d" % (t, s))
    a("v_lshrrev_b32 v%d, 1, v%d" % (t, t))
    a("v_or_b32 v%d, v%d, v%d" % (d, d, t))

S1_BUF = 45056
def stage1(a):
    a.raw(".globl s1_kernel\n.p2align 8\n.type s1_kernel,@function")
    a.label("s1_kernel")
    a("""
    s_cmp_ge_u32 s2, 256
    s_cbranch_scc1 L_s1_end
    s_getpc_b64 s[60:61]
    v_lshlrev_b32 v2, 4, v0
    global_load_dwordx4 v[244:247], v2, s[60:61]
    v_add_u32 v3, 7168, v2
    global_load_dwordx4 v[244:247], v3, s[60:61]
    v_add_u32 v3, 14336, v2
    global_load_dwordx4 v[244:247], v3, s[60:61]
    v_add_u32 v3, 21504, v2
    global_load_dwordx4 v[244:247], v3, s[60:61]
    """)
    stamp_start(a)
    a("""
    s_load_dwordx4 s[36:39], s[0:1], 0
    s_load_dwordx4 s[40:43], s[0:1], 32
    s_load_dwordx2 s[44:45], s[0:1], 64
    s_load_dwordx2 s[46:47], s[0:1], 88
    s_load_dwordx2 s[66:67], s[0:1], 16
    s_load_dwordx2 s[68:69], s[0:1], 48
    s_load_dwordx2 s[70:71], s[0:1], 80
    s_and_b32 s48, s2, 7
    s_lshr_b32 s49, s2, 3
    s_and_b32 s50, s48, 1
    s_lshl_b32 s50, s50, 3
    s_and_b32 s51, s49, 7
    s_add_u32 s32, s50, s51          ; rb
    s_lshr_b32 s50, s48, 1
    s_lshl_b32 s50, s50, 1
    s_lshr_b32 s51, s49, 3           ; cg_local
    s_lshr_b32 s34, s51, 1
    s_and_b32 s51, s51, 1
    s_add_u32 s33, s50, s51          ; jj
    v_and_b32 v1, 63, v0
    v_lshrrev_b32 v2, 6, v0
    s_nop 0
    v_readfirstlane_b32 s35, v2      ; wave
    s_nop 3
    s_lshr_b32 s52, s35, 1           ; wr
    s_and_b32 s53, s35, 1            ; wc
    s_mov_b32 s57, 0
    s_mov_b32 s58, 0
    s_mov_b32 s59, 0
    s_waitcnt lgkmcnt(0)
    """)
    srd(a, 8, 36, 2621440)
    srd(a, 12, 38, 2457600)
    srd(a, 16, 40, 1966080)
    if EARLYW:
        a("s_cmp_ge_u32 s35, 4")
        a("s_cbranch_scc1 L_s1_now")
        a("s_cmp_eq_u32 s34, 0")
        a("s_cbranch_scc1 L_s1_nobias")
        srd(a, 24, 42, 3072)
        a("s_mul_i32 s63, s33, 384")
        a("s_mul_i32 s64, s53, 192")
        a("s_add_u32 s63, s63, s64")
        a("v_lshrrev_b32 v3, 4, v1")
        a("v_lshlrev_b32 v4, 3, v3")
        for i in range(6):
            a("buffer_load_dwordx2 v[%d:%d], v4, s[24:27], s63 offen offset:%d" % (32 + 2 * i, 33 + 2 * i, 32 * i))
        a.label("L_s1_nobias")
        s1_warm(a)
        a.label("L_s1_now")
    srd(a, 20, 46, WS_SIZE)
    srd(a, 24, 42, 3072)
    srd(a, 28, 44, 1280)
    a("s_cmp_lt_u32 s35, 4")
    a("s_cbranch_scc1 L_s1_compute")
    a("s_cmp_eq_u32 s35, 4")
    a("s_cbranch_scc1 L_s1_loader")
    a("s_cmp_eq_u32 s35, 6")
    a("s_cbranch_scc1 L_s1_aux")
    stage1_loader(a, 2)
    a.label("L_s1_loader")
    a("s_cmp_eq_u32 s34, 1")
    a("s_cbranch_scc1 L_s1_loaderB")
    stage1_loader(a, 0)
    a.label("L_s1_loaderB")
    stage1_loader(a, 1)
    a.label("L_s1_aux")
    stage1_aux(a)
    a.label("L_s1_compute")
    a("""
    s_mov_b32 s78, %s
    s_mov_b32 s79, %s
    s_mov_b32 s80, %s
    s_mov_b32 s81, %s
    """ % (LOG2E, LOG2E, EPS, EPS))
    a("""
    v_and_b32 v2, 15, v1             ; m
    v_lshrrev_b32 v3, 4, v1          ; g
    s_lshl_b32 s60, s52, 6
    v_add_u32 v4, s60, v2
    v_lshlrev_b32 v4, 7, v4
    v_lshrrev_b32 v5, 1, v2
    v_xor_b32 v5, v5, v3
    v_lshlrev_b32 v6, 4, v5
    v_add_u32 v105, v4, v6
    v_xor_b32 v5, 4, v5
    v_lshlrev_b32 v6, 4, v5
    v_add_u32 v106, v4, v6
    v_lshrrev_b32 v4, 2, v1
    v_and_b32 v4, 3, v4              ; r
    v_and_b32 v5, 3, v1
    v_lshlrev_b32 v5, 3, v5          ; c*8
    v_lshrrev_b32 v6, 1, v3
    v_lshlrev_b32 v6, 4, v6
    v_and_b32 v7, 1, v3              ; g&1
    v_lshlrev_b32 v2, 2, v7
    v_add3_u32 v6, v6, v2, v4        ; pil
    s_cmp_eq_u32 s34, 1
    s_cbranch_scc1 L_s1_typeB
    """)
    for typ in (0, 1):
        if typ == 1:
            a.label("L_s1_typeB")
        stage1_type(a, typ)
    a.label("L_s1_end")
    a("s_endpgm")

def stage1_transposer_old(a):
    a("""
    s_lshl_b32 s60, s2, 2
    s_add_u32 s60, s60, s35
    s_cmp_ge_u32 s60, 720
    s_cbranch_scc1 L_s1_tr_done
    s_lshl_b32 s61, s35, 12
    s_add_u32 s61, s61, %d                   ; scratch base
    v_lshrrev_b32 v2, 3, v1                  ; lr
    v_and_b32 v4, 7, v1
    v_lshrrev_b32 v5, 4, v1
    v_lshlrev_b32 v5, 1, v5
    v_xor_b32 v6, v4, v5
    v_lshlrev_b32 v6, 4, v6                  ; colpart
    v_and_b32 v3, 3, v2
    v_lshrrev_b32 v4, 2, v2                  ; lr>>2
    s_cmp_ge_u32 s60, 480
    s_cbranch_scc1 L_s1_tr_wo
    """ % (3 * S1_BUF))
    srd(a, 72, 68, 1966080)
    a("""
    s_mul_i32 s62, s60, 6554
    s_lshr_b32 s62, s62, 16                  ; ks = u/10
    s_mul_i32 s63, s62, 10
    s_sub_u32 s63, s60, s63                  ; cb
    s_mul_i32 s70, s62, %d
    s_lshl_b32 s71, s63, 7
    s_add_u32 s70, s70, s71                  ; src soffset
    s_mul_i32 s71, s62, 40
    s_lshl_b32 s63, s63, 2
    s_add_u32 s71, s71, s63
    s_lshl_b32 s71, s71, 10
    s_add_u32 s71, s71, 0x%x                 ; dst offset
    v_lshlrev_b32 v5, 3, v4
    v_add_u32 v5, v5, v3
    v_mul_u32_u24 v5, 1280, v5
    v_add_u32 v7, v5, v6
    """ % (32 * 1280, WS_W2F))
    for i in range(4):
        a("s_add_u32 m0, s61, %d" % (i * 1024))
        a("s_add_u32 s64, s70, %d" % ((16 * (i >> 1) + 4 * (i & 1)) * 1280))
        a("buffer_load_dwordx4 v7, s[72:75], s64 offen lds")
    a("s_branch L_s1_tr_go")
    a.label("L_s1_tr_wo")
    srd(a, 72, 66, 819200)
    a("""
    s_sub_u32 s60, s60, 480
    s_mul_i32 s62, s60, 6554
    s_lshr_b32 s62, s62, 16                  ; st = u/10 (0..23)
    s_mul_i32 s63, s62, 10
    s_sub_u32 s63, s60, s63                  ; cb
    s_mul_i32 s71, s62, 40
    s_lshl_b32 s64, s63, 2
    s_add_u32 s71, s71, s64
    s_lshl_b32 s71, s71, 10
    s_add_u32 s71, s71, 0x%x                 ; dst offset
    s_mul_i32 s64, s62, 21846
    s_lshr_b32 s64, s64, 16                  ; wg8 = st/3
    s_mul_i32 s70, s64, 3
    s_sub_u32 s62, s62, s70                  ; step = st%%3
    s_mul_i32 s70, s64, %d                   ; 80*wg8 rows
    s_lshl_b32 s63, s63, 7
    s_add_u32 s70, s70, s63
    s_cmp_eq_u32 s62, 2
    s_cbranch_scc1 L_s1_tr_wo2
    s_mul_i32 s62, s62, %d                   ; 40 rows per pair step
    s_add_u32 s70, s70, s62
    v_mul_u32_u24 v5, 1280, v2
    v_add_u32 v7, v5, v6
    """ % (WS_WOF, 80 * 1280, 40 * 1280))
    for i in range(4):
        row = 20 * (i & 1) + 8 * ((i >> 1) & 1)
        a("s_add_u32 m0, s61, %d" % (i * 1024))
        a("s_add_u32 s64, s70, %d" % (row * 1280))
        a("buffer_load_dwordx4 v7, s[72:75], s64 offen lds")
    a("s_branch L_s1_tr_go")
    a.label("L_s1_tr_wo2")
    a("""
    v_mul_u32_u24 v5, 20, v4
    v_add_u32 v5, v5, v3
    v_mul_u32_u24 v5, 1280, v5
    v_add_u32 v7, v5, v6
    """)
    for i in range(4):
        row = 20 * (2 * ((i >> 1) & 1)) + 16
        a("s_add_u32 m0, s61, %d" % (i * 1024))
        a("s_add_u32 s64, s70, %d" % (row * 1280))
        a("buffer_load_dwordx4 v7, s[72:75], s64 offen lds")
    a.label("L_s1_tr_go")
    a("""
    v_lshrrev_b32 v3, 4, v1
    v_lshrrev_b32 v4, 2, v1
    v_and_b32 v4, 3, v4
    v_and_b32 v5, 3, v1
    v_lshlrev_b32 v5, 3, v5
    v_lshrrev_b32 v6, 1, v3
    v_lshlrev_b32 v6, 4, v6
    v_and_b32 v7, 1, v3
    v_lshlrev_b32 v7, 2, v7
    v_add3_u32 v6, v6, v7, v4
    v_lshrrev_b32 v7, 1, v6
    v_and_b32 v7, 3, v7
    v_lshlrev_b32 v6, 7, v6
    v_add3_u32 v6, v6, v5, s61
    v_lshlrev_b32 v2, 4, v1
    s_waitcnt vmcnt(0)
    """)
    for t in range(4):
        a("v_xor_b32 v4, %d, v7" % t)
        a("v_lshl_add_u32 v4, v4, 5, v6")
        a("ds_read_b64_tr_b16 v[%d:%d], v4" % (8 + 4 * t, 9 + 4 * t))
        a("ds_read_b64_tr_b16 v[%d:%d], v4 offset:1024" % (10 + 4 * t, 11 + 4 * t))
    a("s_waitcnt lgkmcnt(0)")
    for t in range(4):
        a("buffer_store_dwordx4 %s, v2, s[20:23], s71 offen offset:%d" % (vr(8 + 4 * t), t * 1024))
    a("s_nop 1")
    a.label("L_s1_tr_done")


def stage1_aux(a):
    SCR = 3 * S1_BUF
    a("v_lshlrev_b32 v2, 4, v1")
    a("s_getpc_b64 s[60:61]")
    a.label("L_s1_pc")
    a("s_sub_u32 s60, s60, L_s1_pc-s1_kernel")
    a("s_subb_u32 s61, s61, 0")
    a("s_lshl_b32 s62, s49, 10")
    a("v_add_u32 v3, s62, v2")
    a("global_load_dwordx4 v[100:103], v3, s[60:61]")
    a("s_add_u32 s62, s62, 32768")
    a("s_cmp_ge_u32 s62, L_code_end-s1_kernel-1024")
    a("s_cbranch_scc1 L_s1_nopf2")
    a("v_add_u32 v3, s62, v2")
    a("global_load_dwordx4 v[100:103], v3, s[60:61]")
    a.label("L_s1_nopf2")
    a("s_mov_b32 m0, %d" % (SCR + 12288))
    a("s_nop 0")
    a("buffer_load_dwordx4 v2, s[28:31], 0 offen lds")
    a("buffer_load_dwordx4 v2, s[28:31], 0 offen offset:1024 lds")
    a("s_cmp_ge_u32 s2, 48")
    a("s_cbranch_scc1 L_s1_noz")
    a("v_pk_mov_b32 v[8:9], -1, -1")
    a("v_pk_mov_b32 v[10:11], -1, -1")
    a("s_lshl_b32 s60, s2, 10")
    a("s_add_u32 s60, s60, 0x%x" % WS_KVT)
    a("buffer_store_dwordx4 v[8:11], v2, s[20:23], s60 offen")
    a.label("L_s1_noz")
    a("s_waitcnt vmcnt(0)")
    a("s_barrier")
    srd(a, 72, 68, 1966080)
    srd(a, 76, 66, 819200)
    a("""
    v_lshrrev_b32 v2, 3, v1                  ; lr
    v_and_b32 v4, 7, v1
    v_lshrrev_b32 v5, 4, v1
    v_lshlrev_b32 v5, 1, v5
    v_xor_b32 v6, v4, v5
    v_lshlrev_b32 v6, 4, v6                  ; colpart
    v_and_b32 v3, 3, v2
    v_lshrrev_b32 v4, 2, v2                  ; lr>>2
    v_lshlrev_b32 v5, 3, v4
    v_add_u32 v5, v5, v3
    v_mul_u32_u24 v5, 1280, v5
    v_add_u32 v7, v5, v6                     ; voff w2
    v_mul_u32_u24 v5, 1280, v2
    v_add_u32 v8, v5, v6
    v_mul_u32_u24 v5, 20, v4
    v_add_u32 v5, v5, v3
    v_mul_u32_u24 v5, 1280, v5
    v_add_u32 v9, v5, v6
    """)
    for n in range(3):
        D = 82 + n
        a("s_mul_i32 s60, s2, 3")
        a("s_add_u32 s60, s60, %d" % n)
        a("s_mov_b32 s%d, -1" % D)
        a("s_cmp_ge_u32 s60, 680")
        a("s_cbranch_scc1 L_s1_tr_done%d" % n)
        a("s_cmp_ge_u32 s60, 480")
        a("s_cbranch_scc1 L_s1_tr_wo%d" % n)
        a("""
        s_mul_i32 s62, s60, 6554
        s_lshr_b32 s62, s62, 16
        s_mul_i32 s63, s62, 10
        s_sub_u32 s63, s60, s63
        s_mul_i32 s70, s62, %d
        s_lshl_b32 s71, s63, 7
        s_add_u32 s70, s70, s71
        s_mul_i32 s71, s62, 40
        s_lshl_b32 s63, s63, 2
        s_add_u32 s71, s71, s63
        s_lshl_b32 s71, s71, 10
        s_add_u32 s%d, s71, 0x%x
        """ % (32 * 1280, D, WS_W2F))
        for i in range(4):
            a("s_mov_b32 m0, %d" % (SCR + n * 4096 + i * 1024))
            a("s_add_u32 s64, s70, %d" % ((16 * (i >> 1) + 4 * (i & 1)) * 1280))
            a("buffer_load_dwordx4 v7, s[72:75], s64 offen lds")
        a("s_branch L_s1_tr_done%d" % n)
        a.label("L_s1_tr_wo%d" % n)
        a("""
        s_sub_u32 s60, s60, 480
        s_mul_i32 s62, s60, 6554
        s_lshr_b32 s62, s62, 16
        s_mul_i32 s63, s62, 10
        s_sub_u32 s63, s60, s63
        s_mul_i32 s71, s62, 40
        s_lshl_b32 s64, s63, 2
        s_add_u32 s71, s71, s64
        s_lshl_b32 s71, s71, 10
        s_add_u32 s%d, s71, 0x%x
        s_mul_i32 s64, s62, 13108
        s_lshr_b32 s64, s64, 16
        s_mul_i32 s70, s64, 5
        s_sub_u32 s62, s62, s70
        s_mul_i32 s70, s64, %d
        s_lshl_b32 s63, s63, 7
        s_add_u32 s70, s70, s63
        s_cmp_eq_u32 s62, 4
        s_cbranch_scc1 L_s1_tr_wl%d
        s_mul_i32 s62, s62, %d
        s_add_u32 s70, s70, s62
        """ % (D, WS_WOF, 160 * 1280, n, 40 * 1280))
        for i in range(4):
            row = 20 * (i & 1) + 8 * ((i >> 1) & 1)
            a("s_mov_b32 m0, %d" % (SCR + n * 4096 + i * 1024))
            a("s_add_u32 s64, s70, %d" % (row * 1280))
            a("buffer_load_dwordx4 v8, s[76:79], s64 offen lds")
        a("s_branch L_s1_tr_done%d" % n)
        a.label("L_s1_tr_wl%d" % n)
        for i in range(4):
            row = 20 * (4 * (i & 1) + 2 * ((i >> 1) & 1)) + 16
            a("s_mov_b32 m0, %d" % (SCR + n * 4096 + i * 1024))
            a("s_add_u32 s64, s70, %d" % (row * 1280))
            a("buffer_load_dwordx4 v9, s[76:79], s64 offen lds")
        a.label("L_s1_tr_done%d" % n)
    a("s_barrier")
    a("s_barrier")
    a("s_barrier")
    a("s_waitcnt vmcnt(0)")
    a("""
    v_lshrrev_b32 v3, 4, v1
    v_lshrrev_b32 v4, 2, v1
    v_and_b32 v4, 3, v4
    v_and_b32 v5, 3, v1
    v_lshlrev_b32 v5, 3, v5
    v_lshrrev_b32 v6, 1, v3
    v_lshlrev_b32 v6, 4, v6
    v_and_b32 v7, 1, v3
    v_lshlrev_b32 v7, 2, v7
    v_add3_u32 v6, v6, v7, v4
    v_lshrrev_b32 v7, 1, v6
    v_and_b32 v7, 3, v7
    v_lshlrev_b32 v6, 7, v6
    v_add_u32 v6, v6, v5
    v_add_u32 v6, %d, v6
    v_lshlrev_b32 v2, 4, v1
    """ % SCR)
    for t in range(4):
        a("v_xor_b32 v4, %d, v7" % t)
        a("v_lshl_add_u32 v%d, v4, 5, v6" % (10 + t))
    for n in range(3):
        for t in range(4):
            b = 104 + 16 * n + 4 * t
            a("ds_read_b64_tr_b16 v[%d:%d], v%d offset:%d" % (b, b + 1, 10 + t, n * 4096))
            a("ds_read_b64_tr_b16 v[%d:%d], v%d offset:%d" % (b + 2, b + 3, 10 + t, n * 4096 + 1024))
    a("s_waitcnt lgkmcnt(0)")
    for n in range(3):
        a("s_cmp_eq_u32 s%d, -1" % (82 + n))
        a("s_cbranch_scc1 L_s1_tr_skip%d" % n)
        for t in range(4):
            a("buffer_store_dwordx4 %s, v2, s[20:23], s%d offen offset:%d" % (vr(104 + 16 * n + 4 * t), 82 + n, t * 1024))
        a.label("L_s1_tr_skip%d" % n)
    for i in range(7):
        a("s_barrier")
    a("s_endpgm")


def stage1_lastarriver(a, T):
    a("""
    s_waitcnt vmcnt(0)
    s_barrier
    s_cmp_lg_u32 s35, 0
    s_cbranch_scc1 L_s1_la_wait_%s
    v_mov_b32 v4, 1
    s_lshl_b32 s63, s33, 2
    v_mov_b32 v5, s63
    s_mov_b64 s[72:73], exec
    s_mov_b64 exec, 1
    buffer_atomic_add v4, v5, s[4:7], 0 offen sc0 sc1
    s_waitcnt vmcnt(0)
    v_mov_b32 v5, 0x%x
    ds_write_b32 v5, v4
    s_waitcnt lgkmcnt(0)
    s_mov_b64 exec, s[72:73]
    """ % (T, 3 * S1_BUF + 12288))
    a.label("L_s1_la_wait_%s" % T)
    a("""
    s_barrier
    v_mov_b32 v5, 0x%x
    ds_read_b32 v4, v5
    s_waitcnt lgkmcnt(0)
    v_readfirstlane_b32 s63, v4
    s_nop 3
    s_cmp_lg_u32 s63, 15
    s_cbranch_scc1 L_s1_la_done_%s
    ; ---- reduce head h = 4jj + w : lane t<63: e=t/3, g'=t%%3
    v_mul_u32_u24 v4, 171, v1
    v_lshrrev_b32 v4, 9, v4                  ; e
    v_mul_u32_u24 v5, 3, v4
    v_sub_u32 v5, v1, v5                     ; g'
    v_mul_u32_u24 v6, 80, v4
    v_lshl_add_u32 v6, v5, 5, v6
    v_add_u32 v7, 16, v6
    v_mov_b32 v8, 0x7000000
    v_cmp_eq_u32 vcc, 2, v5
    s_lshl_b32 s64, s33, 2
    s_add_u32 s64, s64, s35                  ; head
    s_mul_i32 s66, s64, 1680
    s_add_u32 s66, s66, 0x%x
    v_cndmask_b32 v7, v7, v8, vcc
    v_cmp_gt_u32 vcc, 63, v1
    s_and_saveexec_b64 s[72:73], vcc
    """ % (3 * S1_BUF + 12288, T, WS_P))
    for rb in range(16):
        a("buffer_load_dwordx4 %s, v6, s[20:23], s66 offen sc1" % vr(16 + 8 * rb))
        a("buffer_load_dwordx4 %s, v7, s[20:23], s66 offen sc1" % vr(20 + 8 * rb))
        if rb < 15:
            a("s_add_u32 s66, s66, %d" % (32 * 1680))
    a("""
    s_lshl_b32 s67, s35, 2
    s_sub_u32 s68, s67, 16
    v_add_u32 v8, s68, v4                    ; 4w + e - 16
    v_and_b32 v8, 15, v8
    v_add_u32 v8, 48, v8                     ; +768/16
    v_cmp_gt_u32 vcc, 16, v4
    s_mul_i32 s66, s64, 1536
    s_add_u32 s66, s66, 0x%x
    v_cndmask_b32 v8, v8, v4, vcc
    v_lshlrev_b32 v8, 4, v8
    v_lshl_add_u32 v8, v5, 8, v8
    """ % WS_KVT)
    for rb in range(1, 16):
        a("s_waitcnt vmcnt(%d)" % (30 - 2 * rb))
        for i in range(0, 8, 2):
            a("v_pk_add_f32 v[%d:%d], v[%d:%d], v[%d:%d]" % (16 + i, 17 + i, 16 + i, 17 + i, 16 + 8 * rb + i, 17 + 8 * rb + i))
    for i in range(4):
        a("v_cvt_pk_bf16_f32 v%d, v%d, v%d" % (12 + i, 16 + 2 * i, 17 + 2 * i))
    a("buffer_store_dwordx4 v[12:15], v8, s[20:23], s66 offen")
    a("s_mov_b64 exec, s[72:73]")
    a.label("L_s1_la_done_%s" % T)


def stage1_gate(a):
    a("""
    s_lshl_b32 s60, s32, 7
    s_lshl_b32 s61, s33, 4
    s_add_u32 s60, s60, s61
    s_lshl_b32 s61, s35, 2
    s_add_u32 s60, s60, s61
    v_lshrrev_b32 v2, 5, v1
    v_add_u32 v2, s60, v2
    v_lshlrev_b32 v100, 2, v2
    v_add_u32 v100, 0x%x, v100
    v_mul_u32_u24 v2, 1280, v2
    v_and_b32 v3, 31, v1
    v_cmp_eq_u32 s[74:75], 0, v3
    v_mul_u32_u24 v3, 40, v3
    v_add_u32 v2, v2, v3
    buffer_load_dwordx4 v[20:23], v3, s[28:31], 0 offen
    buffer_load_dwordx4 v[24:27], v3, s[28:31], 0 offen offset:16
    buffer_load_dwordx2 v[28:29], v3, s[28:31], 0 offen offset:32
    """ % WS_G)
    for p in range(2):
        b = 32 + 12 * p
        a("buffer_load_dwordx4 %s, v2, s[8:11], 0 offen offset:%d" % (vr(b), p * 2560))
        a("buffer_load_dwordx4 %s, v2, s[8:11], 0 offen offset:%d" % (vr(b + 4), p * 2560 + 16))
        a("buffer_load_dwordx2 v[%d:%d], v2, s[8:11], 0 offen offset:%d" % (b + 8, b + 9, p * 2560 + 32))

def stage1_gate2(a, nst):
    a("s_waitcnt vmcnt(%d)" % nst)
    for i in range(10):
        a("v_lshlrev_b32 v%d, 16, v%d" % (60 + 2 * i, 20 + i))
        a("v_and_b32 v%d, 0xffff0000, v%d" % (61 + 2 * i, 20 + i))
    a("v_pk_mov_b32 v[96:97], 0, 0")
    for i in range(10):
        for p in range(2):
            b = 32 + 12 * p; t = 8 + 4 * p
            a("v_lshlrev_b32 v%d, 16, v%d" % (t, b + i))
            a("v_and_b32 v%d, 0xffff0000, v%d" % (t + 1, b + i))
        for p in range(2):
            t = 8 + 4 * p
            a("v_pk_mul_f32 v[%d:%d], v[%d:%d], v[%d:%d]" % (t, t + 1, t, t + 1, 60 + 2 * i, 61 + 2 * i))
        for p in range(2):
            t = 8 + 4 * p
            a("v_cvt_pk_bf16_f32 v%d, v%d, v%d" % (t, t, t + 1))
        for p in range(2):
            t = 8 + 4 * p
            a("v_lshlrev_b32 v%d, 16, v%d" % (t + 1, t))
            a("v_and_b32 v%d, 0xffff0000, v%d" % (t, t))
        for p in range(2):
            t = 8 + 4 * p
            a("v_add_f32 v%d, v%d, v%d" % (96 + p, 96 + p, t + 1))
        for p in range(2):
            t = 8 + 4 * p
            a("v_add_f32 v%d, v%d, v%d" % (96 + p, 96 + p, t))
    for mode in ("quad_perm:[1,0,3,2]", "quad_perm:[2,3,0,1]", "row_half_mirror", "row_mirror"):
        a("s_nop 1")
        for p in range(2):
            a("v_add_f32_dpp v%d, v%d, v%d %s row_mask:0xf bank_mask:0xf" % (96 + p, 96 + p, 96 + p, mode))
    for p in range(2):
        a("ds_swizzle_b32 v%d, v%d offset:0x401F" % (98 + p, 96 + p))
    a("s_waitcnt lgkmcnt(0)")
    for ins in ("v_add_f32 v{r}, v{r}, v{q}", "v_cvt_pk_bf16_f32 v{r}, v{r}, v{r}", "v_lshlrev_b32 v{r}, 16, v{r}", "v_mul_f32 v{r}, 0xbfb8aa3b, v{r}",
                "v_exp_f32 v{r}, v{r}", "NOP", "v_add_f32 v{r}, 1.0, v{r}", "v_rcp_f32 v{r}, v{r}", "NOP", "v_cvt_pk_bf16_f32 v{r}, v{r}, v{r}", "v_lshlrev_b32 v{r}, 16, v{r}"):
        if ins == "NOP":
            a("s_nop 0"); continue
        for p in range(2):
            a(ins.format(r=96 + p, q=98 + p))
    a("s_and_saveexec_b64 s[72:73], s[74:75]")
    for p in range(2):
        a("buffer_store_dword v%d, v100, s[20:23], 0 offen offset:%d" % (96 + p, p * 8))
    a("s_mov_b64 exec, s[72:73]")

def s1_warm(a):
    if int(os.environ.get("WARM", "1")):
        a("v_lshlrev_b32 v2, 4, v1")
        for (srdn, S, n) in ((8, 10240, 3), (12, 9600, 3), (16, 7680, 2)):
            a("s_mul_i32 s60, s2, %d" % S)
            a("s_mul_i32 s61, s35, %d" % (S // 4))
            a("s_add_u32 s60, s60, s61")
            for i in range(n):
                a("buffer_load_dwordx4 v[240:243], v2, s[%d:%d], s60 offen offset:%d" % (srdn, srdn + 3, i * 1024))

def s1_dma(typ):
    L = []
    if typ == 2:
        for i in range(16):
            L.append("s_add_u32 m0, s57, %d" % (i * 1024))
            L.append("s_add_u32 s64, s54, %d" % (i * 10240))
            L.append("buffer_load_dwordx4 v%d, s[8:11], s64 offen lds" % (96 + (i & 1)))
        L.append("s_add_u32 s54, s54, 128")
    elif typ == 0:
        for i in range(28):
            L.append("s_add_u32 m0, s57, %d" % (16384 + i * 1024))
            L.append("s_add_u32 s64, s55, %d" % ((i // 7) * 16 * 3840))
            L.append("buffer_load_dwordx4 v%d, s[12:15], s64 offen lds" % (98 + i % 7))
        L.append("s_add_u32 s55, s55, %d" % (64 * 3840))
    else:
        for i in range(24):
            L.append("s_add_u32 m0, s57, %d" % (16384 + i * 1024))
            L.append("s_add_u32 s64, s56, %d" % ((i // 6) * 16 * 3072))
            L.append("buffer_load_dwordx4 v%d, s[16:19], s64 offen lds" % (98 + i % 6))
        for i in range(2):
            L.append("s_add_u32 m0, s57, %d" % (16384 + 24576 + i * 1024))
            L.append("s_add_u32 s64, s55, %d" % (i * 32 * 3840))
            L.append("buffer_load_dwordx4 v104, s[12:15], s64 offen lds")
        L.append("s_add_u32 s55, s55, %d" % (64 * 3840))
        L.append("s_add_u32 s56, s56, %d" % (64 * 3072))
    L.append("s_add_u32 s57, s57, %d" % S1_BUF)
    L.append("s_cmp_eq_u32 s57, %d" % (3 * S1_BUF))
    L.append("s_cselect_b32 s57, 0, s57")
    return L

def stage1_loader(a, typ):
    T = "ABX"[typ]
    N = [28, 26, 16][typ]
    if int(os.environ.get("LPRIO", "0")): a("s_setprio 2")
    if typ == 2:
        a("""
        v_lshrrev_b32 v2, 3, v1
        v_mul_u32_u24 v2, 1280, v2
        v_and_b32 v3, 7, v1
        v_lshrrev_b32 v4, 4, v1
        v_xor_b32 v5, v3, v4
        v_lshlrev_b32 v6, 4, v5
        v_add_u32 v96, v2, v6
        v_xor_b32 v5, 4, v5
        v_lshlrev_b32 v6, 4, v5
        v_add_u32 v97, v2, v6
        s_lshl_b32 s60, s32, 7
        s_mul_i32 s54, s60, 1280
        """)
    else:
        a("s_mov_b32 s55, 0")
        a("s_mov_b32 s56, 0")
    if typ == 0:
        C = 28
        a("s_mov_b32 s67, %d" % ((2**32 + C - 1) // C))
        a("s_mul_i32 s68, s33, 160")
        a("s_add_u32 s69, s68, 1280")
        a("s_add_u32 s70, s68, %d" % (2560 - 160))
        a("s_lshl_b32 s71, s33, 7")
        a("s_sub_u32 s71, s71, 320")
        a("v_mov_b32 v8, s69")
        a("v_mov_b32 v9, s70")
        a("v_mov_b32 v10, s71")
        for i in range(7):
            a("v_add_u32 v2, %d, v1" % (64 * i))
            a("v_mul_hi_u32 v3, v2, s67")
            a("v_mul_u32_u24 v4, %d, v3" % C)
            a("v_sub_u32 v4, v2, v4")
            a("v_and_b32 v5, 4, v3")
            a("v_lshrrev_b32 v5, 1, v5")
            a("v_xor_b32 v4, v4, v5")
            a("v_cmp_gt_u32 vcc, 10, v4")
            a("v_cmp_gt_u32 s[72:73], 20, v4")
            swap23_v(a, 5, 3, 6)
            a("v_mul_u32_u24 v5, 3840, v5")
            a("v_cndmask_b32 v6, v9, v8, vcc")
            a("v_cndmask_b32 v6, v10, v6, s[72:73]")
            a("v_lshlrev_b32 v4, 4, v4")
            a("v_add3_u32 v%d, v5, v6, v4" % (98 + i))
    elif typ == 1:
        C = 24
        a("s_mov_b32 s67, %d" % ((2**32 + C - 1) // C))
        a("s_mul_i32 s68, s33, 384")
        for i in range(6):
            a("v_add_u32 v2, %d, v1" % (64 * i))
            a("v_mul_hi_u32 v3, v2, s67")
            a("v_mul_u32_u24 v4, %d, v3" % C)
            a("v_sub_u32 v4, v2, v4")
            a("v_and_b32 v5, 6, v3")
            a("v_xor_b32 v4, v4, v5")
            swap23_v(a, 5, 3, 6)
            a("v_mul_u32_u24 v5, 3072, v5")
            a("v_lshlrev_b32 v4, 4, v4")
            a("v_add3_u32 v%d, v5, s68, v4" % (98 + i))
        a("v_lshrrev_b32 v2, 1, v1")
        a("v_and_b32 v3, 15, v2")
        swap23_v(a, 5, 3, 6)
        a("v_and_b32 v3, 16, v2")
        a("v_add_u32 v5, v5, v3")
        a("v_mul_u32_u24 v5, 3840, v5")
        a("v_and_b32 v4, 1, v1")
        a("v_lshlrev_b32 v4, 4, v4")
        a("s_lshl_b32 s68, s33, 5")
        a("s_add_u32 s68, s68, 1024")
        a("v_add3_u32 v104, v5, s68, v4")
    stamp(a, 1)
    a.label("L_s1_ld_%s" % T)
    for s in s1_dma(typ):
        if int(os.environ.get("NODMA", "0")) and "buffer_load" in s: continue
        a(s)
    a("s_add_u32 s59, s59, 1")
    a("s_cmp_eq_u32 s59, 1")
    a("s_cbranch_scc1 L_s1_ld_%s" % T)
    if STAMP:
        a("s_cmp_lg_u32 s59, 2")
        a("s_cbranch_scc1 L_s1_ldst_%s" % T)
        stamp(a, 2)
        a("s_waitcnt vmcnt(%d)" % N)
        stamp(a, 3)
        a.label("L_s1_ldst_%s" % T)
    a("s_waitcnt vmcnt(%d)" % N)
    a("s_barrier")
    a("s_cmp_lt_u32 s59, 10")
    a("s_cbranch_scc1 L_s1_ld_%s" % T)
    a("s_waitcnt vmcnt(0)")
    a("s_barrier")
    a("s_barrier")
    stamp(a, 4)
    stamp_flush(a, 0, 20, 35)
    a("s_endpgm")

def stage1_type(a, typ):
    T = "AB"[typ]
    if typ == 0:
        a("""
        v_mul_u32_u24 v2, 448, v6
        v_add_u32 v2, v2, v5
        v_add_u32 v2, 16384, v2
        v_lshlrev_b32 v7, 5, v7
        v_add_u32 v107, v2, v7
        v_sub_u32 v108, v2, v7
        """)
        nb = 2
    else:
        a("""
        v_mul_u32_u24 v2, 384, v6
        v_add_u32 v2, v2, v5
        v_add_u32 v2, 16384, v2
        v_lshrrev_b32 v7, 1, v6
        v_and_b32 v7, 3, v7
        """)
        for j in range(4):
            a("v_xor_b32 v3, %d, v7" % j)
            a("v_subrev_u32 v3, %d, v3" % j)
            a("v_lshlrev_b32 v3, 5, v3")
            a("v_add_u32 v%d, v2, v3" % (107 + j))
        a("v_lshlrev_b32 v2, 5, v6")
        a("v_add_u32 v2, v2, v5")
        a("v_add_u32 v111, %d, v2" % (16384 + 24576))
        nb = 5
    a("s_cmp_eq_u32 s53, 1")
    a("s_cbranch_scc1 L_s1_%s1" % T)
    for wc in (0, 1):
        if wc == 1:
            a.label("L_s1_%s1" % T)
        stage1_wave(a, typ, wc, nb)

def s1_tiles(typ, wc):
    if typ == 0:
        return [("k", 0), ("k", 1), ("k", 2), ("v", 0), ("v", 1), ("q", 0), ("q", 1)] if wc == 0 else \
               [("k", 3), ("k", 4), ("v", 2), ("v", 3), ("v", 4), ("q", 2), ("q", 3)]
    else:
        return [("h", i) for i in range(6)] + [("q", 0)] if wc == 0 else [("h", i) for i in range(6, 12)] + [("g", 0)]

def s1_reads(typ, tiles, ks, aset, bset):
    L = []
    for ti, (kind, idx) in enumerate(tiles):
        if kind == "g":
            L.append("ds_read_b128 %s, v119 offset:%d" % (vr(bset + 4 * ti), 64 * ks))
            continue
        for hh in range(2):
            dst = bset + 4 * ti + 2 * hh
            if typ == 0:
                slot = {"k": 0, "v": 5, "q": 10}[kind] + idx
                base = 114 + (slot & 1)
                off = (32 * ks + 8 * hh) * 448 + slot * 32
            else:
                if kind == "q":
                    base = 118
                    off = (32 * ks + 8 * hh) * 32
                else:
                    base = 114 + (idx & 3)
                    off = (32 * ks + 8 * hh) * 384 + idx * 32
            L.append("ds_read_b64_tr_b16 v[%d:%d], v%d offset:%d" % (dst, dst + 1, base, off))
        if ti == 0:
            for rt in range(4):
                L.append("ds_read_b128 %s, v%d offset:%d" % (vr(aset + 4 * rt), 112 + ks, rt * 2048))
    return L

def s1_mfmas(tiles, aset, bset):
    L = []
    for ti, (kind, idx) in enumerate(tiles):
        for rt in range(4):
            acc = 128 + (ti * 4 + rt) * 4
            x = vr(aset + 4 * rt); w = vr(bset + 4 * ti)
            if kind in ("k", "v"):
                L.append("v_mfma_f32_16x16x32_bf16 %s, %s, %s, %s" % (vr(acc), x, w, vr(acc)))
            else:
                L.append("v_mfma_f32_16x16x32_bf16 %s, %s, %s, %s" % (vr(acc), w, x, vr(acc)))
    return L

def s1_setbase(nb):
    L = ["v_add_u32 v112, s58, v105", "v_add_u32 v113, s58, v106"]
    for j in range(nb):
        L.append("v_add_u32 v%d, s58, v%d" % (114 + j, 107 + j))
    return L

def stage1_wave(a, typ, wc, nb):
    T = "AB"[typ] + str(wc)
    tiles = s1_tiles(typ, wc)
    if typ == 1:
        a("s_waitcnt vmcnt(8)")
    for ti, (kind, idx) in enumerate(tiles):
        acc = 128 + (ti * 4) * 4
        if kind == "h":
            b = 32 + 2 * (idx % 6)
            a("v_lshlrev_b32 v%d, 16, v%d" % (acc, b))
            a("v_and_b32 v%d, 0xffff0000, v%d" % (acc + 1, b))
            a("v_lshlrev_b32 v%d, 16, v%d" % (acc + 2, b + 1))
            a("v_and_b32 v%d, 0xffff0000, v%d" % (acc + 3, b + 1))
            for rt in range(1, 4):
                for i in (0, 2):
                    a("v_pk_mov_b32 v[%d:%d], v[%d:%d], v[%d:%d] op_sel:[0,1]" % (acc + 4 * rt + i, acc + 4 * rt + i + 1, acc + i, acc + i + 1, acc + i, acc + i + 1))
        elif kind in ("k", "q"):
            for r in range(0, 16, 2):
                a("v_pk_mov_b32 v[%d:%d], s[80:81], s[80:81] op_sel:[0,1]" % (acc + r, acc + r + 1))
        else:
            for r in range(0, 16, 2):
                a("v_pk_mov_b32 v[%d:%d], 0, 0" % (acc + r, acc + r + 1))
    for s in s1_setbase(nb):
        a(s)
    GT = (typ == 1 and wc == 1)
    if GT:
        a("v_lshrrev_b32 v119, 4, v1")
        a("v_lshlrev_b32 v119, 4, v119")
        a("v_add_u32 v119, %d, v119" % (3 * S1_BUF + 12288))
    if not EARLYW: s1_warm(a)
    stamp(a, 1)
    a("s_barrier")
    for s in s1_reads(typ, tiles, 0, 64, 8):
        a(s)
    a("s_waitcnt lgkmcnt(0)")
    stamp(a, 2)
    a.label("L_s1_loop_%s" % T)
    NOLDS = int(os.environ.get("NOLDS", "0"))
    interleave(a, s1_mfmas(tiles, 64, 8), [] if NOLDS else s1_reads(typ, tiles, 1, 80, 36))
    a("s_add_u32 s58, s58, %d" % S1_BUF)
    a("s_cmp_eq_u32 s58, %d" % (3 * S1_BUF))
    a("s_cselect_b32 s58, 0, s58")
    a("s_waitcnt lgkmcnt(0)")
    a("s_barrier")
    m = s1_mfmas(tiles, 80, 36)
    interleave(a, m, s1_setbase(nb) + (["v_add_u32 v119, 128, v119"] if GT else []) + ([] if NOLDS else s1_reads(typ, tiles, 0, 64, 8)))
    a("s_add_u32 s59, s59, 1")
    a("s_cmp_lt_u32 s59, 10")
    a("s_waitcnt lgkmcnt(0)")
    a("s_cbranch_scc1 L_s1_loop_%s" % T)
    stamp(a, 3)
    a("v_and_b32 v2, 15, v1")
    a("v_lshrrev_b32 v3, 4, v1")
    a("s_lshl_b32 s60, s32, 7")
    a("s_lshl_b32 s63, s52, 6")
    a("s_add_u32 s60, s60, s63")
    if typ == 1:
        a("s_lshl_b32 s63, s52, 8")
        a("v_lshl_add_u32 v6, v2, 2, s63")
        if wc == 1:
            gacc = 128 + 6 * 16
            a("s_nop 4")
            for ins in ("v_cvt_pk_bf16_f32 v{r}, v{g}, v{g}", "v_lshlrev_b32 v{r}, 16, v{r}", "v_mul_f32 v{r}, 0xbfb8aa3b, v{r}", "v_exp_f32 v{r}, v{r}", "NOP",
                        "v_add_f32 v{r}, 1.0, v{r}", "v_rcp_f32 v{r}, v{r}", "NOP", "v_cvt_pk_bf16_f32 v{r}, v{r}, v{r}", "v_lshlrev_b32 v{r}, 16, v{r}",
                        "v_sub_f32 v{o}, 1.0, v{r}", "v_cvt_pk_bf16_f32 v{o}, v{o}, v{o}", "v_lshlrev_b32 v{o}, 16, v{o}"):
                if ins == "NOP":
                    a("s_nop 0"); continue
                for rt in range(4):
                    a(ins.format(r=21 + 2 * rt, o=20 + 2 * rt, g=gacc + 4 * rt))
            a("v_add_u32 v4, s60, v2")
            a("v_lshlrev_b32 v4, 2, v4")
            a("v_add_u32 v4, 0x%x, v4" % WS_G)
            a("v_cmp_eq_u32 vcc, 0, v3")
            a("s_and_saveexec_b64 s[72:73], vcc")
            for rt in range(4):
                a("ds_write_b32 v6, v%d offset:%d" % (20 + 2 * rt, rt * 64))
                a("buffer_store_dword v%d, v4, s[20:23], 0 offen offset:%d" % (21 + 2 * rt, rt * 64))
            a("s_mov_b64 exec, s[72:73]")
            a("s_waitcnt lgkmcnt(0)")
            a("s_barrier")
        else:
            a("s_barrier")
            for rt in range(4):
                a("ds_read_b32 v%d, v6 offset:%d" % (20 + 2 * rt, rt * 64))
            a("s_waitcnt lgkmcnt(0)")
    first_h = True; first_kv = True
    for ti, (kind, idx) in enumerate(tiles):
        if kind == "g":
            continue
        if kind == "h":
            if first_h:
                a("v_and_b32 v4, 1, v3")
                a("v_mul_u32_u24 v4, %d, v4" % HS)
                a("v_lshrrev_b32 v5, 1, v3")
                a("v_add_u32 v4, v4, v5")
                a("v_lshlrev_b32 v4, 8, v4")
                a("v_lshl_add_u32 v5, v2, 4, v4")
                a("s_lshr_b32 s63, s60, 4")
                a("s_mul_i32 s63, s63, %d" % HS)
                a("s_mul_i32 s64, s33, 24")
                a("s_add_u32 s63, s63, s64")
                a("s_add_u32 s63, s63, %d" % (12 * wc))
                a("s_lshl_b32 s63, s63, 8")
                a("s_add_u32 s63, s63, 0x%x" % WS_H)
                a("s_add_u32 s66, s63, %d" % (2 * HS * 256))
                first_h = False
            for p in range(2):
                accA = 128 + (ti * 4 + 2 * p) * 4
                accB = accA + 4
                for i in range(8):
                    a("v_max_f32 v%d, 0, v%d" % (accA + i, accA + i))
                for i in range(0, 8, 2):
                    a("v_pk_mul_f32 v[%d:%d], v[%d:%d], v[%d:%d]" % (accA + i, accA + i + 1, accA + i, accA + i + 1, accA + i, accA + i + 1))
                for i in range(0, 8, 2):
                    om = 20 + 2 * (2 * p + (i >> 2))
                    a("v_pk_mul_f32 v[%d:%d], v[%d:%d], v[%d:%d] op_sel_hi:[1,0]" % (accA + i, accA + i + 1, accA + i, accA + i + 1, om, om + 1))
                a("v_cvt_pk_bf16_f32 v%d, v%d, v%d" % (accA, accA, accA + 1))
                a("v_cvt_pk_bf16_f32 v%d, v%d, v%d" % (accA + 1, accA + 2, accA + 3))
                a("v_cvt_pk_bf16_f32 v%d, v%d, v%d" % (accA + 2, accB, accB + 1))
                a("v_cvt_pk_bf16_f32 v%d, v%d, v%d" % (accA + 3, accB + 2, accB + 3))
                a("s_nop 1")
                a("v_permlane16_swap_b32 v%d, v%d" % (accA, accA + 2))
                a("v_permlane16_swap_b32 v%d, v%d" % (accA + 1, accA + 3))
                a("buffer_store_dwordx4 %s, v5, s[20:23], s%d offen offset:%d" % (vr(accA), [63, 66][p], (idx % 6) * 512))
        elif kind == "q":
            if typ == 0:
                a("s_lshl_b32 s63, s33, 4")
                a("s_add_u32 s63, s63, %d" % (4 * idx))
            else:
                a("s_lshl_b32 s63, s33, 2")
                a("s_add_u32 s63, s63, 128")
            a("s_lshr_b32 s64, s60, 4")
            a("s_mul_i32 s64, s64, 160")
            a("s_add_u32 s63, s63, s64")
            a("s_lshl_b32 s63, s63, 7")
            a("s_add_u32 s63, s63, 0x%x" % WS_PQF)
            a("v_lshlrev_b32 v7, 3, v1")
            phi16(a, 128 + ti * 16, 96, 78, 80)
            for rt in range(4):
                acc = 128 + (ti * 4 + rt) * 4
                a("v_cvt_pk_bf16_f32 v%d, v%d, v%d" % (acc, acc, acc + 1))
                a("v_cvt_pk_bf16_f32 v%d, v%d, v%d" % (acc + 1, acc + 2, acc + 3))
                a("s_add_u32 s64, s63, %d" % (rt * 160 * 128))
                a("buffer_store_dwordx2 v[%d:%d], v7, s[20:23], s64 offen" % (acc, acc + 1))
            if typ == 0 and ti == 5:
                a("s_waitcnt lgkmcnt(0)")
                a("s_barrier")
                a("s_mul_i32 s63, s35, %d" % (20 * 272))
                a("v_mul_u32_u24 v5, 272, v2")
                a("v_lshlrev_b32 v6, 4, v3")
                a("v_add3_u32 v5, v5, v6, s63")
                for ks in range(4):
                    b = 16 + 16 * ks
                    a("ds_read_b128 %s, v5 offset:%d" % (vr(b), ks * 64))
                    a("ds_read_b128 %s, v5 offset:%d" % (vr(b + 4), ks * 64 + 16 * 272))
                    a("ds_read_b128 %s, v5 offset:%d" % (vr(b + 8), ks * 64 + 80 * 272))
                    a("ds_read_b128 %s, v5 offset:%d" % (vr(b + 12), ks * 64 + 96 * 272))

            if typ == 0 and ti == 6:
                a("v_cmp_eq_u32 vcc, 4, v2")
                a("v_mov_b32 v6, 0x3f803f80")
                a("s_waitcnt lgkmcnt(0)")
                for ks in range(4):
                    b = 16 + 16 * ks
                    for i in range(4):
                        a("v_cndmask_b32 v%d, v%d, v6, vcc" % (b + 12 + i, b + 12 + i))
                a("s_nop 1")
                for ks in range(4):
                    b = 16 + 16 * ks
                    c = lambda r: ("0" if ks == 0 else vr(r))
                    a("v_mfma_f32_16x16x32_bf16 v[80:83], %s, %s, %s" % (vr(b), vr(b + 8), c(80)))
                    a("v_mfma_f32_16x16x32_bf16 v[84:87], %s, %s, %s" % (vr(b), vr(b + 12), c(84)))
                    a("v_mfma_f32_16x16x32_bf16 v[88:91], %s, %s, %s" % (vr(b + 4), vr(b + 8), c(88)))
                    a("v_mfma_f32_16x16x32_bf16 v[92:95], %s, %s, %s" % (vr(b + 4), vr(b + 12), c(92)))
                a("s_lshl_b32 s63, s32, 5")
                a("s_lshl_b32 s64, s33, 2")
                a("s_add_u32 s63, s63, s64")
                a("s_add_u32 s63, s63, s35")
                a("s_mul_i32 s63, s63, 1680")
                a("s_add_u32 s63, s63, 0x%x" % WS_P)
                a("v_mul_u32_u24 v5, 80, v2")
                a("v_lshlrev_b32 v6, 4, v3")
                a("v_add_u32 v5, v5, v6")
                a("v_cmp_eq_u32 s[74:75], 0, v3")
                a("v_cmp_gt_u32 s[76:77], 5, v2")
                a("s_nop 7")
                a("buffer_store_dwordx4 v[80:83], v5, s[20:23], s63 offen")
                a("s_and_saveexec_b64 s[72:73], s[74:75]")
                a("buffer_store_dwordx4 v[88:91], v5, s[20:23], s63 offen offset:64")
                a("s_mov_b64 exec, s[76:77]")
                a("buffer_store_dwordx4 v[84:87], v5, s[20:23], s63 offen offset:1280")
                a("s_and_b64 exec, exec, s[74:75]")
                a("buffer_store_dwordx4 v[92:95], v5, s[20:23], s63 offen offset:1344")
                a("s_mov_b64 exec, s[72:73]")

        else:
            tc0 = 16 * idx + (80 if kind == "v" else 0)
            if first_kv:
                a("v_mul_u32_u24 v5, 272, v2")
                a("v_lshlrev_b32 v6, 3, v3")
                a("s_lshl_b32 s63, s52, 7")
                a("v_add3_u32 v5, v5, v6, s63")
                first_kv = False
            if kind == "k":
                phi16(a, 128 + ti * 16, 96, 78, 80)
            for rt in range(4):
                acc = 128 + (ti * 4 + rt) * 4
                a("v_cvt_pk_bf16_f32 v%d, v%d, v%d" % (acc, acc, acc + 1))
                a("v_cvt_pk_bf16_f32 v%d, v%d, v%d" % (acc + 1, acc + 2, acc + 3))
                a("ds_write_b64 v5, v[%d:%d] offset:%d" % (acc, acc + 1, tc0 * 272 + rt * 32))

    stamp(a, 4)
    stamp_flush(a, 0, 20, 35)
    dbg_end1(a)
    a("s_endpgm")

def stage2(a):
    NRT, NT = 4, 5
    a.raw(".globl s2_kernel\n.p2align 8\n.type s2_kernel,@function")
    a.label("s2_kernel")
    a("""
    s_cmp_ge_u32 s2, 256
    s_cbranch_scc1 L_s2_end
    """)
    stamp_start(a)
    a("""
    s_load_dwordx2 s[42:43], s[0:1], 56      ; b2
    s_load_dwordx4 s[44:47], s[0:1], 72
    s_load_dwordx2 s[38:39], s[0:1], 88      ; ws
    s_and_b32 s48, s2, 7
    s_lshr_b32 s49, s2, 3
    s_lshr_b32 s50, s48, 1
    s_lshl_b32 s50, s50, 3
    s_and_b32 s51, s49, 7
    s_add_u32 s50, s50, s51                  ; rb2 (0..31)
    s_and_b32 s52, s48, 1
    s_lshl_b32 s52, s52, 2
    s_lshr_b32 s53, s49, 3
    s_add_u32 s33, s52, s53                  ; cb (0..7)
    s_lshl_b32 s32, s50, 6                   ; row0
    s_lshl_b32 s34, s50, 2                   ; rt0
    v_and_b32 v1, 63, v0
    v_lshrrev_b32 v2, 6, v0
    v_lshlrev_b32 v4, 4, v1                  ; lane*16
    v_readfirstlane_b32 s35, v2
    v_and_b32 v2, 15, v1
    v_lshrrev_b32 v3, 4, v1
    s_waitcnt lgkmcnt(0)
    """)
    srd(a, 8, 38, WS_SIZE)
    srd(a, 20, 42, 1280)
    srd(a, 24, 44, 2621440)
    srd(a, 28, 46, 256)
    a("""
    s_cmp_ge_u32 s35, 4
    s_cbranch_scc1 L_s2_awave
    """)
    vm = []
    def V(ins, tag):
        vm.append(tag); return ins
    def waitvm(tag):
        idx = max(i for i, t in enumerate(vm) if t == tag)
        n = len(vm) - 1 - idx
        assert n <= 63, n
        return "s_waitcnt vmcnt(%d)" % n
    a("""
    s_mul_i32 s55, s34, """ + str(HS) + """
    s_mul_i32 s60, s35, 48
    s_add_u32 s55, s55, s60
    s_lshl_b32 s55, s55, 8                   ; A soffset
    s_add_u32 s55, s55, """ + hex(WS_H) + """
    s_mul_i32 s56, s35, 480
    s_mul_i32 s60, s33, 5
    s_add_u32 s56, s56, s60
    s_lshl_b32 s56, s56, 10
    s_add_u32 s56, s56, 0x%x                 ; B soffset
    s_mul_i32 s57, s35, 200
    s_add_u32 s57, s57, s60
    s_lshl_b32 s57, s57, 10
    s_add_u32 s57, s57, 0x%x                 ; WOF soffset
    v_add_u32 v5, 4096, v4
    ; rotate the K order among workgroups that share operands (L2 locality only)
    s_mul_i32 s59, s53, 3
    s_add_u32 s59, s59, s51
    s_lshr_b32 s60, s51, 1
    s_add_u32 s59, s59, s60                  ; 0..19
    s_cmp_ge_u32 s59, 12
    s_cselect_b32 s60, 12, 0
    s_mov_b32 s59, 0                         ; start step (rotation disabled)
    s_lshl_b32 s60, s59, 10
    s_add_u32 s55, s55, s60
    s_mul_i32 s60, s59, 40960
    s_add_u32 s56, s56, s60
    s_mov_b32 s66, %d
    s_mov_b32 s67, 1024
    s_mov_b32 s68, %d
    s_mov_b32 s69, 40960
    """ % (WS_W2F, WS_WOF, (1024 - 12288) & 0xffffffff, (40960 - 12 * 40960) & 0xffffffff))
    VA = 232
    for rt in range(NRT):
        a("v_add_u32 v%d, %d, v4" % (VA + rt, rt * HS * 256))
    ACC = 152
    def SET(st):
        b = 8 + 36 * (st % 4); return b, b + 16
    def bload(dst, t, sreg, tag):
        if t < 4:
            return ("buffer_load_dwordx4 %s, v4, s[8:11], s%d offen offset:%d" % (vr(dst), sreg, t * 1024), tag)
        return ("buffer_load_dwordx4 %s, v5, s[8:11], s%d offen" % (vr(dst), sreg), tag)
    def loads(st):
        A, B = SET(st); tag = "L%d" % st
        L = [bload(B, 0, 56, tag)]
        for rt in range(NRT):
            L.append(("buffer_load_dwordx4 %s, v%d, s[8:11], s55 offen" % (vr(A + 4 * rt), VA + rt), tag))
        for t in range(1, NT):
            L.append(bload(B + 4 * t, t, 56, tag))
        L.append(("s_add_u32 s59, s59, 1", None))
        L.append(("s_cmp_eq_u32 s59, 12", None))
        L.append(("s_cselect_b32 s64, s66, s67", None))
        L.append(("s_cselect_b32 s65, s68, s69", None))
        L.append(("s_add_u32 s55, s55, s64", None))
        L.append(("s_add_u32 s56, s56, s65", None))
        return L
    def wl(step):
        L = [bload(8 + 20 * step + 4 * t, t, 57, "W%d" % step) for t in range(NT)]
        L.append(("s_add_u32 s57, s57, %d" % (40 * 1024), None))
        return L
    def emit(items):
        for ins, tag in items:
            a(V(ins, tag) if tag else ins)
    def inter(main, items, every=2, start=0):
        items = list(items)
        for i, m in enumerate(main):
            a(m)
            if i >= start and (i - start) % every == 0 and items:
                ins, tag = items.pop(0); a(V(ins, tag) if tag else ins)
        emit(items)
    def mfmas(aset, bset):
        return ["v_mfma_f32_16x16x32_bf16 %s, %s, %s, %s" % (vr(ACC + (t * NRT + rt) * 4), vr(bset + 4 * t), vr(aset + 4 * rt), vr(ACC + (t * NRT + rt) * 4))
                for t in range(NT) for rt in range(NRT)]
    a("s_cmp_ge_u32 s2, 32")
    a("s_cbranch_scc1 L_s2_bgo")
    a("s_barrier")
    a.label("L_s2_bgo")
    emit(loads(0)); emit(loads(1))
    a("s_lshl_b32 s60, s35, 4")
    a("s_add_u32 s60, s60, s32")
    a("v_add_u32 v6, s60, v2")
    a("v_lshlrev_b32 v7, 2, v6")
    a("v_add_u32 v7, 0x%x, v7" % WS_G)
    a(V("buffer_load_dword v236, v7, s[8:11], 0 offen", "G"))
    a("s_mul_i32 s58, s33, 160")
    a("v_lshlrev_b32 v7, 3, v3")
    for t in range(NT):
        a(V("buffer_load_dwordx2 v[%d:%d], v7, s[20:23], s58 offen offset:%d" % (238 + 2 * t, 239 + 2 * t, t * 32), "G"))
    stamp(a, 1)
    for r in range(0, 80, 2):
        a("v_pk_mov_b32 v[%d:%d], 0, 0" % (ACC + r, ACC + r + 1))
    stamp(a, 2)
    a("s_mul_i32 s60, s35, 20480")
    a("v_add_u32 v7, s60, v4")
    SEQ = ["b"] * 5 + ["a", "a"] + ["b"] * 4 + ["a", "a", "a"] + ["b"] * 3
    def sloads(n):
        if n >= len(SEQ): return []
        if SEQ[n] == "b":
            return loads(n)
        A, B = SET(n)
        L = [bload(B + 4 * t, t, 57, "L%d" % n) for t in range(NT)]
        L.append(("s_add_u32 s57, s57, %d" % (40 * 1024), None))
        return L
    astep = 0
    for n, kind in enumerate(SEQ):
        A, B = SET(n)
        if kind == "a":
            if astep in (0, 2):
                a("s_barrier")
            for rt in range(NRT):
                a("ds_read_b128 %s, v7 offset:%d" % (vr(A + 4 * rt), rt * 5120 + astep * 1024))
            astep += 1
        side = (sloads(2) + sloads(3)) if n == 0 else sloads(n + 3)
        a(waitvm("L%d" % n))
        emit(side)
        if kind == "a":
            a("s_waitcnt lgkmcnt(0)")
        for x in mfmas(A, B): a(x)
    stamp(a, 3)
    stamp(a, 4)
    a("v_sub_f32 v236, 1.0, v236")
    a("v_cvt_pk_bf16_f32 v236, v236, v236")
    a("v_lshlrev_b32 v236, 16, v236")
    a("s_barrier")
    for w in range(4):
        a("s_cmp_lg_u32 s35, %d" % w)
        a("s_cbranch_scc1 L_s2_fw%d" % w)
        for rt in range(NRT):
            if rt == w: continue
            si = w if w < rt else w - 1
            for t in range(NT):
                a("ds_write_b128 v4, %s offset:%d" % (vr(ACC + (t * NRT + rt) * 4), (rt * 3 + si) * 5120 + t * 1024))
        for t in range(NT):
            src = ACC + (t * NRT + w) * 4
            a("v_lshlrev_b32 v8, 16, v%d" % (238 + 2 * t))
            a("v_and_b32 v9, 0xffff0000, v%d" % (238 + 2 * t))
            a("v_lshlrev_b32 v10, 16, v%d" % (239 + 2 * t))
            a("v_and_b32 v11, 0xffff0000, v%d" % (239 + 2 * t))
            for i in (0, 2):
                a("v_pk_fma_f32 v[%d:%d], v[%d:%d], v[236:237], v[%d:%d] op_sel_hi:[1,0,1]" % (16 + 4 * t + i, 17 + 4 * t + i, 8 + i, 9 + i, src + i, src + i + 1))
        a.label("L_s2_fw%d" % w)
    a("s_mul_i32 s61, s35, %d" % (3 * 5120))
    a("v_add_u32 v7, s61, v4")
    a("s_waitcnt lgkmcnt(0)")
    a("s_barrier")
    for si in range(3):
        for t in range(NT):
            a("ds_read_b128 %s, v7 offset:%d" % (vr(40 + (si * NT + t) * 4), si * 5120 + t * 1024))
    a("v_mul_u32_u24 v6, 1280, v6")
    a("v_and_b32 v8, 1, v3")
    a("v_lshl_add_u32 v8, v8, 5, v6")
    a("v_lshrrev_b32 v9, 1, v3")
    a("v_lshl_add_u32 v8, v9, 4, v8")
    a("v_lshl_add_u32 v9, v3, 3, v6")
    for si in range(3):
        a("s_waitcnt lgkmcnt(%d)" % (10 - 5 * si))
        for t in range(NT):
            o = 16 + 4 * t; q = 40 + (si * NT + t) * 4
            for i in (0, 2):
                a("v_pk_add_f32 v[%d:%d], v[%d:%d], v[%d:%d]" % (o + i, o + i + 1, o + i, o + i + 1, q + i, q + i + 1))
    for p in range(2):
        A_, B_ = 16 + 8 * p, 20 + 8 * p
        a("v_cvt_pk_bf16_f32 v%d, v%d, v%d" % (A_, A_, A_ + 1))
        a("v_cvt_pk_bf16_f32 v%d, v%d, v%d" % (A_ + 1, A_ + 2, A_ + 3))
        a("v_cvt_pk_bf16_f32 v%d, v%d, v%d" % (A_ + 2, B_, B_ + 1))
        a("v_cvt_pk_bf16_f32 v%d, v%d, v%d" % (A_ + 3, B_ + 2, B_ + 3))
    a("v_cvt_pk_bf16_f32 v32, v32, v33")
    a("v_cvt_pk_bf16_f32 v33, v34, v35")
    for p in range(2):
        A_ = 16 + 8 * p
        a("v_permlane16_swap_b32 v%d, v%d" % (A_, A_ + 2))
        a("v_permlane16_swap_b32 v%d, v%d" % (A_ + 1, A_ + 3))
        a("buffer_store_dwordx4 %s, v8, s[24:27], s58 offen offset:%d" % (vr(A_), p * 64))
    a("buffer_store_dwordx2 v[32:33], v9, s[24:27], s58 offen offset:128")
    dbg_end2(a)
    stamp_flush(a, 2, 8, 35)
    a("s_endpgm")
    a.label("L_s2_awave")
    a("s_setprio 2")
    F, PQB, Z, OA, RY, T1 = 8, [40, 56], 72, 96, 112, 144
    G = [76, 77, 78, 79]
    DS = 80
    EPSR = 88
    a("""
    s_sub_u32 s58, s35, 4                    ; aw
    s_mul_i32 s54, s58, 20480
    s_mul_i32 s60, s34, 160
    s_mul_i32 s61, s58, 40
    s_add_u32 s60, s60, s61
    s_lshl_b32 s60, s60, 7
    s_add_u32 s60, s60, 0x%x
    v_add_u32 v5, s32, v2
    v_lshlrev_b32 v5, 2, v5
    v_add_u32 v5, 0x%x, v5
    ; reducer duty: wave 4 of workgroups 0..31 reduces head = id
    s_cmp_ge_u32 s2, 32
    s_cbranch_scc1 L_s2_nored
    s_cmp_eq_u32 s35, 4
    s_cbranch_scc1 L_s2_dored
    s_barrier
    s_branch L_s2_nored
L_s2_dored:
    s_setprio 3
    v_mul_u32_u24 v8, 171, v1
    v_lshrrev_b32 v8, 9, v8                  ; e
    v_mul_u32_u24 v9, 3, v8
    v_sub_u32 v9, v1, v9                     ; g'
    v_mul_u32_u24 v6, 80, v8
    v_lshl_add_u32 v6, v9, 5, v6
    v_add_u32 v7, 16, v6
    v_mov_b32 v10, 0x7000000
    v_cmp_eq_u32 vcc, 2, v9
    s_mul_i32 s66, s2, 1680
    s_add_u32 s66, s66, 0x%x
    s_nop 0
    v_cndmask_b32 v7, v7, v10, vcc
    v_cmp_gt_u32 vcc, 63, v1
    s_and_saveexec_b64 s[72:73], vcc
    """ % (WS_PQF, WS_G, WS_P))
    for rb in range(16):
        a("buffer_load_dwordx4 %s, v6, s[8:11], s66 offen" % vr(16 + 8 * rb))
        a("buffer_load_dwordx4 %s, v7, s[8:11], s66 offen" % vr(20 + 8 * rb))
        if rb < 15:
            a("s_add_u32 s66, s66, %d" % (32 * 1680))
    a("""
    s_and_b32 s67, s2, 3
    s_lshl_b32 s67, s67, 2
    s_sub_u32 s68, s67, 16
    v_add_u32 v10, s68, v8
    v_and_b32 v10, 15, v10
    v_add_u32 v10, 48, v10
    v_cmp_gt_u32 vcc, 16, v8
    s_mul_i32 s66, s2, 1536
    s_add_u32 s66, s66, 0x%x
    v_cndmask_b32 v10, v10, v8, vcc
    v_lshlrev_b32 v10, 4, v10
    v_lshl_add_u32 v10, v9, 8, v10
    """ % WS_KVT)
    for rb in range(1, 16):
        a("s_waitcnt vmcnt(%d)" % (30 - 2 * rb))
        for i in range(0, 8, 2):
            a("v_pk_add_f32 v[%d:%d], v[%d:%d], v[%d:%d]" % (16 + i, 17 + i, 16 + i, 17 + i, 16 + 8 * rb + i, 17 + 8 * rb + i))
    for i in range(4):
        a("v_cvt_pk_bf16_f32 v%d, v%d, v%d" % (12 + i, 16 + 2 * i, 17 + 2 * i))
    a("""
    buffer_store_dwordx4 v[12:15], v10, s[8:11], s66 offen sc1
    s_barrier
    s_mov_b64 exec, -1
    s_setprio 2
    """)
    a.label("L_s2_nored")
    for rt in range(NRT):
        a("buffer_load_dword v%d, v5, s[8:11], 0 offen offset:%d" % (G[rt], rt * 64))
    for i in range(5):
        for rt in range(NRT):
            a("s_add_u32 m0, s54, %d" % (rt * 5120 + i * 1024))
            a("s_add_u32 s64, s60, %d" % (rt * 160 * 128 + i * 1024))
            a("buffer_load_dwordx4 v4, s[8:11], s64 offen lds")
    stamp(a, 1)
    a("v_cmp_gt_u32 s[82:83], 48, v1")
    a("v_cmp_gt_u32 s[84:85], 32, v1")
    a("s_lshl_b32 s61, s58, 3")
    a("s_mul_i32 s61, s61, 1536")
    a("s_add_u32 s61, s61, 0x%x" % WS_KVT)
    a("v_lshrrev_b32 v0, 2, v2")
    for jj in range(4):
        a("v_cmp_ne_u32 s[%d:%d], %d, v0" % (66 + 2 * jj, 67 + 2 * jj, jj))
        a("v_cmp_eq_u32 s[%d:%d], %d, v3" % (74 + 2 * jj, 75 + 2 * jj, jj))
    a("v_lshlrev_b32 v6, 8, v3")
    a("v_lshl_add_u32 v6, v2, 3, v6")
    a("v_add_u32 v6, s54, v6")
    a("v_add_u32 v7, s54, v4")
    for r in list(range(8, 72, 2)) + list(range(DS, DS + 8, 2)) + list(range(T1, T1 + 32, 2)):
        a("v_pk_mov_b32 v[%d:%d], 0, 0" % (r, r + 1))
    for i in range(4):
        a("v_mov_b32 v%d, %s" % (EPSR + i, EPS))
    def pqreads(j):
        P = PQB[j & 1]
        a("s_mov_b64 exec, s[82:83]")
        for rt in range(NRT):
            a("ds_read_b64 v[%d:%d], v6 offset:%d" % (P + 4 * rt, P + 4 * rt + 1, rt * 5120 + j * 640))
        a("s_mov_b64 exec, s[84:85]")
        for rt in range(NRT):
            a("ds_read_b64 v[%d:%d], v6 offset:%d" % (P + 4 * rt + 2, P + 4 * rt + 3, rt * 5120 + j * 640 + 128))
        a("s_mov_b64 exec, -1")
    def fload(j):
        a("s_mov_b64 exec, s[82:83]")
        a("buffer_load_dwordx4 %s, v4, s[8:11], s61 offen sc1" % vr(F + 8 * (j & 3)))
        a("buffer_load_dwordx4 %s, v4, s[8:11], s61 offen offset:768 sc1" % vr(F + 8 * (j & 3) + 4))
        a("s_mov_b64 exec, -1")
        a("s_add_u32 s61, s61, 1536")
    def fgroup(gp):
        FB = FBANK[gp]
        a("s_mov_b32 s63, 0")
        a.label("L_s2_fpoll%d" % gp)
        a("s_mov_b64 exec, s[82:83]")
        for j in range(4):
            a("s_add_u32 s62, s61, %d" % ((4 * gp + j) * 1536))
            a("buffer_load_dwordx4 %s, v4, s[8:11], s62 offen sc1" % vr(FB + 8 * j))
            a("buffer_load_dwordx4 %s, v4, s[8:11], s62 offen offset:768 sc1" % vr(FB + 8 * j + 4))
        a("s_waitcnt vmcnt(0)")
        a("s_mov_b64 s[64:65], 0")
        for j in range(4):
            a("v_cmp_eq_u32 vcc, -1, v%d" % (FB + 8 * j))
            a("s_or_b64 s[64:65], s[64:65], vcc")
            a("v_cmp_eq_u32 vcc, -1, v%d" % (FB + 8 * j + 4))
            a("s_and_b64 vcc, vcc, s[%d:%d]" % (40 + 2 * j, 41 + 2 * j))
            a("s_or_b64 s[64:65], s[64:65], vcc")
        a("s_mov_b64 exec, -1")
        a("s_add_u32 s63, s63, 1")
        a("s_cmp_eq_u64 s[64:65], 0")
        a("s_cbranch_scc1 L_s2_fok%d" % gp)
        a("s_cmp_ge_u32 s63, 20000")
        a("s_cbranch_scc1 L_s2_fok%d" % gp)
        a("s_sleep 6")
        a("s_branch L_s2_fpoll%d" % gp)
        a.label("L_s2_fok%d" % gp)
    FBANK = [8, 176]
    for r in range(176, 208, 2):
        a("v_pk_mov_b32 v[%d:%d], 0, 0" % (r, r + 1))
    for jj in range(4):
        a("v_cmp_eq_u32 vcc, %d, v2" % ((4 * jj + 4) & 15))
        a("s_orn2_b64 s[%d:%d], vcc, s[%d:%d]" % (40 + 2 * jj, 41 + 2 * jj, 66 + 2 * jj, 67 + 2 * jj))
    fgroup(0)
    stamp(a, 2)
    pqreads(0)
    for j in range(8):
        jj = j & 3
        f0, f1 = FBANK[j >> 2] + 8 * jj, FBANK[j >> 2] + 8 * jj + 4
        P = PQB[j & 1]
        if j == 4:
            fgroup(1)
        for i in range(4):
            a("v_mov_b32_dpp v%d, v%d row_newbcast:%d row_mask:0xf bank_mask:0xf" % (Z + i, f1 + i, (4 * jj + 4) & 15))
        a("s_nop 0")
        for i in range(4):
            a("v_cndmask_b32 v%d, v%d, 0, s[%d:%d]" % (f1 + i, f1 + i, 66 + 2 * jj, 67 + 2 * jj))
        a("s_waitcnt lgkmcnt(0)")
        if j < 7:
            pqreads(j + 1)
        else:
            a("s_nop 0")
        for rt in range(NRT):
            a("v_mfma_f32_16x16x32_bf16 %s, %s, %s, %s" % (vr(RY + 8 * rt + 4), vr(Z), vr(P + 4 * rt), vr(EPSR)))
        for rt in range(NRT):
            a("v_mfma_f32_16x16x32_bf16 %s, %s, %s, 0" % (vr(RY + 8 * rt), vr(f0), vr(P + 4 * rt)))
        for rt in range(NRT):
            t1 = T1 + ((j >> 2) * NRT + rt) * 4
            a("v_mfma_f32_16x16x32_bf16 %s, %s, %s, %s" % (vr(t1), vr(f1), vr(P + 4 * rt), vr(t1)))
        for rt in range(NRT):
            a("v_rcp_f32 v%d, v%d" % (RY + 8 * rt + 4, RY + 8 * rt + 4))
        a("s_nop 0")
        for rt in range(NRT):
            a("v_mul_f32 v%d, v%d, v%d" % (RY + 8 * rt + 4, RY + 8 * rt + 4, G[rt]))
        for rt in range(NRT):
            t0 = RY + 8 * rt
            for i in (0, 2):
                a("v_pk_mul_f32 v[%d:%d], v[%d:%d], v[%d:%d] op_sel_hi:[1,0]" % (t0 + i, t0 + i + 1, t0 + i, t0 + i + 1, t0 + 4, t0 + 5))
        for rt in range(NRT):
            ds = DS + (j >> 2) * NRT + rt
            a("v_cndmask_b32 v%d, v%d, v%d, s[%d:%d]" % (ds, ds, RY + 8 * rt + 4, 74 + 2 * jj, 75 + 2 * jj))
        for rt in range(NRT):
            t0 = RY + 8 * rt
            oa = OA + 4 * rt + 2 * (j & 1)
            a("v_cvt_pk_bf16_f32 v%d, v%d, v%d" % (oa, t0, t0 + 1))
            a("v_cvt_pk_bf16_f32 v%d, v%d, v%d" % (oa + 1, t0 + 2, t0 + 3))
        if j & 1:
            a("s_waitcnt lgkmcnt(0)")
            for rt in range(NRT):
                a("ds_write_b128 v7, %s offset:%d" % (vr(OA + 4 * rt), rt * 5120 + (j >> 1) * 1024))
            if j == 3:
                a("s_waitcnt lgkmcnt(0)")
                a("s_barrier")
    for rt in range(NRT):
        for q in range(2):
            t1 = T1 + (q * NRT + rt) * 4
            ds = DS + q * NRT + rt
            for i in range(4):
                a("v_mul_f32 v%d, v%d, v%d" % (t1 + i, t1 + i, ds))
            oa = RY + 4 * rt + 2 * q
            a("v_cvt_pk_bf16_f32 v%d, v%d, v%d" % (oa, t1, t1 + 1))
            a("v_cvt_pk_bf16_f32 v%d, v%d, v%d" % (oa + 1, t1 + 2, t1 + 3))
        a("ds_write_b128 v7, %s offset:%d" % (vr(RY + 4 * rt), rt * 5120 + 4096))
    stamp(a, 3)
    stamp(a, 4)
    a("s_waitcnt lgkmcnt(0)")
    a("s_barrier")
    stamp_flush(a, 2, 8, 35)
    a.label("L_s2_end")
    a("s_endpgm")
    a.label("L_code_end")

def kd(name, vgpr, accum, sgpr=102):
    return """.amdhsa_kernel %s
  .amdhsa_next_free_vgpr %d
  .amdhsa_next_free_sgpr %d
  .amdhsa_accum_offset %d
  .amdhsa_group_segment_fixed_size 0
  .amdhsa_kernarg_size 96
  .amdhsa_user_sgpr_count 2
  .amdhsa_user_sgpr_kernarg_segment_ptr 1
  .amdhsa_system_sgpr_workgroup_id_x 1
.end_amdhsa_kernel
""" % (name, vgpr, sgpr, accum)

def main():
    a = Asm()
    hdr = open("cdna_kernels/%s.s.ref" % NAME).read().split("; Override launch")[0]
    out = hdr
    out += "; @launch kernel=s1_kernel grid=(256,1,1) block=(448,1,1) lds=%d\n" % (3 * S1_BUF + 16384)
    out += "; @launch kernel=s2_kernel grid=(256,1,1) block=(512,1,1) lds=81920\n"
    out += '.amdgcn_target "amdgcn-amd-amdhsa--gfx950"\n.text\n'
    stage1(a)
    stage2(a)
    out += a.text()
    out += '.section .rodata,"a"\n.p2align 6\n'
    out += kd("s1_kernel", 256, 256)
    out += ".p2align 6\n" + kd("s2_kernel", 256, 256)
    dst = sys.argv[1] if len(sys.argv) > 1 else "cdna_kernels/%s.s" % NAME
    open(dst, "w").write(out)

main()
```

```python
import sys, os

NAME = "gated_mix__linear_attn_block__dense_activation_squared_relu__prompt"

HS = int(os.environ.get("HS", "192"))
WS_H   = 0x1000000
WS_PQF = 0x600000
WS_P   = 0x900000
WS_KVT = 0xA00000
WS_G   = 0xA10000
WS_FLAG = 0xA20000
WS_W2F = 0xC00000
WS_WOF = 0xE00000
WS_SIZE = 0x1800000
STAMP = int(os.environ.get("STAMP", "0"))
EARLYW = int(os.environ.get("EARLYW", "1"))
WS_STAMP = 0xB00000

class Asm:
    def __init__(self):
        self.L = []
    def __call__(self, s):
        for ln in s.strip("\n").split("\n"):
            if ln.strip():
                self.L.append("  " + ln.strip())
    def label(self, l):
        self.L.append(l + ":")
    def raw(self, s):
        self.L.append(s)
    def text(self):
        return "\n".join(self.L) + "\n"

def vr(b, n=4):
    return "v[%d:%d]" % (b, b + n - 1)

def srd(a, d, lo, size):
    a("s_mov_b32 s%d, s%d" % (d, lo))
    a("s_and_b32 s%d, s%d, 0xffff" % (d + 1, lo + 1))
    a("s_mov_b32 s%d, 0x%x" % (d + 2, size))
    a("s_mov_b32 s%d, 0x00020000" % (d + 3))

def interleave(a, main, side, start=1, every=1):
    side = list(side)
    for i, m in enumerate(main):
        a(m)
        if i >= start - 1 and (i - (start - 1)) % every == 0 and side:
            a(side.pop(0))
    for s in side:
        a(s)

DBG = int(os.environ.get("DBG", "0"))
def dbg_start(a):
    if DBG:
        a("s_memrealtime s[96:97]")
def dbg_end1(a):
    if DBG:
        a("s_waitcnt vmcnt(0)")
        a("s_memrealtime s[98:99]")
        a("s_waitcnt lgkmcnt(0)")
        a("s_or_b32 s97, s2, s35")
        a("s_cmp_lg_u32 s97, 0")
        a("s_cbranch_scc1 L_dbg1_%d" % len(a.L))
        lab = "L_dbg1_%d" % (len(a.L) - 1)
        a("v_mov_b32 v2, s96")
        a("v_mov_b32 v3, s98")
        a("v_mov_b32 v4, 0x%x" % WS_STAMP)
        a("s_mov_b64 exec, 1")
        a("buffer_store_dwordx2 v[2:3], v4, s[20:23], 0 offen")
        a("s_waitcnt vmcnt(0)")
        a.label(lab)
def dbg_end2(a):
    if DBG:
        a("s_waitcnt vmcnt(0)")
        a("s_memrealtime s[98:99]")
        a("s_waitcnt lgkmcnt(0)")
        a("s_or_b32 s97, s2, s35")
        a("s_cmp_lg_u32 s97, 0")
        a("s_cbranch_scc1 L_dbg2")
        a("v_mov_b32 v4, 0x%x" % WS_STAMP)
        a("s_mov_b64 exec, 1")
        a("buffer_load_dwordx2 v[8:9], v4, s[8:11], 0 offen")
        a("v_mov_b32 v10, s96")
        a("v_mov_b32 v11, s98")
        a("v_mov_b32 v4, 16")
        a("s_waitcnt vmcnt(0)")
        a("buffer_store_dwordx4 v[8:11], v4, s[28:31], 0 offen")
        a("s_waitcnt vmcnt(0)")
        a.label("L_dbg2")
def stamp_start(a):
    dbg_start(a)
    if STAMP:
        a("s_memrealtime s[86:87]")
        a("s_waitcnt lgkmcnt(0)")
        a("s_mov_b32 s94, s86")
        stamp(a, 0)
def stamp(a, idx):
    if STAMP:
        a("s_memtime s[86:87]")
        a("s_waitcnt lgkmcnt(0)")
        a("s_mov_b32 s%d, s86" % (88 + idx))
def stamp_flush(a, kern, srdreg, wavereg):
    if STAMP:
        a("s_waitcnt vmcnt(0)")
        stamp(a, 5)
        a("s_memrealtime s[86:87]")
        a("s_waitcnt lgkmcnt(0)")
        a("s_mov_b32 s95, s86")
        a("s_lshl_b32 s86, s2, 3")
        a("s_add_u32 s86, s86, s%d" % wavereg)
        a("s_lshl_b32 s86, s86, 5")
        a("s_add_u32 s86, s86, 0x%x" % (WS_STAMP + kern * 0x10000))
        a("s_mov_b64 exec, 1")
        for i in range(8):
            a("v_mov_b32 v2, s%d" % (88 + i))
            a("v_mov_b32 v3, %d" % (4 * i))
            a("buffer_store_dword v2, v3, s[%d:%d], s86 offen" % (srdreg, srdreg + 3))
        a("s_waitcnt vmcnt(0)")

LOG2E = "0x3fb8aa3b"
EPS = "0x358637bd"

def phi4(a, src, tmp, sl, se):
    for i in (0, 2):
        a("v_pk_mul_f32 v[%d:%d], v[%d:%d], s[%d:%d]" % (tmp + i, tmp + i + 1, src + i, src + i + 1, sl, sl + 1))
    for i in range(4):
        a("v_min_f32 v%d, 0, v%d" % (tmp + i, tmp + i))
    for i in range(4):
        a("v_exp_f32 v%d, v%d" % (tmp + i, tmp + i))
    for i in range(4):
        a("v_max_f32 v%d, 0, v%d" % (src + i, src + i))
    for i in (0, 2):
        a("v_pk_add_f32 v[%d:%d], v[%d:%d], v[%d:%d]" % (src + i, src + i + 1, src + i, src + i + 1, tmp + i, tmp + i + 1))
    for i in (0, 2):
        a("v_pk_add_f32 v[%d:%d], v[%d:%d], s[%d:%d]" % (src + i, src + i + 1, src + i, src + i + 1, se, se + 1))

def phi16(a, src, tmp, sl, se):
    n = 16
    for i in range(0, n, 2):
        a("v_pk_mul_f32 v[%d:%d], v[%d:%d], s[%d:%d]" % (tmp + i, tmp + i + 1, src + i, src + i + 1, sl, sl + 1))
    for i in range(n):
        a("v_exp_f32_e64 v%d, v%d clamp" % (tmp + i, tmp + i))
        a("v_max_f32 v%d, s%d, v%d" % (src + i, se, src + i))
    for i in range(0, n, 2):
        a("v_pk_add_f32 v[%d:%d], v[%d:%d], v[%d:%d]" % (src + i, src + i + 1, src + i, src + i + 1, tmp + i, tmp + i + 1))

def swap23_v(a, d, s, t):
    a("v_and_b32 v%d, 3, v%d" % (d, s))
    a("v_and_b32 v%d, 4, v%d" % (t, s))
    a("v_lshlrev_b32 v%d, 1, v%d" % (t, t))
    a("v_or_b32 v%d, v%d, v%d" % (d, d, t))
    a("v_and_b32 v%d, 8, v%d" % (t, s))
    a("v_lshrrev_b32 v%d, 1, v%d" % (t, t))
    a("v_or_b32 v%d, v%d, v%d" % (d, d, t))

S1_BUF = 45056
def stage1(a):
    a.raw(".globl s1_kernel\n.p2align 8\n.type s1_kernel,@function")
    a.label("s1_kernel")
    a("""
    s_cmp_ge_u32 s2, 256
    s_cbranch_scc1 L_s1_end
    s_getpc_b64 s[60:61]
    v_lshlrev_b32 v2, 4, v0
    global_load_dwordx4 v[244:247], v2, s[60:61]
    v_add_u32 v3, 7168, v2
    global_load_dwordx4 v[244:247], v3, s[60:61]
    v_add_u32 v3, 14336, v2
    global_load_dwordx4 v[244:247], v3, s[60:61]
    v_add_u32 v3, 21504, v2
    global_load_dwordx4 v[244:247], v3, s[60:61]
    """)
    stamp_start(a)
    a("""
    s_load_dwordx4 s[36:39], s[0:1], 0
    s_load_dwordx4 s[40:43], s[0:1], 32
    s_load_dwordx2 s[44:45], s[0:1], 64
    s_load_dwordx2 s[46:47], s[0:1], 88
    s_load_dwordx2 s[66:67], s[0:1], 16
    s_load_dwordx2 s[68:69], s[0:1], 48
    s_load_dwordx2 s[70:71], s[0:1], 80
    s_and_b32 s48, s2, 7
    s_lshr_b32 s49, s2, 3
    s_and_b32 s50, s48, 1
    s_lshl_b32 s50, s50, 3
    s_and_b32 s51, s49, 7
    s_add_u32 s32, s50, s51          ; rb
    s_lshr_b32 s50, s48, 1
    s_lshl_b32 s50, s50, 1
    s_lshr_b32 s51, s49, 3           ; cg_local
    s_lshr_b32 s34, s51, 1
    s_and_b32 s51, s51, 1
    s_add_u32 s33, s50, s51          ; jj
    v_and_b32 v1, 63, v0
    v_lshrrev_b32 v2, 6, v0
    s_nop 0
    v_readfirstlane_b32 s35, v2      ; wave
    s_nop 3
    s_lshr_b32 s52, s35, 1           ; wr
    s_and_b32 s53, s35, 1            ; wc
    s_mov_b32 s57, 0
    s_mov_b32 s58, 0
    s_mov_b32 s59, 0
    s_waitcnt lgkmcnt(0)
    """)
    srd(a, 8, 36, 2621440)
    srd(a, 12, 38, 2457600)
    srd(a, 16, 40, 1966080)
    if EARLYW:
        a("s_cmp_ge_u32 s35, 4")
        a("s_cbranch_scc1 L_s1_now")
        a("s_cmp_eq_u32 s34, 0")
        a("s_cbranch_scc1 L_s1_nobias")
        srd(a, 24, 42, 3072)
        a("s_mul_i32 s63, s33, 384")
        a("s_mul_i32 s64, s53, 192")
        a("s_add_u32 s63, s63, s64")
        a("v_lshrrev_b32 v3, 4, v1")
        a("v_lshlrev_b32 v4, 3, v3")
        for i in range(6):
            a("buffer_load_dwordx2 v[%d:%d], v4, s[24:27], s63 offen offset:%d" % (32 + 2 * i, 33 + 2 * i, 32 * i))
        a.label("L_s1_nobias")
        s1_warm(a)
        a.label("L_s1_now")
    srd(a, 20, 46, WS_SIZE)
    srd(a, 24, 42, 3072)
    srd(a, 28, 44, 1280)
    a("s_cmp_lt_u32 s35, 4")
    a("s_cbranch_scc1 L_s1_compute")
    a("s_cmp_eq_u32 s35, 4")
    a("s_cbranch_scc1 L_s1_loader")
    a("s_cmp_eq_u32 s35, 6")
    a("s_cbranch_scc1 L_s1_aux")
    stage1_loader(a, 2)
    a.label("L_s1_loader")
    a("s_cmp_eq_u32 s34, 1")
    a("s_cbranch_scc1 L_s1_loaderB")
    stage1_loader(a, 0)
    a.label("L_s1_loaderB")
    stage1_loader(a, 1)
    a.label("L_s1_aux")
    stage1_aux(a)
    a.label("L_s1_compute")
    a("""
    s_mov_b32 s78, %s
    s_mov_b32 s79, %s
    s_mov_b32 s80, %s
    s_mov_b32 s81, %s
    """ % (LOG2E, LOG2E, EPS, EPS))
    a("""
    v_and_b32 v2, 15, v1             ; m
    v_lshrrev_b32 v3, 4, v1          ; g
    s_lshl_b32 s60, s52, 6
    v_add_u32 v4, s60, v2
    v_lshlrev_b32 v4, 7, v4
    v_lshrrev_b32 v5, 1, v2
    v_xor_b32 v5, v5, v3
    v_lshlrev_b32 v6, 4, v5
    v_add_u32 v105, v4, v6
    v_xor_b32 v5, 4, v5
    v_lshlrev_b32 v6, 4, v5
    v_add_u32 v106, v4, v6
    v_lshrrev_b32 v4, 2, v1
    v_and_b32 v4, 3, v4              ; r
    v_and_b32 v5, 3, v1
    v_lshlrev_b32 v5, 3, v5          ; c*8
    v_lshrrev_b32 v6, 1, v3
    v_lshlrev_b32 v6, 4, v6
    v_and_b32 v7, 1, v3              ; g&1
    v_lshlrev_b32 v2, 2, v7
    v_add3_u32 v6, v6, v2, v4        ; pil
    s_cmp_eq_u32 s34, 1
    s_cbranch_scc1 L_s1_typeB
    """)
    for typ in (0, 1):
        if typ == 1:
            a.label("L_s1_typeB")
        stage1_type(a, typ)
    a.label("L_s1_end")
    a("s_endpgm")

def stage1_transposer_old(a):
    a("""
    s_lshl_b32 s60, s2, 2
    s_add_u32 s60, s60, s35
    s_cmp_ge_u32 s60, 720
    s_cbranch_scc1 L_s1_tr_done
    s_lshl_b32 s61, s35, 12
    s_add_u32 s61, s61, %d                   ; scratch base
    v_lshrrev_b32 v2, 3, v1                  ; lr
    v_and_b32 v4, 7, v1
    v_lshrrev_b32 v5, 4, v1
    v_lshlrev_b32 v5, 1, v5
    v_xor_b32 v6, v4, v5
    v_lshlrev_b32 v6, 4, v6                  ; colpart
    v_and_b32 v3, 3, v2
    v_lshrrev_b32 v4, 2, v2                  ; lr>>2
    s_cmp_ge_u32 s60, 480
    s_cbranch_scc1 L_s1_tr_wo
    """ % (3 * S1_BUF))
    srd(a, 72, 68, 1966080)
    a("""
    s_mul_i32 s62, s60, 6554
    s_lshr_b32 s62, s62, 16                  ; ks = u/10
    s_mul_i32 s63, s62, 10
    s_sub_u32 s63, s60, s63                  ; cb
    s_mul_i32 s70, s62, %d
    s_lshl_b32 s71, s63, 7
    s_add_u32 s70, s70, s71                  ; src soffset
    s_mul_i32 s71, s62, 40
    s_lshl_b32 s63, s63, 2
    s_add_u32 s71, s71, s63
    s_lshl_b32 s71, s71, 10
    s_add_u32 s71, s71, 0x%x                 ; dst offset
    v_lshlrev_b32 v5, 3, v4
    v_add_u32 v5, v5, v3
    v_mul_u32_u24 v5, 1280, v5
    v_add_u32 v7, v5, v6
    """ % (32 * 1280, WS_W2F))
    for i in range(4):
        a("s_add_u32 m0, s61, %d" % (i * 1024))
        a("s_add_u32 s64, s70, %d" % ((16 * (i >> 1) + 4 * (i & 1)) * 1280))
        a("buffer_load_dwordx4 v7, s[72:75], s64 offen lds")
    a("s_branch L_s1_tr_go")
    a.label("L_s1_tr_wo")
    srd(a, 72, 66, 819200)
    a("""
    s_sub_u32 s60, s60, 480
    s_mul_i32 s62, s60, 6554
    s_lshr_b32 s62, s62, 16                  ; st = u/10 (0..23)
    s_mul_i32 s63, s62, 10
    s_sub_u32 s63, s60, s63                  ; cb
    s_mul_i32 s71, s62, 40
    s_lshl_b32 s64, s63, 2
    s_add_u32 s71, s71, s64
    s_lshl_b32 s71, s71, 10
    s_add_u32 s71, s71, 0x%x                 ; dst offset
    s_mul_i32 s64, s62, 21846
    s_lshr_b32 s64, s64, 16                  ; wg8 = st/3
    s_mul_i32 s70, s64, 3
    s_sub_u32 s62, s62, s70                  ; step = st%%3
    s_mul_i32 s70, s64, %d                   ; 80*wg8 rows
    s_lshl_b32 s63, s63, 7
    s_add_u32 s70, s70, s63
    s_cmp_eq_u32 s62, 2
    s_cbranch_scc1 L_s1_tr_wo2
    s_mul_i32 s62, s62, %d                   ; 40 rows per pair step
    s_add_u32 s70, s70, s62
    v_mul_u32_u24 v5, 1280, v2
    v_add_u32 v7, v5, v6
    """ % (WS_WOF, 80 * 1280, 40 * 1280))
    for i in range(4):
        row = 20 * (i & 1) + 8 * ((i >> 1) & 1)
        a("s_add_u32 m0, s61, %d" % (i * 1024))
        a("s_add_u32 s64, s70, %d" % (row * 1280))
        a("buffer_load_dwordx4 v7, s[72:75], s64 offen lds")
    a("s_branch L_s1_tr_go")
    a.label("L_s1_tr_wo2")
    a("""
    v_mul_u32_u24 v5, 20, v4
    v_add_u32 v5, v5, v3
    v_mul_u32_u24 v5, 1280, v5
    v_add_u32 v7, v5, v6
    """)
    for i in range(4):
        row = 20 * (2 * ((i >> 1) & 1)) + 16
        a("s_add_u32 m0, s61, %d" % (i * 1024))
        a("s_add_u32 s64, s70, %d" % (row * 1280))
        a("buffer_load_dwordx4 v7, s[72:75], s64 offen lds")
    a.label("L_s1_tr_go")
    a("""
    v_lshrrev_b32 v3, 4, v1
    v_lshrrev_b32 v4, 2, v1
    v_and_b32 v4, 3, v4
    v_and_b32 v5, 3, v1
    v_lshlrev_b32 v5, 3, v5
    v_lshrrev_b32 v6, 1, v3
    v_lshlrev_b32 v6, 4, v6
    v_and_b32 v7, 1, v3
    v_lshlrev_b32 v7, 2, v7
    v_add3_u32 v6, v6, v7, v4
    v_lshrrev_b32 v7, 1, v6
    v_and_b32 v7, 3, v7
    v_lshlrev_b32 v6, 7, v6
    v_add3_u32 v6, v6, v5, s61
    v_lshlrev_b32 v2, 4, v1
    s_waitcnt vmcnt(0)
    """)
    for t in range(4):
        a("v_xor_b32 v4, %d, v7" % t)
        a("v_lshl_add_u32 v4, v4, 5, v6")
        a("ds_read_b64_tr_b16 v[%d:%d], v4" % (8 + 4 * t, 9 + 4 * t))
        a("ds_read_b64_tr_b16 v[%d:%d], v4 offset:1024" % (10 + 4 * t, 11 + 4 * t))
    a("s_waitcnt lgkmcnt(0)")
    for t in range(4):
        a("buffer_store_dwordx4 %s, v2, s[20:23], s71 offen offset:%d" % (vr(8 + 4 * t), t * 1024))
    a("s_nop 1")
    a.label("L_s1_tr_done")


def stage1_aux(a):
    SCR = 3 * S1_BUF
    a("v_lshlrev_b32 v2, 4, v1")
    a("s_getpc_b64 s[60:61]")
    a.label("L_s1_pc")
    a("s_sub_u32 s60, s60, L_s1_pc-s1_kernel")
    a("s_subb_u32 s61, s61, 0")
    a("s_lshl_b32 s62, s49, 10")
    a("v_add_u32 v3, s62, v2")
    a("global_load_dwordx4 v[100:103], v3, s[60:61]")
    a("s_add_u32 s62, s62, 32768")
    a("s_cmp_ge_u32 s62, L_code_end-s1_kernel-1024")
    a("s_cbranch_scc1 L_s1_nopf2")
    a("v_add_u32 v3, s62, v2")
    a("global_load_dwordx4 v[100:103], v3, s[60:61]")
    a.label("L_s1_nopf2")
    a("s_mov_b32 m0, %d" % (SCR + 12288))
    a("s_nop 0")
    a("buffer_load_dwordx4 v2, s[28:31], 0 offen lds")
    a("buffer_load_dwordx4 v2, s[28:31], 0 offen offset:1024 lds")
    a("s_cmp_ge_u32 s2, 48")
    a("s_cbranch_scc1 L_s1_noz")
    a("v_pk_mov_b32 v[8:9], -1, -1")
    a("v_pk_mov_b32 v[10:11], -1, -1")
    a("s_lshl_b32 s60, s2, 10")
    a("s_add_u32 s60, s60, 0x%x" % WS_KVT)
    a("buffer_store_dwordx4 v[8:11], v2, s[20:23], s60 offen")
    a.label("L_s1_noz")
    a("s_waitcnt vmcnt(0)")
    a("s_barrier")
    srd(a, 72, 68, 1966080)
    srd(a, 76, 66, 819200)
    a("""
    v_lshrrev_b32 v2, 3, v1                  ; lr
    v_and_b32 v4, 7, v1
    v_lshrrev_b32 v5, 4, v1
    v_lshlrev_b32 v5, 1, v5
    v_xor_b32 v6, v4, v5
    v_lshlrev_b32 v6, 4, v6                  ; colpart
    v_and_b32 v3, 3, v2
    v_lshrrev_b32 v4, 2, v2                  ; lr>>2
    v_lshlrev_b32 v5, 3, v4
    v_add_u32 v5, v5, v3
    v_mul_u32_u24 v5, 1280, v5
    v_add_u32 v7, v5, v6                     ; voff w2
    v_mul_u32_u24 v5, 1280, v2
    v_add_u32 v8, v5, v6
    v_mul_u32_u24 v5, 20, v4
    v_add_u32 v5, v5, v3
    v_mul_u32_u24 v5, 1280, v5
    v_add_u32 v9, v5, v6
    """)
    for n in range(3):
        D = 82 + n
        a("s_mul_i32 s60, s2, 3")
        a("s_add_u32 s60, s60, %d" % n)
        a("s_mov_b32 s%d, -1" % D)
        a("s_cmp_ge_u32 s60, 680")
        a("s_cbranch_scc1 L_s1_tr_done%d" % n)
        a("s_cmp_ge_u32 s60, 480")
        a("s_cbranch_scc1 L_s1_tr_wo%d" % n)
        a("""
        s_mul_i32 s62, s60, 6554
        s_lshr_b32 s62, s62, 16
        s_mul_i32 s63, s62, 10
        s_sub_u32 s63, s60, s63
        s_mul_i32 s70, s62, %d
        s_lshl_b32 s71, s63, 7
        s_add_u32 s70, s70, s71
        s_mul_i32 s71, s62, 40
        s_lshl_b32 s63, s63, 2
        s_add_u32 s71, s71, s63
        s_lshl_b32 s71, s71, 10
        s_add_u32 s%d, s71, 0x%x
        """ % (32 * 1280, D, WS_W2F))
        for i in range(4):
            a("s_mov_b32 m0, %d" % (SCR + n * 4096 + i * 1024))
            a("s_add_u32 s64, s70, %d" % ((16 * (i >> 1) + 4 * (i & 1)) * 1280))
            a("buffer_load_dwordx4 v7, s[72:75], s64 offen lds")
        a("s_branch L_s1_tr_done%d" % n)
        a.label("L_s1_tr_wo%d" % n)
        a("""
        s_sub_u32 s60, s60, 480
        s_mul_i32 s62, s60, 6554
        s_lshr_b32 s62, s62, 16
        s_mul_i32 s63, s62, 10
        s_sub_u32 s63, s60, s63
        s_mul_i32 s71, s62, 40
        s_lshl_b32 s64, s63, 2
        s_add_u32 s71, s71, s64
        s_lshl_b32 s71, s71, 10
        s_add_u32 s%d, s71, 0x%x
        s_mul_i32 s64, s62, 13108
        s_lshr_b32 s64, s64, 16
        s_mul_i32 s70, s64, 5
        s_sub_u32 s62, s62, s70
        s_mul_i32 s70, s64, %d
        s_lshl_b32 s63, s63, 7
        s_add_u32 s70, s70, s63
        s_cmp_eq_u32 s62, 4
        s_cbranch_scc1 L_s1_tr_wl%d
        s_mul_i32 s62, s62, %d
        s_add_u32 s70, s70, s62
        """ % (D, WS_WOF, 160 * 1280, n, 40 * 1280))
        for i in range(4):
            row = 20 * (i & 1) + 8 * ((i >> 1) & 1)
            a("s_mov_b32 m0, %d" % (SCR + n * 4096 + i * 1024))
            a("s_add_u32 s64, s70, %d" % (row * 1280))
            a("buffer_load_dwordx4 v8, s[76:79], s64 offen lds")
        a("s_branch L_s1_tr_done%d" % n)
        a.label("L_s1_tr_wl%d" % n)
        for i in range(4):
            row = 20 * (4 * (i & 1) + 2 * ((i >> 1) & 1)) + 16
            a("s_mov_b32 m0, %d" % (SCR + n * 4096 + i * 1024))
            a("s_add_u32 s64, s70, %d" % (row * 1280))
            a("buffer_load_dwordx4 v9, s[76:79], s64 offen lds")
        a.label("L_s1_tr_done%d" % n)
    a("s_barrier")
    a("s_barrier")
    a("s_barrier")
    a("s_waitcnt vmcnt(0)")
    a("""
    v_lshrrev_b32 v3, 4, v1
    v_lshrrev_b32 v4, 2, v1
    v_and_b32 v4, 3, v4
    v_and_b32 v5, 3, v1
    v_lshlrev_b32 v5, 3, v5
    v_lshrrev_b32 v6, 1, v3
    v_lshlrev_b32 v6, 4, v6
    v_and_b32 v7, 1, v3
    v_lshlrev_b32 v7, 2, v7
    v_add3_u32 v6, v6, v7, v4
    v_lshrrev_b32 v7, 1, v6
    v_and_b32 v7, 3, v7
    v_lshlrev_b32 v6, 7, v6
    v_add_u32 v6, v6, v5
    v_add_u32 v6, %d, v6
    v_lshlrev_b32 v2, 4, v1
    """ % SCR)
    for t in range(4):
        a("v_xor_b32 v4, %d, v7" % t)
        a("v_lshl_add_u32 v%d, v4, 5, v6" % (10 + t))
    for n in range(3):
        for t in range(4):
            b = 104 + 16 * n + 4 * t
            a("ds_read_b64_tr_b16 v[%d:%d], v%d offset:%d" % (b, b + 1, 10 + t, n * 4096))
            a("ds_read_b64_tr_b16 v[%d:%d], v%d offset:%d" % (b + 2, b + 3, 10 + t, n * 4096 + 1024))
    a("s_waitcnt lgkmcnt(0)")
    for n in range(3):
        a("s_cmp_eq_u32 s%d, -1" % (82 + n))
        a("s_cbranch_scc1 L_s1_tr_skip%d" % n)
        for t in range(4):
            a("buffer_store_dwordx4 %s, v2, s[20:23], s%d offen offset:%d" % (vr(104 + 16 * n + 4 * t), 82 + n, t * 1024))
        a.label("L_s1_tr_skip%d" % n)
    for i in range(7):
        a("s_barrier")
    a("s_endpgm")


def stage1_lastarriver(a, T):
    a("""
    s_waitcnt vmcnt(0)
    s_barrier
    s_cmp_lg_u32 s35, 0
    s_cbranch_scc1 L_s1_la_wait_%s
    v_mov_b32 v4, 1
    s_lshl_b32 s63, s33, 2
    v_mov_b32 v5, s63
    s_mov_b64 s[72:73], exec
    s_mov_b64 exec, 1
    buffer_atomic_add v4, v5, s[4:7], 0 offen sc0 sc1
    s_waitcnt vmcnt(0)
    v_mov_b32 v5, 0x%x
    ds_write_b32 v5, v4
    s_waitcnt lgkmcnt(0)
    s_mov_b64 exec, s[72:73]
    """ % (T, 3 * S1_BUF + 12288))
    a.label("L_s1_la_wait_%s" % T)
    a("""
    s_barrier
    v_mov_b32 v5, 0x%x
    ds_read_b32 v4, v5
    s_waitcnt lgkmcnt(0)
    v_readfirstlane_b32 s63, v4
    s_nop 3
    s_cmp_lg_u32 s63, 15
    s_cbranch_scc1 L_s1_la_done_%s
    ; ---- reduce head h = 4jj + w : lane t<63: e=t/3, g'=t%%3
    v_mul_u32_u24 v4, 171, v1
    v_lshrrev_b32 v4, 9, v4                  ; e
    v_mul_u32_u24 v5, 3, v4
    v_sub_u32 v5, v1, v5                     ; g'
    v_mul_u32_u24 v6, 80, v4
    v_lshl_add_u32 v6, v5, 5, v6
    v_add_u32 v7, 16, v6
    v_mov_b32 v8, 0x7000000
    v_cmp_eq_u32 vcc, 2, v5
    s_lshl_b32 s64, s33, 2
    s_add_u32 s64, s64, s35                  ; head
    s_mul_i32 s66, s64, 1680
    s_add_u32 s66, s66, 0x%x
    v_cndmask_b32 v7, v7, v8, vcc
    v_cmp_gt_u32 vcc, 63, v1
    s_and_saveexec_b64 s[72:73], vcc
    """ % (3 * S1_BUF + 12288, T, WS_P))
    for rb in range(16):
        a("buffer_load_dwordx4 %s, v6, s[20:23], s66 offen sc1" % vr(16 + 8 * rb))
        a("buffer_load_dwordx4 %s, v7, s[20:23], s66 offen sc1" % vr(20 + 8 * rb))
        if rb < 15:
            a("s_add_u32 s66, s66, %d" % (32 * 1680))
    a("""
    s_lshl_b32 s67, s35, 2
    s_sub_u32 s68, s67, 16
    v_add_u32 v8, s68, v4                    ; 4w + e - 16
    v_and_b32 v8, 15, v8
    v_add_u32 v8, 48, v8                     ; +768/16
    v_cmp_gt_u32 vcc, 16, v4
    s_mul_i32 s66, s64, 1536
    s_add_u32 s66, s66, 0x%x
    v_cndmask_b32 v8, v8, v4, vcc
    v_lshlrev_b32 v8, 4, v8
    v_lshl_add_u32 v8, v5, 8, v8
    """ % WS_KVT)
    for rb in range(1, 16):
        a("s_waitcnt vmcnt(%d)" % (30 - 2 * rb))
        for i in range(0, 8, 2):
            a("v_pk_add_f32 v[%d:%d], v[%d:%d], v[%d:%d]" % (16 + i, 17 + i, 16 + i, 17 + i, 16 + 8 * rb + i, 17 + 8 * rb + i))
    for i in range(4):
        a("v_cvt_pk_bf16_f32 v%d, v%d, v%d" % (12 + i, 16 + 2 * i, 17 + 2 * i))
    a("buffer_store_dwordx4 v[12:15], v8, s[20:23], s66 offen")
    a("s_mov_b64 exec, s[72:73]")
    a.label("L_s1_la_done_%s" % T)


def stage1_gate(a):
    a("""
    s_lshl_b32 s60, s32, 7
    s_lshl_b32 s61, s33, 4
    s_add_u32 s60, s60, s61
    s_lshl_b32 s61, s35, 2
    s_add_u32 s60, s60, s61
    v_lshrrev_b32 v2, 5, v1
    v_add_u32 v2, s60, v2
    v_lshlrev_b32 v100, 2, v2
    v_add_u32 v100, 0x%x, v100
    v_mul_u32_u24 v2, 1280, v2
    v_and_b32 v3, 31, v1
    v_cmp_eq_u32 s[74:75], 0, v3
    v_mul_u32_u24 v3, 40, v3
    v_add_u32 v2, v2, v3
    buffer_load_dwordx4 v[20:23], v3, s[28:31], 0 offen
    buffer_load_dwordx4 v[24:27], v3, s[28:31], 0 offen offset:16
    buffer_load_dwordx2 v[28:29], v3, s[28:31], 0 offen offset:32
    """ % WS_G)
    for p in range(2):
        b = 32 + 12 * p
        a("buffer_load_dwordx4 %s, v2, s[8:11], 0 offen offset:%d" % (vr(b), p * 2560))
        a("buffer_load_dwordx4 %s, v2, s[8:11], 0 offen offset:%d" % (vr(b + 4), p * 2560 + 16))
        a("buffer_load_dwordx2 v[%d:%d], v2, s[8:11], 0 offen offset:%d" % (b + 8, b + 9, p * 2560 + 32))

def stage1_gate2(a, nst):
    a("s_waitcnt vmcnt(%d)" % nst)
    for i in range(10):
        a("v_lshlrev_b32 v%d, 16, v%d" % (60 + 2 * i, 20 + i))
        a("v_and_b32 v%d, 0xffff0000, v%d" % (61 + 2 * i, 20 + i))
    a("v_pk_mov_b32 v[96:97], 0, 0")
    for i in range(10):
        for p in range(2):
            b = 32 + 12 * p; t = 8 + 4 * p
            a("v_lshlrev_b32 v%d, 16, v%d" % (t, b + i))
            a("v_and_b32 v%d, 0xffff0000, v%d" % (t + 1, b + i))
        for p in range(2):
            t = 8 + 4 * p
            a("v_pk_mul_f32 v[%d:%d], v[%d:%d], v[%d:%d]" % (t, t + 1, t, t + 1, 60 + 2 * i, 61 + 2 * i))
        for p in range(2):
            t = 8 + 4 * p
            a("v_cvt_pk_bf16_f32 v%d, v%d, v%d" % (t, t, t + 1))
        for p in range(2):
            t = 8 + 4 * p
            a("v_lshlrev_b32 v%d, 16, v%d" % (t + 1, t))
            a("v_and_b32 v%d, 0xffff0000, v%d" % (t, t))
        for p in range(2):
            t = 8 + 4 * p
            a("v_add_f32 v%d, v%d, v%d" % (96 + p, 96 + p, t + 1))
        for p in range(2):
            t = 8 + 4 * p
            a("v_add_f32 v%d, v%d, v%d" % (96 + p, 96 + p, t))
    for mode in ("quad_perm:[1,0,3,2]", "quad_perm:[2,3,0,1]", "row_half_mirror", "row_mirror"):
        a("s_nop 1")
        for p in range(2):
            a("v_add_f32_dpp v%d, v%d, v%d %s row_mask:0xf bank_mask:0xf" % (96 + p, 96 + p, 96 + p, mode))
    for p in range(2):
        a("ds_swizzle_b32 v%d, v%d offset:0x401F" % (98 + p, 96 + p))
    a("s_waitcnt lgkmcnt(0)")
    for ins in ("v_add_f32 v{r}, v{r}, v{q}", "v_cvt_pk_bf16_f32 v{r}, v{r}, v{r}", "v_lshlrev_b32 v{r}, 16, v{r}", "v_mul_f32 v{r}, 0xbfb8aa3b, v{r}",
                "v_exp_f32 v{r}, v{r}", "NOP", "v_add_f32 v{r}, 1.0, v{r}", "v_rcp_f32 v{r}, v{r}", "NOP", "v_cvt_pk_bf16_f32 v{r}, v{r}, v{r}", "v_lshlrev_b32 v{r}, 16, v{r}"):
        if ins == "NOP":
            a("s_nop 0"); continue
        for p in range(2):
            a(ins.format(r=96 + p, q=98 + p))
    a("s_and_saveexec_b64 s[72:73], s[74:75]")
    for p in range(2):
        a("buffer_store_dword v%d, v100, s[20:23], 0 offen offset:%d" % (96 + p, p * 8))
    a("s_mov_b64 exec, s[72:73]")

def s1_warm(a):
    if int(os.environ.get("WARM", "1")):
        a("v_lshlrev_b32 v2, 4, v1")
        for (srdn, S, n) in ((8, 10240, 3), (12, 9600, 3), (16, 7680, 2)):
            a("s_mul_i32 s60, s2, %d" % S)
            a("s_mul_i32 s61, s35, %d" % (S // 4))
            a("s_add_u32 s60, s60, s61")
            for i in range(n):
                a("buffer_load_dwordx4 v[240:243], v2, s[%d:%d], s60 offen offset:%d" % (srdn, srdn + 3, i * 1024))

def s1_dma(typ):
    L = []
    if typ == 2:
        for i in range(16):
            L.append("s_add_u32 m0, s57, %d" % (i * 1024))
            L.append("s_add_u32 s64, s54, %d" % (i * 10240))
            L.append("buffer_load_dwordx4 v%d, s[8:11], s64 offen lds" % (96 + (i & 1)))
        L.append("s_add_u32 s54, s54, 128")
    elif typ == 0:
        for i in range(28):
            L.append("s_add_u32 m0, s57, %d" % (16384 + i * 1024))
            L.append("s_add_u32 s64, s55, %d" % ((i // 7) * 16 * 3840))
            L.append("buffer_load_dwordx4 v%d, s[12:15], s64 offen lds" % (98 + i % 7))
        L.append("s_add_u32 s55, s55, %d" % (64 * 3840))
    else:
        for i in range(24):
            L.append("s_add_u32 m0, s57, %d" % (16384 + i * 1024))
            L.append("s_add_u32 s64, s56, %d" % ((i // 6) * 16 * 3072))
            L.append("buffer_load_dwordx4 v%d, s[16:19], s64 offen lds" % (98 + i % 6))
        for i in range(2):
            L.append("s_add_u32 m0, s57, %d" % (16384 + 24576 + i * 1024))
            L.append("s_add_u32 s64, s55, %d" % (i * 32 * 3840))
            L.append("buffer_load_dwordx4 v104, s[12:15], s64 offen lds")
        L.append("s_add_u32 s55, s55, %d" % (64 * 3840))
        L.append("s_add_u32 s56, s56, %d" % (64 * 3072))
    L.append("s_add_u32 s57, s57, %d" % S1_BUF)
    L.append("s_cmp_eq_u32 s57, %d" % (3 * S1_BUF))
    L.append("s_cselect_b32 s57, 0, s57")
    return L

def stage1_loader(a, typ):
    T = "ABX"[typ]
    N = [28, 26, 16][typ]
    if int(os.environ.get("LPRIO", "0")): a("s_setprio 2")
    if typ == 2:
        a("""
        v_lshrrev_b32 v2, 3, v1
        v_mul_u32_u24 v2, 1280, v2
        v_and_b32 v3, 7, v1
        v_lshrrev_b32 v4, 4, v1
        v_xor_b32 v5, v3, v4
        v_lshlrev_b32 v6, 4, v5
        v_add_u32 v96, v2, v6
        v_xor_b32 v5, 4, v5
        v_lshlrev_b32 v6, 4, v5
        v_add_u32 v97, v2, v6
        s_lshl_b32 s60, s32, 7
        s_mul_i32 s54, s60, 1280
        """)
    else:
        a("s_mov_b32 s55, 0")
        a("s_mov_b32 s56, 0")
    if typ == 0:
        C = 28
        a("s_mov_b32 s67, %d" % ((2**32 + C - 1) // C))
        a("s_mul_i32 s68, s33, 160")
        a("s_add_u32 s69, s68, 1280")
        a("s_add_u32 s70, s68, %d" % (2560 - 160))
        a("s_lshl_b32 s71, s33, 7")
        a("s_sub_u32 s71, s71, 320")
        a("v_mov_b32 v8, s69")
        a("v_mov_b32 v9, s70")
        a("v_mov_b32 v10, s71")
        for i in range(7):
            a("v_add_u32 v2, %d, v1" % (64 * i))
            a("v_mul_hi_u32 v3, v2, s67")
            a("v_mul_u32_u24 v4, %d, v3" % C)
            a("v_sub_u32 v4, v2, v4")
            a("v_and_b32 v5, 4, v3")
            a("v_lshrrev_b32 v5, 1, v5")
            a("v_xor_b32 v4, v4, v5")
            a("v_cmp_gt_u32 vcc, 10, v4")
            a("v_cmp_gt_u32 s[72:73], 20, v4")
            swap23_v(a, 5, 3, 6)
            a("v_mul_u32_u24 v5, 3840, v5")
            a("v_cndmask_b32 v6, v9, v8, vcc")
            a("v_cndmask_b32 v6, v10, v6, s[72:73]")
            a("v_lshlrev_b32 v4, 4, v4")
            a("v_add3_u32 v%d, v5, v6, v4" % (98 + i))
    elif typ == 1:
        C = 24
        a("s_mov_b32 s67, %d" % ((2**32 + C - 1) // C))
        a("s_mul_i32 s68, s33, 384")
        for i in range(6):
            a("v_add_u32 v2, %d, v1" % (64 * i))
            a("v_mul_hi_u32 v3, v2, s67")
            a("v_mul_u32_u24 v4, %d, v3" % C)
            a("v_sub_u32 v4, v2, v4")
            a("v_and_b32 v5, 6, v3")
            a("v_xor_b32 v4, v4, v5")
            swap23_v(a, 5, 3, 6)
            a("v_mul_u32_u24 v5, 3072, v5")
            a("v_lshlrev_b32 v4, 4, v4")
            a("v_add3_u32 v%d, v5, s68, v4" % (98 + i))
        a("v_lshrrev_b32 v2, 1, v1")
        a("v_and_b32 v3, 15, v2")
        swap23_v(a, 5, 3, 6)
        a("v_and_b32 v3, 16, v2")
        a("v_add_u32 v5, v5, v3")
        a("v_mul_u32_u24 v5, 3840, v5")
        a("v_and_b32 v4, 1, v1")
        a("v_lshlrev_b32 v4, 4, v4")
        a("s_lshl_b32 s68, s33, 5")
        a("s_add_u32 s68, s68, 1024")
        a("v_add3_u32 v104, v5, s68, v4")
    stamp(a, 1)
    a.label("L_s1_ld_%s" % T)
    for s in s1_dma(typ):
        if int(os.environ.get("NODMA", "0")) and "buffer_load" in s: continue
        a(s)
    a("s_add_u32 s59, s59, 1")
    a("s_cmp_eq_u32 s59, 1")
    a("s_cbranch_scc1 L_s1_ld_%s" % T)
    if STAMP:
        a("s_cmp_lg_u32 s59, 2")
        a("s_cbranch_scc1 L_s1_ldst_%s" % T)
        stamp(a, 2)
        a("s_waitcnt vmcnt(%d)" % N)
        stamp(a, 3)
        a.label("L_s1_ldst_%s" % T)
    a("s_waitcnt vmcnt(%d)" % N)
    a("s_barrier")
    a("s_cmp_lt_u32 s59, 10")
    a("s_cbranch_scc1 L_s1_ld_%s" % T)
    a("s_waitcnt vmcnt(0)")
    a("s_barrier")
    a("s_barrier")
    stamp(a, 4)
    stamp_flush(a, 0, 20, 35)
    a("s_endpgm")

def stage1_type(a, typ):
    T = "AB"[typ]
    if typ == 0:
        a("""
        v_mul_u32_u24 v2, 448, v6
        v_add_u32 v2, v2, v5
        v_add_u32 v2, 16384, v2
        v_lshlrev_b32 v7, 5, v7
        v_add_u32 v107, v2, v7
        v_sub_u32 v108, v2, v7
        """)
        nb = 2
    else:
        a("""
        v_mul_u32_u24 v2, 384, v6
        v_add_u32 v2, v2, v5
        v_add_u32 v2, 16384, v2
        v_lshrrev_b32 v7, 1, v6
        v_and_b32 v7, 3, v7
        """)
        for j in range(4):
            a("v_xor_b32 v3, %d, v7" % j)
            a("v_subrev_u32 v3, %d, v3" % j)
            a("v_lshlrev_b32 v3, 5, v3")
            a("v_add_u32 v%d, v2, v3" % (107 + j))
        a("v_lshlrev_b32 v2, 5, v6")
        a("v_add_u32 v2, v2, v5")
        a("v_add_u32 v111, %d, v2" % (16384 + 24576))
        nb = 5
    a("s_cmp_eq_u32 s53, 1")
    a("s_cbranch_scc1 L_s1_%s1" % T)
    for wc in (0, 1):
        if wc == 1:
            a.label("L_s1_%s1" % T)
        stage1_wave(a, typ, wc, nb)

def s1_tiles(typ, wc):
    if typ == 0:
        return [("k", 0), ("k", 1), ("k", 2), ("v", 0), ("v", 1), ("q", 0), ("q", 1)] if wc == 0 else \
               [("k", 3), ("k", 4), ("v", 2), ("v", 3), ("v", 4), ("q", 2), ("q", 3)]
    else:
        return [("h", i) for i in range(6)] + [("q", 0)] if wc == 0 else [("h", i) for i in range(6, 12)] + [("g", 0)]

def s1_reads(typ, tiles, ks, aset, bset):
    L = []
    for ti, (kind, idx) in enumerate(tiles):
        if kind == "g":
            L.append("ds_read_b128 %s, v119 offset:%d" % (vr(bset + 4 * ti), 64 * ks))
            continue
        for hh in range(2):
            dst = bset + 4 * ti + 2 * hh
            if typ == 0:
                slot = {"k": 0, "v": 5, "q": 10}[kind] + idx
                base = 114 + (slot & 1)
                off = (32 * ks + 8 * hh) * 448 + slot * 32
            else:
                if kind == "q":
                    base = 118
                    off = (32 * ks + 8 * hh) * 32
                else:
                    base = 114 + (idx & 3)
                    off = (32 * ks + 8 * hh) * 384 + idx * 32
            L.append("ds_read_b64_tr_b16 v[%d:%d], v%d offset:%d" % (dst, dst + 1, base, off))
        if ti == 0:
            for rt in range(4):
                L.append("ds_read_b128 %s, v%d offset:%d" % (vr(aset + 4 * rt), 112 + ks, rt * 2048))
    return L

def s1_mfmas(tiles, aset, bset):
    L = []
    for ti, (kind, idx) in enumerate(tiles):
        for rt in range(4):
            acc = 128 + (ti * 4 + rt) * 4
            x = vr(aset + 4 * rt); w = vr(bset + 4 * ti)
            if kind in ("k", "v"):
                L.append("v_mfma_f32_16x16x32_bf16 %s, %s, %s, %s" % (vr(acc), x, w, vr(acc)))
            else:
                L.append("v_mfma_f32_16x16x32_bf16 %s, %s, %s, %s" % (vr(acc), w, x, vr(acc)))
    return L

def s1_setbase(nb):
    L = ["v_add_u32 v112, s58, v105", "v_add_u32 v113, s58, v106"]
    for j in range(nb):
        L.append("v_add_u32 v%d, s58, v%d" % (114 + j, 107 + j))
    return L

def stage1_wave(a, typ, wc, nb):
    T = "AB"[typ] + str(wc)
    tiles = s1_tiles(typ, wc)
    if typ == 1:
        a("s_waitcnt vmcnt(8)")
    for ti, (kind, idx) in enumerate(tiles):
        acc = 128 + (ti * 4) * 4
        if kind == "h":
            b = 32 + 2 * (idx % 6)
            a("v_lshlrev_b32 v%d, 16, v%d" % (acc, b))
            a("v_and_b32 v%d, 0xffff0000, v%d" % (acc + 1, b))
            a("v_lshlrev_b32 v%d, 16, v%d" % (acc + 2, b + 1))
            a("v_and_b32 v%d, 0xffff0000, v%d" % (acc + 3, b + 1))
            for rt in range(1, 4):
                for i in (0, 2):
                    a("v_pk_mov_b32 v[%d:%d], v[%d:%d], v[%d:%d] op_sel:[0,1]" % (acc + 4 * rt + i, acc + 4 * rt + i + 1, acc + i, acc + i + 1, acc + i, acc + i + 1))
        elif kind in ("k", "q"):
            for r in range(0, 16, 2):
                a("v_pk_mov_b32 v[%d:%d], s[80:81], s[80:81] op_sel:[0,1]" % (acc + r, acc + r + 1))
        else:
            for r in range(0, 16, 2):
                a("v_pk_mov_b32 v[%d:%d], 0, 0" % (acc + r, acc + r + 1))
    for s in s1_setbase(nb):
        a(s)
    GT = (typ == 1 and wc == 1)
    if GT:
        a("v_lshrrev_b32 v119, 4, v1")
        a("v_lshlrev_b32 v119, 4, v119")
        a("v_add_u32 v119, %d, v119" % (3 * S1_BUF + 12288))
    if not EARLYW: s1_warm(a)
    stamp(a, 1)
    a("s_barrier")
    for s in s1_reads(typ, tiles, 0, 64, 8):
        a(s)
    a("s_waitcnt lgkmcnt(0)")
    stamp(a, 2)
    a.label("L_s1_loop_%s" % T)
    NOLDS = int(os.environ.get("NOLDS", "0"))
    interleave(a, s1_mfmas(tiles, 64, 8), [] if NOLDS else s1_reads(typ, tiles, 1, 80, 36))
    a("s_add_u32 s58, s58, %d" % S1_BUF)
    a("s_cmp_eq_u32 s58, %d" % (3 * S1_BUF))
    a("s_cselect_b32 s58, 0, s58")
    a("s_waitcnt lgkmcnt(0)")
    a("s_barrier")
    m = s1_mfmas(tiles, 80, 36)
    interleave(a, m, s1_setbase(nb) + (["v_add_u32 v119, 128, v119"] if GT else []) + ([] if NOLDS else s1_reads(typ, tiles, 0, 64, 8)))
    a("s_add_u32 s59, s59, 1")
    a("s_cmp_lt_u32 s59, 10")
    a("s_waitcnt lgkmcnt(0)")
    a("s_cbranch_scc1 L_s1_loop_%s" % T)
    stamp(a, 3)
    a("v_and_b32 v2, 15, v1")
    a("v_lshrrev_b32 v3, 4, v1")
    a("s_lshl_b32 s60, s32, 7")
    a("s_lshl_b32 s63, s52, 6")
    a("s_add_u32 s60, s60, s63")
    if typ == 1:
        a("s_lshl_b32 s63, s52, 8")
        a("v_lshl_add_u32 v6, v2, 2, s63")
        if wc == 1:
            gacc = 128 + 6 * 16
            a("s_nop 4")
            for ins in ("v_cvt_pk_bf16_f32 v{r}, v{g}, v{g}", "v_lshlrev_b32 v{r}, 16, v{r}", "v_mul_f32 v{r}, 0xbfb8aa3b, v{r}", "v_exp_f32 v{r}, v{r}", "NOP",
                        "v_add_f32 v{r}, 1.0, v{r}", "v_rcp_f32 v{r}, v{r}", "NOP", "v_cvt_pk_bf16_f32 v{r}, v{r}, v{r}", "v_lshlrev_b32 v{r}, 16, v{r}",
                        "v_sub_f32 v{o}, 1.0, v{r}", "v_cvt_pk_bf16_f32 v{o}, v{o}, v{o}", "v_lshlrev_b32 v{o}, 16, v{o}"):
                if ins == "NOP":
                    a("s_nop 0"); continue
                for rt in range(4):
                    a(ins.format(r=21 + 2 * rt, o=20 + 2 * rt, g=gacc + 4 * rt))
            a("v_add_u32 v4, s60, v2")
            a("v_lshlrev_b32 v4, 2, v4")
            a("v_add_u32 v4, 0x%x, v4" % WS_G)
            a("v_cmp_eq_u32 vcc, 0, v3")
            a("s_and_saveexec_b64 s[72:73], vcc")
            for rt in range(4):
                a("ds_write_b32 v6, v%d offset:%d" % (20 + 2 * rt, rt * 64))
                a("buffer_store_dword v%d, v4, s[20:23], 0 offen offset:%d" % (21 + 2 * rt, rt * 64))
            a("s_mov_b64 exec, s[72:73]")
            a("s_waitcnt lgkmcnt(0)")
            a("s_barrier")
        else:
            a("s_barrier")
            for rt in range(4):
                a("ds_read_b32 v%d, v6 offset:%d" % (20 + 2 * rt, rt * 64))
            a("s_waitcnt lgkmcnt(0)")
    first_h = True; first_kv = True
    for ti, (kind, idx) in enumerate(tiles):
        if kind == "g":
            continue
        if kind == "h":
            if first_h:
                a("v_and_b32 v4, 1, v3")
                a("v_mul_u32_u24 v4, %d, v4" % HS)
                a("v_lshrrev_b32 v5, 1, v3")
                a("v_add_u32 v4, v4, v5")
                a("v_lshlrev_b32 v4, 8, v4")
                a("v_lshl_add_u32 v5, v2, 4, v4")
                a("s_lshr_b32 s63, s60, 4")
                a("s_mul_i32 s63, s63, %d" % HS)
                a("s_mul_i32 s64, s33, 24")
                a("s_add_u32 s63, s63, s64")
                a("s_add_u32 s63, s63, %d" % (12 * wc))
                a("s_lshl_b32 s63, s63, 8")
                a("s_add_u32 s63, s63, 0x%x" % WS_H)
                a("s_add_u32 s66, s63, %d" % (2 * HS * 256))
                first_h = False
            for p in range(2):
                accA = 128 + (ti * 4 + 2 * p) * 4
                accB = accA + 4
                for i in range(8):
                    a("v_max_f32 v%d, 0, v%d" % (accA + i, accA + i))
                for i in range(0, 8, 2):
                    a("v_pk_mul_f32 v[%d:%d], v[%d:%d], v[%d:%d]" % (accA + i, accA + i + 1, accA + i, accA + i + 1, accA + i, accA + i + 1))
                for i in range(0, 8, 2):
                    om = 20 + 2 * (2 * p + (i >> 2))
                    a("v_pk_mul_f32 v[%d:%d], v[%d:%d], v[%d:%d] op_sel_hi:[1,0]" % (accA + i, accA + i + 1, accA + i, accA + i + 1, om, om + 1))
                a("v_cvt_pk_bf16_f32 v%d, v%d, v%d" % (accA, accA, accA + 1))
                a("v_cvt_pk_bf16_f32 v%d, v%d, v%d" % (accA + 1, accA + 2, accA + 3))
                a("v_cvt_pk_bf16_f32 v%d, v%d, v%d" % (accA + 2, accB, accB + 1))
                a("v_cvt_pk_bf16_f32 v%d, v%d, v%d" % (accA + 3, accB + 2, accB + 3))
                a("s_nop 1")
                a("v_permlane16_swap_b32 v%d, v%d" % (accA, accA + 2))
                a("v_permlane16_swap_b32 v%d, v%d" % (accA + 1, accA + 3))
                a("buffer_store_dwordx4 %s, v5, s[20:23], s%d offen offset:%d" % (vr(accA), [63, 66][p], (idx % 6) * 512))
        elif kind == "q":
            if typ == 0:
                a("s_lshl_b32 s63, s33, 4")
                a("s_add_u32 s63, s63, %d" % (4 * idx))
            else:
                a("s_lshl_b32 s63, s33, 2")
                a("s_add_u32 s63, s63, 128")
            a("s_lshr_b32 s64, s60, 4")
            a("s_mul_i32 s64, s64, 160")
            a("s_add_u32 s63, s63, s64")
            a("s_lshl_b32 s63, s63, 7")
            a("s_add_u32 s63, s63, 0x%x" % WS_PQF)
            a("v_lshlrev_b32 v7, 3, v1")
            phi16(a, 128 + ti * 16, 96, 78, 80)
            for rt in range(4):
                acc = 128 + (ti * 4 + rt) * 4
                a("v_cvt_pk_bf16_f32 v%d, v%d, v%d" % (acc, acc, acc + 1))
                a("v_cvt_pk_bf16_f32 v%d, v%d, v%d" % (acc + 1, acc + 2, acc + 3))
                a("s_add_u32 s64, s63, %d" % (rt * 160 * 128))
                a("buffer_store_dwordx2 v[%d:%d], v7, s[20:23], s64 offen" % (acc, acc + 1))
            if typ == 0 and ti == 5:
                a("s_waitcnt lgkmcnt(0)")
                a("s_barrier")
                a("s_mul_i32 s63, s35, %d" % (20 * 272))
                a("v_mul_u32_u24 v5, 272, v2")
                a("v_lshlrev_b32 v6, 4, v3")
                a("v_add3_u32 v5, v5, v6, s63")
                for ks in range(4):
                    b = 16 + 16 * ks
                    a("ds_read_b128 %s, v5 offset:%d" % (vr(b), ks * 64))
                    a("ds_read_b128 %s, v5 offset:%d" % (vr(b + 4), ks * 64 + 16 * 272))
                    a("ds_read_b128 %s, v5 offset:%d" % (vr(b + 8), ks * 64 + 80 * 272))
                    a("ds_read_b128 %s, v5 offset:%d" % (vr(b + 12), ks * 64 + 96 * 272))

            if typ == 0 and ti == 6:
                a("v_cmp_eq_u32 vcc, 4, v2")
                a("v_mov_b32 v6, 0x3f803f80")
                a("s_waitcnt lgkmcnt(0)")
                for ks in range(4):
                    b = 16 + 16 * ks
                    for i in range(4):
                        a("v_cndmask_b32 v%d, v%d, v6, vcc" % (b + 12 + i, b + 12 + i))
                a("s_nop 1")
                for ks in range(4):
                    b = 16 + 16 * ks
                    c = lambda r: ("0" if ks == 0 else vr(r))
                    a("v_mfma_f32_16x16x32_bf16 v[80:83], %s, %s, %s" % (vr(b), vr(b + 8), c(80)))
                    a("v_mfma_f32_16x16x32_bf16 v[84:87], %s, %s, %s" % (vr(b), vr(b + 12), c(84)))
                    a("v_mfma_f32_16x16x32_bf16 v[88:91], %s, %s, %s" % (vr(b + 4), vr(b + 8), c(88)))
                    a("v_mfma_f32_16x16x32_bf16 v[92:95], %s, %s, %s" % (vr(b + 4), vr(b + 12), c(92)))
                a("s_lshl_b32 s63, s32, 5")
                a("s_lshl_b32 s64, s33, 2")
                a("s_add_u32 s63, s63, s64")
                a("s_add_u32 s63, s63, s35")
                a("s_mul_i32 s63, s63, 1680")
                a("s_add_u32 s63, s63, 0x%x" % WS_P)
                a("v_mul_u32_u24 v5, 80, v2")
                a("v_lshlrev_b32 v6, 4, v3")
                a("v_add_u32 v5, v5, v6")
                a("v_cmp_eq_u32 s[74:75], 0, v3")
                a("v_cmp_gt_u32 s[76:77], 5, v2")
                a("s_nop 7")
                a("buffer_store_dwordx4 v[80:83], v5, s[20:23], s63 offen")
                a("s_and_saveexec_b64 s[72:73], s[74:75]")
                a("buffer_store_dwordx4 v[88:91], v5, s[20:23], s63 offen offset:64")
                a("s_mov_b64 exec, s[76:77]")
                a("buffer_store_dwordx4 v[84:87], v5, s[20:23], s63 offen offset:1280")
                a("s_and_b64 exec, exec, s[74:75]")
                a("buffer_store_dwordx4 v[92:95], v5, s[20:23], s63 offen offset:1344")
                a("s_mov_b64 exec, s[72:73]")

        else:
            tc0 = 16 * idx + (80 if kind == "v" else 0)
            if first_kv:
                a("v_mul_u32_u24 v5, 272, v2")
                a("v_lshlrev_b32 v6, 3, v3")
                a("s_lshl_b32 s63, s52, 7")
                a("v_add3_u32 v5, v5, v6, s63")
                first_kv = False
            if kind == "k":
                phi16(a, 128 + ti * 16, 96, 78, 80)
            for rt in range(4):
                acc = 128 + (ti * 4 + rt) * 4
                a("v_cvt_pk_bf16_f32 v%d, v%d, v%d" % (acc, acc, acc + 1))
                a("v_cvt_pk_bf16_f32 v%d, v%d, v%d" % (acc + 1, acc + 2, acc + 3))
                a("ds_write_b64 v5, v[%d:%d] offset:%d" % (acc, acc + 1, tc0 * 272 + rt * 32))

    stamp(a, 4)
    stamp_flush(a, 0, 20, 35)
    dbg_end1(a)
    a("s_endpgm")

def stage2(a):
    NRT, NT = 4, 5
    a.raw(".globl s2_kernel\n.p2align 8\n.type s2_kernel,@function")
    a.label("s2_kernel")
    a("""
    s_cmp_ge_u32 s2, 256
    s_cbranch_scc1 L_s2_end
    """)
    stamp_start(a)
    a("""
    s_load_dwordx2 s[42:43], s[0:1], 56      ; b2
    s_load_dwordx4 s[44:47], s[0:1], 72
    s_load_dwordx2 s[38:39], s[0:1], 88      ; ws
    s_and_b32 s48, s2, 7
    s_lshr_b32 s49, s2, 3
    s_lshr_b32 s50, s48, 1
    s_lshl_b32 s50, s50, 3
    s_and_b32 s51, s49, 7
    s_add_u32 s50, s50, s51                  ; rb2 (0..31)
    s_and_b32 s52, s48, 1
    s_lshl_b32 s52, s52, 2
    s_lshr_b32 s53, s49, 3
    s_add_u32 s33, s52, s53                  ; cb (0..7)
    s_lshl_b32 s32, s50, 6                   ; row0
    s_lshl_b32 s34, s50, 2                   ; rt0
    v_and_b32 v1, 63, v0
    v_lshrrev_b32 v2, 6, v0
    v_lshlrev_b32 v4, 4, v1                  ; lane*16
    v_readfirstlane_b32 s35, v2
    v_and_b32 v2, 15, v1
    v_lshrrev_b32 v3, 4, v1
    s_waitcnt lgkmcnt(0)
    """)
    srd(a, 8, 38, WS_SIZE)
    srd(a, 20, 42, 1280)
    srd(a, 24, 44, 2621440)
    srd(a, 28, 46, 256)
    a("""
    s_cmp_ge_u32 s35, 4
    s_cbranch_scc1 L_s2_awave
    """)
    vm = []
    def V(ins, tag):
        vm.append(tag); return ins
    def waitvm(tag):
        idx = max(i for i, t in enumerate(vm) if t == tag)
        n = len(vm) - 1 - idx
        assert n <= 63, n
        return "s_waitcnt vmcnt(%d)" % n
    a("""
    s_mul_i32 s55, s34, """ + str(HS) + """
    s_mul_i32 s60, s35, 48
    s_add_u32 s55, s55, s60
    s_lshl_b32 s55, s55, 8                   ; A soffset
    s_add_u32 s55, s55, """ + hex(WS_H) + """
    s_mul_i32 s56, s35, 480
    s_mul_i32 s60, s33, 5
    s_add_u32 s56, s56, s60
    s_lshl_b32 s56, s56, 10
    s_add_u32 s56, s56, 0x%x                 ; B soffset
    s_mul_i32 s57, s35, 200
    s_add_u32 s57, s57, s60
    s_lshl_b32 s57, s57, 10
    s_add_u32 s57, s57, 0x%x                 ; WOF soffset
    v_add_u32 v5, 4096, v4
    ; rotate the K order among workgroups that share operands (L2 locality only)
    s_mul_i32 s59, s53, 3
    s_add_u32 s59, s59, s51
    s_lshr_b32 s60, s51, 1
    s_add_u32 s59, s59, s60                  ; 0..19
    s_cmp_ge_u32 s59, 12
    s_cselect_b32 s60, 12, 0
    s_mov_b32 s59, 0                         ; start step (rotation disabled)
    s_lshl_b32 s60, s59, 10
    s_add_u32 s55, s55, s60
    s_mul_i32 s60, s59, 40960
    s_add_u32 s56, s56, s60
    s_mov_b32 s66, %d
    s_mov_b32 s67, 1024
    s_mov_b32 s68, %d
    s_mov_b32 s69, 40960
    """ % (WS_W2F, WS_WOF, (1024 - 12288) & 0xffffffff, (40960 - 12 * 40960) & 0xffffffff))
    VA = 232
    for rt in range(NRT):
        a("v_add_u32 v%d, %d, v4" % (VA + rt, rt * HS * 256))
    ACC = 152
    def SET(st):
        b = 8 + 36 * (st % 4); return b, b + 16
    def bload(dst, t, sreg, tag):
        if t < 4:
            return ("buffer_load_dwordx4 %s, v4, s[8:11], s%d offen offset:%d" % (vr(dst), sreg, t * 1024), tag)
        return ("buffer_load_dwordx4 %s, v5, s[8:11], s%d offen" % (vr(dst), sreg), tag)
    def loads(st):
        A, B = SET(st); tag = "L%d" % st
        L = [bload(B, 0, 56, tag)]
        for rt in range(NRT):
            L.append(("buffer_load_dwordx4 %s, v%d, s[8:11], s55 offen" % (vr(A + 4 * rt), VA + rt), tag))
        for t in range(1, NT):
            L.append(bload(B + 4 * t, t, 56, tag))
        L.append(("s_add_u32 s59, s59, 1", None))
        L.append(("s_cmp_eq_u32 s59, 12", None))
        L.append(("s_cselect_b32 s64, s66, s67", None))
        L.append(("s_cselect_b32 s65, s68, s69", None))
        L.append(("s_add_u32 s55, s55, s64", None))
        L.append(("s_add_u32 s56, s56, s65", None))
        return L
    def wl(step):
        L = [bload(8 + 20 * step + 4 * t, t, 57, "W%d" % step) for t in range(NT)]
        L.append(("s_add_u32 s57, s57, %d" % (40 * 1024), None))
        return L
    def emit(items):
        for ins, tag in items:
            a(V(ins, tag) if tag else ins)
    def inter(main, items, every=2, start=0):
        items = list(items)
        for i, m in enumerate(main):
            a(m)
            if i >= start and (i - start) % every == 0 and items:
                ins, tag = items.pop(0); a(V(ins, tag) if tag else ins)
        emit(items)
    def mfmas(aset, bset):
        return ["v_mfma_f32_16x16x32_bf16 %s, %s, %s, %s" % (vr(ACC + (t * NRT + rt) * 4), vr(bset + 4 * t), vr(aset + 4 * rt), vr(ACC + (t * NRT + rt) * 4))
                for t in range(NT) for rt in range(NRT)]
    a("s_cmp_ge_u32 s2, 32")
    a("s_cbranch_scc1 L_s2_bgo")
    a("s_barrier")
    a.label("L_s2_bgo")
    emit(loads(0)); emit(loads(1))
    a("s_lshl_b32 s60, s35, 4")
    a("s_add_u32 s60, s60, s32")
    a("v_add_u32 v6, s60, v2")
    a("v_lshlrev_b32 v7, 2, v6")
    a("v_add_u32 v7, 0x%x, v7" % WS_G)
    a(V("buffer_load_dword v236, v7, s[8:11], 0 offen", "G"))
    a("s_mul_i32 s58, s33, 160")
    a("v_lshlrev_b32 v7, 3, v3")
    for t in range(NT):
        a(V("buffer_load_dwordx2 v[%d:%d], v7, s[20:23], s58 offen offset:%d" % (238 + 2 * t, 239 + 2 * t, t * 32), "G"))
    stamp(a, 1)
    for r in range(0, 80, 2):
        a("v_pk_mov_b32 v[%d:%d], 0, 0" % (ACC + r, ACC + r + 1))
    stamp(a, 2)
    a("s_mul_i32 s60, s35, 20480")
    a("v_add_u32 v7, s60, v4")
    SEQ = ["b"] * 5 + ["a", "a"] + ["b"] * 4 + ["a", "a", "a"] + ["b"] * 3
    def sloads(n):
        if n >= len(SEQ): return []
        if SEQ[n] == "b":
            return loads(n)
        A, B = SET(n)
        L = [bload(B + 4 * t, t, 57, "L%d" % n) for t in range(NT)]
        L.append(("s_add_u32 s57, s57, %d" % (40 * 1024), None))
        return L
    astep = 0
    for n, kind in enumerate(SEQ):
        A, B = SET(n)
        if kind == "a":
            if astep in (0, 2):
                a("s_barrier")
            for rt in range(NRT):
                a("ds_read_b128 %s, v7 offset:%d" % (vr(A + 4 * rt), rt * 5120 + astep * 1024))
            astep += 1
        side = (sloads(2) + sloads(3)) if n == 0 else sloads(n + 3)
        a(waitvm("L%d" % n))
        emit(side)
        if kind == "a":
            a("s_waitcnt lgkmcnt(0)")
        for x in mfmas(A, B): a(x)
    stamp(a, 3)
    stamp(a, 4)
    a("v_sub_f32 v236, 1.0, v236")
    a("v_cvt_pk_bf16_f32 v236, v236, v236")
    a("v_lshlrev_b32 v236, 16, v236")
    a("s_barrier")
    for w in range(4):
        a("s_cmp_lg_u32 s35, %d" % w)
        a("s_cbranch_scc1 L_s2_fw%d" % w)
        for rt in range(NRT):
            if rt == w: continue
            si = w if w < rt else w - 1
            for t in range(NT):
                a("ds_write_b128 v4, %s offset:%d" % (vr(ACC + (t * NRT + rt) * 4), (rt * 3 + si) * 5120 + t * 1024))
        for t in range(NT):
            src = ACC + (t * NRT + w) * 4
            a("v_lshlrev_b32 v8, 16, v%d" % (238 + 2 * t))
            a("v_and_b32 v9, 0xffff0000, v%d" % (238 + 2 * t))
            a("v_lshlrev_b32 v10, 16, v%d" % (239 + 2 * t))
            a("v_and_b32 v11, 0xffff0000, v%d" % (239 + 2 * t))
            for i in (0, 2):
                a("v_pk_fma_f32 v[%d:%d], v[%d:%d], v[236:237], v[%d:%d] op_sel_hi:[1,0,1]" % (16 + 4 * t + i, 17 + 4 * t + i, 8 + i, 9 + i, src + i, src + i + 1))
        a.label("L_s2_fw%d" % w)
    a("s_mul_i32 s61, s35, %d" % (3 * 5120))
    a("v_add_u32 v7, s61, v4")
    a("s_waitcnt lgkmcnt(0)")
    a("s_barrier")
    for si in range(3):
        for t in range(NT):
            a("ds_read_b128 %s, v7 offset:%d" % (vr(40 + (si * NT + t) * 4), si * 5120 + t * 1024))
    a("v_mul_u32_u24 v6, 1280, v6")
    a("v_and_b32 v8, 1, v3")
    a("v_lshl_add_u32 v8, v8, 5, v6")
    a("v_lshrrev_b32 v9, 1, v3")
    a("v_lshl_add_u32 v8, v9, 4, v8")
    a("v_lshl_add_u32 v9, v3, 3, v6")
    for si in range(3):
        a("s_waitcnt lgkmcnt(%d)" % (10 - 5 * si))
        for t in range(NT):
            o = 16 + 4 * t; q = 40 + (si * NT + t) * 4
            for i in (0, 2):
                a("v_pk_add_f32 v[%d:%d], v[%d:%d], v[%d:%d]" % (o + i, o + i + 1, o + i, o + i + 1, q + i, q + i + 1))
    for p in range(2):
        A_, B_ = 16 + 8 * p, 20 + 8 * p
        a("v_cvt_pk_bf16_f32 v%d, v%d, v%d" % (A_, A_, A_ + 1))
        a("v_cvt_pk_bf16_f32 v%d, v%d, v%d" % (A_ + 1, A_ + 2, A_ + 3))
        a("v_cvt_pk_bf16_f32 v%d, v%d, v%d" % (A_ + 2, B_, B_ + 1))
        a("v_cvt_pk_bf16_f32 v%d, v%d, v%d" % (A_ + 3, B_ + 2, B_ + 3))
    a("v_cvt_pk_bf16_f32 v32, v32, v33")
    a("v_cvt_pk_bf16_f32 v33, v34, v35")
    for p in range(2):
        A_ = 16 + 8 * p
        a("v_permlane16_swap_b32 v%d, v%d" % (A_, A_ + 2))
        a("v_permlane16_swap_b32 v%d, v%d" % (A_ + 1, A_ + 3))
        a("buffer_store_dwordx4 %s, v8, s[24:27], s58 offen offset:%d" % (vr(A_), p * 64))
    a("buffer_store_dwordx2 v[32:33], v9, s[24:27], s58 offen offset:128")
    dbg_end2(a)
    stamp_flush(a, 2, 8, 35)
    a("s_endpgm")
    a.label("L_s2_awave")
    a("s_setprio 2")
    F, PQB, Z, OA, RY, T1 = 8, [40, 56], 72, 96, 112, 144
    G = [76, 77, 78, 79]
    DS = 80
    EPSR = 88
    FBANK = [8, 176]
    def reduce_head(hs, barrier):
        a("""
        v_mul_u32_u24 v8, 171, v1
        v_lshrrev_b32 v8, 9, v8                  ; e
        v_mul_u32_u24 v9, 3, v8
        v_sub_u32 v9, v1, v9                     ; g'
        v_mul_u32_u24 v6, 80, v8
        v_lshl_add_u32 v6, v9, 5, v6
        v_add_u32 v7, 16, v6
        v_mov_b32 v10, 0x7000000
        v_cmp_eq_u32 vcc, 2, v9
        s_mul_i32 s12, s%d, 1680
        s_add_u32 s12, s12, 0x%x
        s_nop 0
        v_cndmask_b32 v7, v7, v10, vcc
        v_cmp_gt_u32 vcc, 63, v1
        s_and_saveexec_b64 s[16:17], vcc
        """ % (hs, WS_P))
        for rb in range(16):
            a("buffer_load_dwordx4 %s, v6, s[8:11], s12 offen" % vr(16 + 8 * rb))
            a("buffer_load_dwordx4 %s, v7, s[8:11], s12 offen" % vr(20 + 8 * rb))
            if rb < 15:
                a("s_add_u32 s12, s12, %d" % (32 * 1680))
        a("""
        s_and_b32 s13, s%d, 3
        s_lshl_b32 s13, s13, 2
        s_sub_u32 s14, s13, 16
        v_add_u32 v10, s14, v8
        v_and_b32 v10, 15, v10
        v_add_u32 v10, 48, v10
        v_cmp_gt_u32 vcc, 16, v8
        s_mul_i32 s12, s%d, 1536
        s_add_u32 s12, s12, 0x%x
        v_cndmask_b32 v10, v10, v8, vcc
        v_lshlrev_b32 v10, 4, v10
        v_lshl_add_u32 v10, v9, 8, v10
        """ % (hs, hs, WS_KVT))
        for rb in range(1, 16):
            a("s_waitcnt vmcnt(%d)" % (30 - 2 * rb))
            for i in range(0, 8, 2):
                a("v_pk_add_f32 v[%d:%d], v[%d:%d], v[%d:%d]" % (16 + i, 17 + i, 16 + i, 17 + i, 16 + 8 * rb + i, 17 + 8 * rb + i))
        for i in range(4):
            a("v_cvt_pk_bf16_f32 v%d, v%d, v%d" % (12 + i, 16 + 2 * i, 17 + 2 * i))
        a("buffer_store_dwordx4 v[12:15], v10, s[8:11], s12 offen sc1")
        if barrier:
            a("s_barrier")
        a("s_mov_b64 exec, -1")
    a("""
    s_sub_u32 s58, s35, 4                    ; aw
    s_mul_i32 s54, s58, 20480
    s_mul_i32 s60, s34, 160
    s_mul_i32 s61, s58, 40
    s_add_u32 s60, s60, s61
    s_lshl_b32 s60, s60, 7
    s_add_u32 s60, s60, 0x%x
    v_add_u32 v5, s32, v2
    v_lshlrev_b32 v5, 2, v5
    v_add_u32 v5, 0x%x, v5
    ; reducer duty: wave 4 of workgroups 0..31 reduces head = id
    s_cmp_ge_u32 s2, 32
    s_cbranch_scc1 L_s2_nored
    s_cmp_eq_u32 s35, 4
    s_cbranch_scc1 L_s2_dored
    s_barrier
    s_branch L_s2_nored
    """ % (WS_PQF, WS_G))
    a.label("L_s2_dored")
    a("s_setprio 3")
    reduce_head(2, True)
    a("s_setprio 2")
    a.label("L_s2_nored")
    for i in range(5):
        for rt in range(NRT):
            a("s_add_u32 m0, s54, %d" % (rt * 5120 + i * 1024))
            a("s_add_u32 s64, s60, %d" % (rt * 160 * 128 + i * 1024))
            a("buffer_load_dwordx4 v4, s[8:11], s64 offen lds")
    stamp(a, 1)
    a("v_cmp_gt_u32 s[82:83], 48, v1")
    a("v_cmp_gt_u32 s[84:85], 32, v1")
    a("s_lshl_b32 s61, s58, 3")
    a("s_mul_i32 s61, s61, 1536")
    a("s_add_u32 s61, s61, 0x%x" % WS_KVT)
    a("v_lshrrev_b32 v0, 2, v2")
    for jj in range(4):
        a("v_cmp_ne_u32 s[%d:%d], %d, v0" % (66 + 2 * jj, 67 + 2 * jj, jj))
        a("v_cmp_eq_u32 s[%d:%d], %d, v3" % (74 + 2 * jj, 75 + 2 * jj, jj))
    for jj in range(4):
        a("v_cmp_eq_u32 vcc, %d, v2" % ((4 * jj + 4) & 15))
        a("s_orn2_b64 s[%d:%d], vcc, s[%d:%d]" % (40 + 2 * jj, 41 + 2 * jj, 66 + 2 * jj, 67 + 2 * jj))
    for r in list(range(T1, T1 + 32, 2)) + list(range(176, 208, 2)):
        a("v_pk_mov_b32 v[%d:%d], 0, 0" % (r, r + 1))
    a("s_mov_b32 s19, 0")
    a.label("L_s2_fsetup")
    for r in range(8, 40, 2):
        a("v_pk_mov_b32 v[%d:%d], 0, 0" % (r, r + 1))
    a("s_mov_b32 s63, 0")
    a.label("L_s2_fpoll")
    a("s_mov_b64 exec, s[82:83]")
    for j in range(8):
        fb = FBANK[j >> 2] + 8 * (j & 3)
        a("s_add_u32 s62, s61, %d" % (j * 1536))
        a("buffer_load_dwordx4 %s, v4, s[8:11], s62 offen sc1" % vr(fb))
        a("buffer_load_dwordx4 %s, v4, s[8:11], s62 offen offset:768 sc1" % vr(fb + 4))
    a("s_waitcnt vmcnt(0)")
    a("s_mov_b64 s[64:65], 0")
    for j in range(8):
        fb = FBANK[j >> 2] + 8 * (j & 3)
        a("v_cmp_eq_u32 vcc, -1, v%d" % fb)
        a("s_or_b64 s[64:65], s[64:65], vcc")
        a("v_cmp_eq_u32 vcc, -1, v%d" % (fb + 4))
        a("s_and_b64 vcc, vcc, s[%d:%d]" % (40 + 2 * (j & 3), 41 + 2 * (j & 3)))
        a("s_or_b64 s[64:65], s[64:65], vcc")
    a("s_mov_b64 exec, -1")
    a("s_add_u32 s63, s63, 1")
    a("s_cmp_eq_u64 s[64:65], 0")
    a("s_cbranch_scc1 L_s2_fok")
    a("s_cmp_ge_u32 s63, %d" % int(os.environ.get("SPIN", "4000")))
    a("s_cbranch_scc1 L_s2_ffall")
    a("s_sleep 6")
    a("s_branch L_s2_fpoll")
    a.label("L_s2_ffall")
    a("s_cmp_lg_u32 s19, 0")
    a("s_cbranch_scc1 L_s2_fok")
    a("s_mov_b32 s19, 1")
    a("s_lshl_b32 s18, s58, 3")
    a("s_add_u32 s15, s18, 8")
    a.label("L_s2_floop")
    reduce_head(18, False)
    a("s_nop 1")
    a("s_add_u32 s18, s18, 1")
    a("s_cmp_lt_u32 s18, s15")
    a("s_cbranch_scc1 L_s2_floop")
    a("s_waitcnt vmcnt(0)")
    a("s_branch L_s2_fsetup")
    a.label("L_s2_fok")
    stamp(a, 2)
    for rt in range(NRT):
        a("buffer_load_dword v%d, v5, s[8:11], 0 offen offset:%d" % (G[rt], rt * 64))
    a("v_lshlrev_b32 v6, 8, v3")
    a("v_lshl_add_u32 v6, v2, 3, v6")
    a("v_add_u32 v6, s54, v6")
    a("v_add_u32 v7, s54, v4")
    for r in list(range(40, 72, 2)) + list(range(DS, DS + 8, 2)):
        a("v_pk_mov_b32 v[%d:%d], 0, 0" % (r, r + 1))
    for i in range(4):
        a("v_mov_b32 v%d, %s" % (EPSR + i, EPS))
    def pqreads(j):
        P = PQB[j & 1]
        a("s_mov_b64 exec, s[82:83]")
        for rt in range(NRT):
            a("ds_read_b64 v[%d:%d], v6 offset:%d" % (P + 4 * rt, P + 4 * rt + 1, rt * 5120 + j * 640))
        a("s_mov_b64 exec, s[84:85]")
        for rt in range(NRT):
            a("ds_read_b64 v[%d:%d], v6 offset:%d" % (P + 4 * rt + 2, P + 4 * rt + 3, rt * 5120 + j * 640 + 128))
        a("s_mov_b64 exec, -1")
    pqreads(0)
    for j in range(8):
        jj = j & 3
        f0, f1 = FBANK[j >> 2] + 8 * jj, FBANK[j >> 2] + 8 * jj + 4
        P = PQB[j & 1]
        for i in range(4):
            a("v_mov_b32_dpp v%d, v%d row_newbcast:%d row_mask:0xf bank_mask:0xf" % (Z + i, f1 + i, (4 * jj + 4) & 15))
        a("s_nop 0")
        for i in range(4):
            a("v_cndmask_b32 v%d, v%d, 0, s[%d:%d]" % (f1 + i, f1 + i, 66 + 2 * jj, 67 + 2 * jj))
        a("s_waitcnt lgkmcnt(0)")
        if j < 7:
            pqreads(j + 1)
        else:
            a("s_nop 0")
        for rt in range(NRT):
            a("v_mfma_f32_16x16x32_bf16 %s, %s, %s, %s" % (vr(RY + 8 * rt + 4), vr(Z), vr(P + 4 * rt), vr(EPSR)))
        for rt in range(NRT):
            a("v_mfma_f32_16x16x32_bf16 %s, %s, %s, 0" % (vr(RY + 8 * rt), vr(f0), vr(P + 4 * rt)))
        for rt in range(NRT):
            t1 = T1 + ((j >> 2) * NRT + rt) * 4
            a("v_mfma_f32_16x16x32_bf16 %s, %s, %s, %s" % (vr(t1), vr(f1), vr(P + 4 * rt), vr(t1)))
        for rt in range(NRT):
            a("v_rcp_f32 v%d, v%d" % (RY + 8 * rt + 4, RY + 8 * rt + 4))
        a("s_waitcnt vmcnt(0)" if j == 0 else "s_nop 0")
        for rt in range(NRT):
            a("v_mul_f32 v%d, v%d, v%d" % (RY + 8 * rt + 4, RY + 8 * rt + 4, G[rt]))
        for rt in range(NRT):
            t0 = RY + 8 * rt
            for i in (0, 2):
                a("v_pk_mul_f32 v[%d:%d], v[%d:%d], v[%d:%d] op_sel_hi:[1,0]" % (t0 + i, t0 + i + 1, t0 + i, t0 + i + 1, t0 + 4, t0 + 5))
        for rt in range(NRT):
            ds = DS + (j >> 2) * NRT + rt
            a("v_cndmask_b32 v%d, v%d, v%d, s[%d:%d]" % (ds, ds, RY + 8 * rt + 4, 74 + 2 * jj, 75 + 2 * jj))
        for rt in range(NRT):
            t0 = RY + 8 * rt
            oa = OA + 4 * rt + 2 * (j & 1)
            a("v_cvt_pk_bf16_f32 v%d, v%d, v%d" % (oa, t0, t0 + 1))
            a("v_cvt_pk_bf16_f32 v%d, v%d, v%d" % (oa + 1, t0 + 2, t0 + 3))
        if j & 1:
            a("s_waitcnt lgkmcnt(0)")
            for rt in range(NRT):
                a("ds_write_b128 v7, %s offset:%d" % (vr(OA + 4 * rt), rt * 5120 + (j >> 1) * 1024))
            if j == 3:
                a("s_waitcnt lgkmcnt(0)")
                a("s_barrier")
    for rt in range(NRT):
        for q in range(2):
            t1 = T1 + (q * NRT + rt) * 4
            ds = DS + q * NRT + rt
            for i in range(4):
                a("v_mul_f32 v%d, v%d, v%d" % (t1 + i, t1 + i, ds))
            oa = RY + 4 * rt + 2 * q
            a("v_cvt_pk_bf16_f32 v%d, v%d, v%d" % (oa, t1, t1 + 1))
            a("v_cvt_pk_bf16_f32 v%d, v%d, v%d" % (oa + 1, t1 + 2, t1 + 3))
        a("ds_write_b128 v7, %s offset:%d" % (vr(RY + 4 * rt), rt * 5120 + 4096))
    stamp(a, 3)
    stamp(a, 4)
    a("s_waitcnt lgkmcnt(0)")
    a("s_barrier")
    stamp_flush(a, 2, 8, 35)
    a.label("L_s2_end")
    a("s_endpgm")
    a.label("L_code_end")

def kd(name, vgpr, accum, sgpr=102):
    return """.amdhsa_kernel %s
  .amdhsa_next_free_vgpr %d
  .amdhsa_next_free_sgpr %d
  .amdhsa_accum_offset %d
  .amdhsa_group_segment_fixed_size 0
  .amdhsa_kernarg_size 96
  .amdhsa_user_sgpr_count 2
  .amdhsa_user_sgpr_kernarg_segment_ptr 1
  .amdhsa_system_sgpr_workgroup_id_x 1
.end_amdhsa_kernel
""" % (name, vgpr, sgpr, accum)

def main():
    a = Asm()
    hdr = open("cdna_kernels/%s.s.ref" % NAME).read().split("; Override launch")[0]
    out = hdr
    out += "; @launch kernel=s1_kernel grid=(256,1,1) block=(448,1,1) lds=%d\n" % (3 * S1_BUF + 16384)
    out += "; @launch kernel=s2_kernel grid=(256,1,1) block=(512,1,1) lds=81920\n"
    out += '.amdgcn_target "amdgcn-amd-amdhsa--gfx950"\n.text\n'
    stage1(a)
    stage2(a)
    out += a.text()
    out += '.section .rodata,"a"\n.p2align 6\n'
    out += kd("s1_kernel", 256, 256)
    out += ".p2align 6\n" + kd("s2_kernel", 256, 256)
    dst = sys.argv[1] if len(sys.argv) > 1 else "cdna_kernels/%s.s" % NAME
    open(dst, "w").write(out)

main()
```
